```python
import torch

def _softmax(x, axis=-1):
    return torch.softmax(x, dim=axis)
def _gelu(x):
    return torch.nn.functional.gelu(x, approximate="tanh")
def _silu(x):
    return torch.nn.functional.silu(x)
def _sigmoid(x):
    return torch.sigmoid(x)
def _layernorm(x, axis=-1, eps=1e-5):
    m = x.mean(dim=axis, keepdim=True)
    v = x.var(dim=axis, keepdim=True, unbiased=False)
    return (x - m) / torch.sqrt(v + eps)
def _scatter_add(tgt, idx, src, axis=0):
    return tgt.clone().index_add_(axis, idx, src)
def _segment_sum(src, seg, n):
    out = torch.zeros((n,) + src.shape[1:], dtype=src.dtype)
    return out.index_add_(0, seg, src)
def _pad(x, pw):
    flat = tuple(v for pair in reversed(pw) for v in pair)
    return torch.nn.functional.pad(x, flat)

kernel_name = 'sequential_preLN__ssm_conv_s4__glu_gated_swiglu__prompt'

def setup_inputs():

    _w = (lambda a: (lambda t: t.to(torch.bfloat16) if t.is_floating_point() else t)(torch.as_tensor(a)))
    def _A_setup():
        B, L, D, N = 1, 2048, 640, 192
        A_re = -(lambda _x: torch.exp(torch.as_tensor(_x)))((lambda *s: torch.randn(*s, dtype=torch.bfloat16) * 3.2)(D, N))
        A_im = torch.pi * (lambda *s: torch.randn(*s, dtype=torch.bfloat16) * 0.05)(D, N)
        B_re = (lambda *s: torch.randn(*s, dtype=torch.bfloat16) * 0.05)(D, N)
        B_im = (lambda *s: torch.randn(*s, dtype=torch.bfloat16) * 0.05)(D, N)
        C_re = (lambda *s: torch.randn(*s, dtype=torch.bfloat16) * 0.05)(D, N)
        C_im = (lambda *s: torch.randn(*s, dtype=torch.bfloat16) * 0.05)(D, N)
        log_dt = (lambda *s: torch.randn(*s, dtype=torch.bfloat16) * 0.05)(D) * 0.5 - 4.0
        Dskip = (lambda *s: torch.randn(*s, dtype=torch.bfloat16) * 0.05)(D)
        return {
            "u": _w((lambda *s: torch.randn(*s, dtype=torch.bfloat16) * 0.05)(B, L, D)),
            "A_re": _w(A_re),
            "A_im": _w(A_im),
            "B_re": _w(B_re),
            "B_im": _w(B_im),
            "C_re": _w(C_re),
            "C_im": _w(C_im),
            "log_dt": _w(log_dt),
            "Dskip": _w(Dskip),
        }
    _A_in = _A_setup()

    def _B_setup():
        B, S, D, F = 1, 2048, 640, 1536
        return {
            "x": _w((lambda *s: torch.randn(*s, dtype=torch.bfloat16) * 0.05)(B, S, D)),
            "w1": _w((lambda *s: torch.randn(*s, dtype=torch.bfloat16) * 0.4)(D, F) * (2.0 / D) ** 0.5),
            "w3": _w((lambda *s: torch.randn(*s, dtype=torch.bfloat16) * 0.4)(D, F) * (2.0 / D) ** 0.5),
            "w2": _w((lambda *s: torch.randn(*s, dtype=torch.bfloat16) * 0.4)(F, D) * (2.0 / F) ** 0.5),
        }
    _B_in = _B_setup()

    return {
        "A_u": _A_in["u"],
        "A_A_re": _A_in["A_re"],
        "A_A_im": _A_in["A_im"],
        "A_B_re": _A_in["B_re"],
        "A_B_im": _A_in["B_im"],
        "A_C_re": _A_in["C_re"],
        "A_C_im": _A_in["C_im"],
        "A_log_dt": _A_in["log_dt"],
        "A_Dskip": _A_in["Dskip"],
        "B_x": _B_in["x"],
        "B_w1": _B_in["w1"],
        "B_w3": _B_in["w3"],
        "B_w2": _B_in["w2"],
    }

def reference(A_u, A_A_re, A_A_im, A_B_re, A_B_im, A_C_re, A_C_im, A_log_dt, A_Dskip, B_x, B_w1, B_w3, B_w2):
    def _A_ref(u, A_re, A_im, B_re, B_im, C_re, C_im, log_dt, Dskip):
        Bsz, L, D = u.shape
        dt = torch.exp(log_dt)[:, None]
        A = A_re + 1j * A_im
        Bc = B_re + 1j * B_im
        Cc = C_re + 1j * C_im
        logdA = dt * A
        dB = dt * Bc
        l = (lambda x, dt: x.to(dt))(torch.arange(L), A_re.dtype)
        P = torch.exp(logdA[:, :, None] * l[None, None, :])
        K = torch.einsum("dn,dnl,dn->dl", Cc, P, dB).real
        L2 = 2 * L
        Kp = _pad(K, ((0, 0), (0, L)))
        up = (lambda x, *d: x.permute(*d))(u, 0, 2, 1)
        up = _pad(up, ((0, 0), (0, 0), (0, L)))
        Kf = (lambda x, axes=(-2,-1): torch.fft.rfft2(x.float(), dim=axes))(Kp[:, None, :], axes=(-2, -1))
        Uf = (lambda x, axes=(-2,-1): torch.fft.rfft2(x.float(), dim=axes))(up[:, :, None, :], axes=(-2, -1))
        Yf = Uf * Kf[None, :, :, :]
        y = (lambda x, s, axes=(-2,-1): torch.fft.irfft2(x, s=s, dim=axes).to(torch.bfloat16))(Yf, (1, L2), axes=(-2, -1))[:, :, 0, :L]
        y = (lambda x, *d: x.permute(*d))(y, 0, 2, 1) + u * Dskip[None, None, :]
        return y

    def _B_ref(x, w1, w3, w2):
        gate = torch.einsum("bsd,df->bsf", x, w1)
        up = torch.einsum("bsd,df->bsf", x, w3)
        h = _silu(gate) * up
        out = torch.einsum("bsf,fd->bsd", h, w2)
        return out

    x = A_u
    h = x + _A_ref(_layernorm(x, axis=-1), A_A_re, A_A_im, A_B_re, A_B_im, A_C_re, A_C_im, A_log_dt, A_Dskip)
    h2 = h + _B_ref(_layernorm(h, axis=-1), B_w1, B_w3, B_w2)
    return h2
```

```python
import hz
HEADER = '.amdgcn_target "amdgcn-amd-amdhsa--gfx950"\n.text\n'

class K:
    def __init__(self, name, grid, block, lds=0, vgpr=256, sgpr=102, accum=None, wg_y=False, hazard=False):
        self.name=name; self.grid=grid; self.block=block; self.lds=lds
        self.vgpr=vgpr; self.sgpr=sgpr; self.accum=accum; self.lines=[]; self.wg_y=wg_y
        self._lab=0; self.hazard=hazard
    def __call__(self, s):
        for l in s.strip("\n").split("\n"):
            l=l.strip()
            if not l: continue
            self.lines.append("    "+l if not l.endswith(":") else l)
    def label(self, base="L"):
        self._lab+=1
        return "%s_%s_%d"%(base,self.name[:2],self._lab)
    def launch_line(self):
        g=self.grid; b=self.block
        return "; @launch kernel=%s grid=(%d,%d,%d) block=(%d,%d,%d) lds=%d"%(self.name,g[0],g[1],g[2],b[0],b[1],b[2],self.lds)
    def text(self, verbose=False):
        lines=self.lines
        if self.hazard:
            lines,n=hz.fix(lines,verbose)
        return ".globl %s\n.p2align 8\n.type %s,@function\n%s:\n"%(self.name,self.name,self.name)+"\n".join(lines)+"\n"
    def desc(self):
        acc=self.accum if self.accum is not None else min(256,(self.vgpr+3)//4*4)
        s=".amdhsa_kernel %s\n"%self.name
        s+="  .amdhsa_next_free_vgpr %d\n  .amdhsa_next_free_sgpr %d\n  .amdhsa_accum_offset %d\n"%(self.vgpr,self.sgpr,acc)
        s+="  .amdhsa_group_segment_fixed_size 0\n  .amdhsa_kernarg_size 128\n  .amdhsa_user_sgpr_count 2\n  .amdhsa_user_sgpr_kernarg_segment_ptr 1\n  .amdhsa_system_sgpr_workgroup_id_x 1\n"
        if self.wg_y: s+="  .amdhsa_system_sgpr_workgroup_id_y 1\n"
        s+="  .amdhsa_float_denorm_mode_32 3\n"
        s+=".end_amdhsa_kernel\n"
        return s

def emit(kernels, launches=None, comment="", verbose=False):
    launches = launches or kernels
    s = comment
    for k in launches: s += k.launch_line()+"\n"
    s += HEADER
    for k in kernels: s += k.text(verbose)
    s += '.section .rodata,"a"\n'
    for k in kernels: s += ".p2align 6\n"+k.desc()
    return s

def vr(a,n=1): return "v%d"%a if n==1 else "v[%d:%d]"%(a,a+n-1)
def ar(a,n=1): return "a%d"%a if n==1 else "a[%d:%d]"%(a,a+n-1)
def sr(a,n=1): return "s%d"%a if n==1 else "s[%d:%d]"%(a,a+n-1)

def merge(*streams):
    streams=[list(s) for s in streams if s]
    tot=sum(len(s) for s in streams); pos=[0]*len(streams); out=[]
    for _ in range(tot):
        best=None;bv=None
        for i,s in enumerate(streams):
            if pos[i]<len(s):
                v=(pos[i]+0.5)/len(s)
                if bv is None or v<bv: bv=v;best=i
        out.append(streams[best][pos[best]]); pos[best]+=1
    return out

def stamp(k, slot, sreg_ws, idx, tmp_s=90, tmp_v=250):
    pass
```

```python
from ag import *
def gate():
    g=K("gate_kernel",(1,1,1),(64,1,1),0,vgpr=32,sgpr=32)
    g("""
    s_memrealtime s[8:9]
    s_waitcnt lgkmcnt(0)
Lg:
    s_memrealtime s[10:11]
    s_waitcnt lgkmcnt(0)
    s_sub_u32 s12, s10, s8
    s_cmp_lt_u32 s12, 20000
    s_cbranch_scc1 Lg
    s_endpgm
""")
    return g
def scrub():
    k=K("scrub_kernel",(512,1,1),(256,1,1),0,vgpr=32,sgpr=32)
    k(".rept 20000\nv_add_u32 v1, 0x12345, v1\n.endr\ns_endpgm")
    return k
```

```python
import re
REG = re.compile(r'(?<![\w.])([vas])(\d+)(?![\w\[])|(?<![\w.])([vas])\[(\d+):(\d+)\]|(?<![\w.])(vcc|exec|m0|scc)(?:_lo|_hi)?(?![\w])')
TRANS = ("v_exp_f32","v_log_f32","v_rcp_f32","v_rsq_f32","v_sqrt_f32","v_sin_f32","v_cos_f32","v_rcp_iflag_f32")
def regs(tok):
    out=set()
    for m in REG.finditer(tok):
        if m.group(1): out.add((m.group(1),int(m.group(2))))
        elif m.group(3):
            for i in range(int(m.group(4)),int(m.group(5))+1): out.add((m.group(3),i))
        else: out.add((m.group(6),0))
    return out
class I:
    def __init__(s,text):
        s.text=text
        t=text.split(";")[0].split("//")[0].strip()
        s.label=t[:-1] if t.endswith(":") else None
        s.dir=t.startswith(".") or t==""
        s.mn=""; s.ops=[]
        s.defs=set(); s.uses=set()
        if s.label or s.dir: return
        p=t.split(None,1); s.mn=p[0]
        rest=p[1] if len(p)>1 else ""
        ops=[];cur="";d=0
        for ch in rest:
            if ch in "[(": d+=1
            if ch in "])": d-=1
            if ch=="," and d==0: ops.append(cur.strip());cur=""
            else: cur+=ch
        if cur.strip(): ops.append(cur.strip())
        s.ops=ops
        mn=s.mn
        for suf in ("_e32","_e64","_dpp","_sdwa"):
            if mn.endswith(suf): mn=mn[:-len(suf)]
        s.base=mn
        s.mfma=mn.startswith("v_mfma")
        s.valu=mn.startswith("v_") and not s.mfma
        s.salu=mn.startswith("s_") and not mn.startswith(("s_load","s_buffer_load","s_waitcnt","s_nop","s_barrier","s_endpgm","s_branch","s_cbranch","s_sleep","s_setprio","s_memtime","s_memrealtime","s_atomic"))
        s.vmem=mn.startswith(("buffer_","global_","flat_","scratch_"))
        s.ds=mn.startswith("ds_")
        s.trans=mn in TRANS
        s.dpp=("_dpp" in s.mn) or any(x in rest for x in ("row_shr","row_shl","row_ror","wave_sh","wave_ro","row_bcast","row_mirror","row_half_mirror","quad_perm","row_newbcast"))
        s.permlane=mn.startswith("v_permlane")
        s.readlane=mn in("v_readlane_b32","v_readfirstlane_b32")
        s.branch=mn.startswith(("s_branch","s_cbranch"))
        s.lds_dma=s.vmem and (" lds" in " "+rest or "load_lds" in mn)
        R=[regs(o) for o in ops]
        if s.mfma:
            s.defs=R[0]; s.A=R[1]; s.B=R[2]; s.C=R[3] if len(R)>3 else set(); s.uses=s.A|s.B|s.C
            s.passes=8 if "32x32x16" in mn or "32x32x8" in mn else 4 if "16x16x32" in mn or "16x16x16" in mn else 16
        elif s.valu:
            if mn.startswith("v_cmp"):
                s.defs=set(R[0]); s.uses=set().union(*R[1:]) if len(R)>1 else set()
                if mn.startswith("v_cmpx"): s.defs.add(("exec",0))
            elif s.permlane and "swap" in mn:
                s.defs=R[0]|R[1]; s.uses=R[0]|R[1]
            elif mn in("v_add_co_u32","v_sub_co_u32","v_addc_co_u32","v_subb_co_u32","v_subrev_co_u32","v_mad_u64_u32","v_div_scale_f32"):
                s.defs=R[0]|R[1]; s.uses=set().union(*R[2:])
            else:
                s.defs=set(R[0]); s.uses=set().union(*R[1:]) if len(R)>1 else set()
                if mn in("v_fmac_f32","v_dot2c_f32_bf16","v_pk_fmac_f16","v_writelane_b32") or s.dpp: s.uses|=R[0]
        elif s.vmem:
            allr=set().union(*R) if R else set()
            if "store" in mn or (("atomic" in mn)):
                s.uses=allr
                if "atomic" in mn and ("sc0" in rest): s.defs=set(R[0])
                s.wide=("x3" in mn or "x4" in mn)
                s.sdata=(R[0] if mn.startswith("buffer") else R[1])
            elif s.lds_dma:
                s.uses=allr|{("m0",0)}
            elif mn in ("buffer_inv","buffer_wbl2"):
                pass
            else:
                s.defs=set(R[0]); s.uses=set().union(*R[1:])
                if "d16" in mn: s.uses|=R[0]
        elif s.ds:
            if mn.startswith(("ds_read","ds_bpermute","ds_permute","ds_swizzle")):
                s.defs=set(R[0]); s.uses=set().union(*R[1:]) if len(R)>1 else set()
                if "d16" in mn: s.uses|=R[0]
            else:
                s.uses=set().union(*R) if R else set()
            if "addtid" in mn: s.uses|={("m0",0)}
        elif mn.startswith("s_"):
            if mn.startswith(("s_cmp","s_bitcmp")): s.uses=set().union(*R) if R else set()
            elif s.branch or mn in("s_waitcnt","s_nop","s_barrier","s_endpgm","s_sleep","s_setprio"):
                if "vcc" in mn: s.uses={("vcc",0)}
            else:
                s.defs=set(R[0]) if R else set(); s.uses=set().union(*R[1:]) if len(R)>1 else set()
                if "saveexec" in mn: s.defs|={("exec",0)}
    def states(s):
        if s.label or s.dir: return 0
        if s.mn=="s_nop": return int(s.ops[0],0)+1
        return 1
def vg(x): return {r for r in x if r[0] in "va"}
def sg(x): return {r for r in x if r[0]=="s" or r[0]=="vcc"}
def need(p,c):
    n=0
    if p.label or p.dir: return 0
    if p.valu:
        dv=vg(p.defs); dsg=sg(p.defs)
        if c.mfma and dv&c.uses: n=max(n,2)
        if c.valu:
            if c.dpp and dv&c.uses: n=max(n,2)
            if c.permlane and dv&c.uses: n=max(n,2)
            if c.readlane and dv&c.uses: n=max(n,1)
            if p.trans and not c.trans and dv&c.uses: n=max(n,1)
            if dsg&c.uses:
                n=max(n,2)
                if c.base in("v_readlane_b32","v_writelane_b32") and dsg&regs(c.ops[-1]): n=max(n,4)
                if c.base=="v_div_fmas_f32": n=max(n,4)
            if c.base=="v_div_fmas_f32" and ("vcc",0) in dsg: n=max(n,4)
            if ("exec",0) in p.defs:
                if c.dpp: n=max(n,5)
                if c.readlane or c.permlane or c.base=="v_writelane_b32": n=max(n,4)
            if ("op_sel" in p.text and not p.base.startswith("v_pk") and not p.base.startswith("v_dot")) or "dst_sel" in p.text:
                if dv&(c.uses|c.defs): n=max(n,1)
        if c.mfma and ("exec",0) in p.defs: n=max(n,4)
        if c.vmem and dsg&c.uses: n=max(n,5)
        if p.trans and (c.vmem or c.ds) and dv&c.uses: n=max(n,1)
        if p.base.startswith("v_dot2"):
            if dv&(c.uses|c.defs) and (c.valu or c.mfma or c.vmem or c.ds):
                if c.base==p.base:
                    srcAB=set().union(*[regs(o) for o in c.ops[1:3]])
                    if dv&srcAB: n=max(n,3)
                else: n=max(n,3)
        if c.branch and ("vcc",0) in c.uses and ("vcc",0) in dsg: n=max(n,0)
        if c.salu and dsg&c.uses: n=max(n,1)
    if p.mfma:
        D=p.defs; P=p.passes
        t={4:8,8:12,16:20}[P]
        if c.mfma:
            if D&(c.A|c.B): n=max(n,t)
            if D&c.C:
                if D==c.C and c.passes==P: pass
                else: n=max(n,{4:6,8:10,16:18}[P])
            elif D&c.defs and not (D==c.defs): n=max(n,t)
        elif c.valu or c.vmem or c.ds:
            if D&(c.uses|c.defs): n=max(n,t)
        if c.valu and p.C&c.defs: n=max(n,{4:3,8:7,16:15}[P])
    if p.salu and ("m0",0) in p.defs and ("m0",0) in c.uses and (c.vmem or c.ds): n=max(n,1)
    if p.vmem and getattr(p,"wide",False) and "store" in p.base:
        if c.valu and p.sdata&c.defs: n=max(n,2)
        elif (c.mfma or c.ds or c.vmem) and p.sdata&c.defs: n=max(n,1)
    return n
def fix(lines, verbose=False):
    ins=[I(l) for l in lines]
    changed=True; total=0
    while changed:
        changed=False
        lab={x.label:i for i,x in enumerate(ins) if x.label}
        brs={}
        for i,x in enumerate(ins):
            if not(x.label or x.dir) and x.branch:
                brs.setdefault(lab[x.ops[0]],[]).append(i)
        def preds(i):
            out=[]
            if i>0:
                q=ins[i-1]
                if q.label or q.dir or q.mn not in("s_branch","s_endpgm"): out.append(i-1)
            out+=brs.get(i,[])
            return out
        for i,c in enumerate(ins):
            if c.label or c.dir or c.mn in("s_nop","s_waitcnt","s_barrier"): continue
            worst=0
            st=[(j,0) for j in preds(i)]; seen={}
            while st:
                j,d=st.pop()
                if d>=21 or seen.get(j,99)<=d: continue
                seen[j]=d
                p=ins[j]
                n=need(p,c)
                if n-d>worst: worst=n-d; why=p
                for q in preds(j): st.append((q,d+p.states()))
            if worst>0:
                if verbose: print("nop %d before '%s' (after '%s')"%(worst,c.text.strip(),why.text.strip()))
                k=worst; new=[]
                while k>0:
                    m=min(k,16); new.append(I("    s_nop %d"%(m-1))); k-=m
                ins[i:i]=new; total+=1; changed=True
                break
    return [x.text for x in ins], total
```

```python
from ag import *
from common import *
import math
STG=14416; KC=57664; KCS=8320; UB=90944; US=4608; ZB=109376; LDS1=142144

def cmul(dst,x,m,t):
    return [f"v_pk_mul_f32 {vr(t,2)}, {vr(x,2)}, {vr(m,2)} op_sel:[0,0] op_sel_hi:[0,1]",
            f"v_pk_fma_f32 {vr(dst,2)}, {vr(x,2)}, {vr(m,2)}, {vr(t,2)} op_sel:[1,1,0] op_sel_hi:[1,0,1] neg_lo:[1,0,0]"]
def put(row,x,c,neg):
    n="-" if neg else ""
    return [f"v_cvt_pk_bf16_f32 v{c}, v{x}, {n}v{x+1}", f"ds_write_addtid_b32 v{c} offset:{row*272}"]

class Stamps:
    def __init__(s,k,on,base=80): s.k=k;s.on=on;s.n=0;s.base=base
    def __call__(s,cyc=False):
        if s.on:
            s.k(f"{'s_memtime' if cyc else 's_memrealtime'} s[{s.base+2*s.n}:{s.base+2*s.n+1}]"); s.n+=1
    def flush(s,ws,slot):
        if not s.on: return
        k=s.k; L=k.label("st")
        k("s_waitcnt lgkmcnt(0)")
        k(f"s_lshl_b32 s78, s2, 8\ns_lshl_b32 s79, s3, 6\ns_add_u32 s78, s78, s79\ns_add_u32 s78, s78, {WS_STAMP+slot*65536}\nv_mov_b32 v250, s78\ns_mov_b64 exec, 1")
        for i in range(s.n): k(f"v_mov_b32 v251, s{s.base+2*i}\nglobal_store_dword v250, v251, {ws} offset:{4*i}")
        k("s_mov_b64 exec, -1")

def reduce32(k, regs, tmp):
    for m in ("quad_perm:[1,0,3,2]","quad_perm:[2,3,0,1]","row_half_mirror","row_mirror"):
        for r in regs: k(f"v_add_f32_dpp v{r}, v{r}, v{r} {m} row_mask:0xf bank_mask:0xf")
    for r,t in zip(regs,tmp): k(f"v_mov_b32 v{t}, v{r}")
    for r,t in zip(regs,tmp): k(f"v_permlane16_swap_b32 v{r}, v{t}")
    for r,t in zip(regs,tmp): k(f"v_add_f32 v{r}, v{r}, v{t}")

def ln_finalize(k, s1, s2, t, mean_out, sd_out):
    k(f"""
    v_mul_f32 v{s1}, {f2u(1/640.)}, v{s1}
    v_mul_f32 v{s2}, {f2u(1/640.)}, v{s2}
    v_fma_f32 v{s2}, -v{s1}, v{s1}, v{s2}
    v_max_f32 v{s2}, 0, v{s2}
    v_cvt_pk_bf16_f32 v{t}, v{s1}, v{s2}
    v_lshlrev_b32 v{mean_out}, 16, v{t}
    v_and_b32 v{t}, 0xffff0000, v{t}
    v_add_f32 v{t}, {f2u(1e-5)}, v{t}
    v_cvt_pk_bf16_f32 v{t}, v{t}, v{t}
    v_and_b32 v{t}, 0xffff0000, v{t}
    v_sqrt_f32 v{t}, v{t}
    v_cvt_pk_bf16_f32 v{t}, v{t}, v{t}
    v_and_b32 v{sd_out}, 0xffff0000, v{t}
    """)

def gen_k1(diag=False, st_sc="", pf_w2=True, dump=False):
    k=K("ssm_kernel",(256,1,1),(256,1,1),LDS1,vgpr=256,sgpr=102,hazard=True)
    T=Stamps(k,diag)
    X="s[16:17]"; PTR=["s[18:19]","s[20:21]","s[22:23]","s[24:25]","s[26:27]","s[28:29]"]; LDT="s[30:31]"
    DSK="s[32:33]"; DBG="s[40:41]"; WS="s[42:43]"
    T()
    k(f"""
    s_cmp_ge_u32 s2, 256
    s_cbranch_scc1 L1_end
    s_load_dwordx16 s[16:31], s[0:1], 0
    s_load_dwordx4 s[40:43], s[0:1], 112
    s_load_dwordx2 s[32:33], s[0:1], 64
    s_load_dwordx4 s[36:39], s[0:1], 80
    s_load_dwordx2 s[34:35], s[0:1], 96
    s_memrealtime s[46:47]
    v_and_b32 v1, 63, v0
    v_lshrrev_b32 v2, 6, v0
    v_readfirstlane_b32 s3, v2
    s_cmp_ge_u32 s2, 160
    s_cbranch_scc1 L1_spare
    s_and_b32 s4, s2, 7
    s_mul_i32 s4, s4, 80
    s_lshr_b32 s5, s2, 3
    s_lshl_b32 s5, s5, 2
    s_add_u32 s4, s4, s5
    s_add_u32 s5, s4, s3
    s_mul_i32 s6, s5, 384
    v_lshl_add_u32 v2, v1, 1, s6
    s_lshl_b32 s7, s5, 1
    v_mov_b32 v3, s7
    s_lshl_b32 s8, s4, 1
    v_mul_u32_u24 v4, 10240, v0
    v_add_u32 v4, s8, v4
    v_add_u32 v5, 5120, v4
    """)
    for r in list(range(16,34))+[50]: k(f"v_mov_b32 v{r}, 0")
    k(f"""
    s_or_b32 s9, s2, s3
    s_cmp_lg_u32 s9, 0
    s_waitcnt lgkmcnt(0)
    s_cbranch_scc1 L1_nononce
    s_or_b32 s46, s46, 1
    v_mov_b32 v6, s46
    v_mov_b32 v7, 0
    s_mov_b64 exec, 1
    global_store_dword v7, v6, {DBG} sc1
    s_mov_b64 exec, -1
L1_nononce:
    global_load_short_d16_hi v50, v3, {LDT}
    """)
    for c in range(3):
        for j in range(6): k(f"global_load_short_d16_hi v{16+6*c+j}, v2, {PTR[j]} offset:{128*c}")
    for i in range(8): k(f"global_load_dwordx2 {vr(34+2*i,2)}, v{4+(i>>2)}, {X} offset:{1280*(i&3)}")
    k(f"s_load_dwordx2 s[44:45], {DSK}, s8")
    T()
    k(f"""
    s_mul_i32 s10, s3, {STG}
    s_mov_b32 m0, s10
    s_mul_i32 s11, s3, {KCS}
    s_add_u32 s11, s11, {KC}
    s_mul_i32 s12, s3, {US}
    s_add_u32 s12, s12, {UB}
    """)
    for r in range(112,192): k(f"v_mov_b32 v{r}, 0")
    k(f"""
    v_lshl_add_u32 v6, v1, 3, s12
    ds_write_b64 v6, v[112:113]
    v_and_b32 v6, 3, v1
    v_lshl_add_u32 v6, v6, 3, s11
    ds_write_b64 v6, v[112:113]
    ds_write_b64 v6, v[112:113] offset:4160
    v_mov_b32 v6, 0x3f80
    ds_write_addtid_b32 v6 offset:{21*272}
    v_and_b32 v9, 31, v1
    v_lshrrev_b32 v10, 5, v1
    v_mul_u32_u24 v8, 272, v9
    v_lshl_add_u32 v8, v10, 4, v8
    v_add_u32 v8, s10, v8
    v_lshlrev_b32 v11, 4, v9
    v_lshl_add_u32 v11, v10, 3, v11
    v_add_u32 v11, s10, v11
    v_cmp_gt_u32 vcc, 32, v1
    v_lshlrev_b32 v12, 2, v9
    v_lshlrev_b32 v13, 3, v9
    v_add_u32 v14, 768, v12
    v_add_u32 v15, 512, v13
    v_cndmask_b32 v6, v14, v15, vcc
    v_add_u32 v14, 896, v12
    v_add_u32 v15, 516, v13
    v_cndmask_b32 v7, v14, v15, vcc
    v_add_u32 v12, s10, v6
    v_add_u32 v13, s10, v7
    v_lshlrev_b32 v14, 1, v9
    v_lshl_add_u32 v14, v10, 8, v14
    v_add_u32 v14, s10, v14
    v_lshlrev_b32 v6, 4, v1
    v_lshlrev_b32 v7, 3, v1
    v_add_u32 v7, 256, v7
    v_cndmask_b32 v15, v7, v6, vcc
    v_add_u32 v15, s10, v15
    v_lshl_add_u32 v102, v1, 2, s10
    v_lshl_add_u32 v103, v1, 1, s10
    v_lshl_add_u32 v104, v1, 4, s11
    v_and_b32 v6, 1, v1
    v_cmp_eq_u32 vcc, 0, v6
    v_mov_b32 v6, 0x03020302
    v_mov_b32 v7, 0x03020100
    v_cndmask_b32 v105, v6, v7, vcc
    v_mov_b32 v6, 0x01000100
    v_cndmask_b32 v106, v7, v6, vcc
    v_and_b32 v6, 15, v1
    v_bfe_u32 v7, v1, 4, 1
    v_lshlrev_b32 v9, 5, v10
    v_lshl_add_u32 v224, v6, 1, v9
    v_lshlrev_b32 v9, 4, v7
    v_sub_u32 v224, v224, v9
    v_mov_b32 v9, {32-14}
    v_mov_b32 v225, {32-14+4160-2}
    v_cndmask_b32 v9, v9, v225, vcc
    v_add3_u32 v224, v224, v9, s11
    v_add_u32 v225, 1024, v224
    v_add_u32 v226, 2048, v224
    v_add_u32 v227, 3072, v224
    v_sub_u32 v9, v6, v10
    v_lshlrev_b32 v9, 5, v9
    v_lshl_add_u32 v9, v7, 4, v9
    s_add_u32 s13, s12, {512-64}
    v_add_u32 v228, s13, v9
    v_lshrrev_b32 v9, 4, v1
    v_lshlrev_b32 v229, 6, v6
    v_lshl_add_u32 v229, v9, 4, v229
    s_lshl_b32 s13, s3, 13
    s_add_u32 s13, s13, {ZB}
    v_add_u32 v229, s13, v229
    v_lshlrev_b32 v230, 5, v6
    v_lshl_add_u32 v230, v9, 3, v230
    s_lshl_b32 s13, s5, 12
    s_add_u32 s13, s13, {WS_HT}
    v_add_u32 v230, s13, v230
    v_lshlrev_b32 v231, 6, v0
    v_lshlrev_b32 v232, 4, v0
    v_add_u32 v232, {UB+512}, v232
    v_lshlrev_b32 v233, 5, v0
    v_add_u32 v233, {ZB}, v233
    v_mov_b32 v234, 0
    """)
    l2e_hi=f2u(math.log2(math.e)); import struct
    l2e_f=struct.unpack("<f",struct.pack("<I",l2e_hi))[0]; l2e_lo=f2u(math.log2(math.e)-l2e_f)
    k(f"""
    s_mov_b32 s14, {l2e_hi}
    s_mov_b32 s15, {l2e_lo}
    s_waitcnt vmcnt(26)
    v_mul_f32 v51, s14, v50
    v_fma_f32 v52, v50, s14, -v51
    v_fma_f32 v52, v50, s15, v52
    v_exp_f32 v51, v51
    v_mul_f32 v52, {f2u(math.log(2))}, v52
    v_fma_f32 v51, v51, v52, v51
    v_cvt_pk_bf16_f32 v51, v51, v51
    v_and_b32 v54, 0xffff0000, v51
    v_mul_f32 v52, s14, v54
    v_mul_f32 v53, {f2u(1/(2*math.pi))}, v54
    s_mov_b32 s14, 0
    s_waitcnt vmcnt(8)
    """)
    T()
    k("L1_kg:")
    pre=[f"v_pk_mul_f32 v[56:57], v[16:17], v[52:53]"]
    def cexp(dst,scale,ta,tb):
        o=[]
        if scale!=1:
            o+=[f"v_mul_f32 v{ta}, {f2u(scale)}, v56", f"v_mul_f32 v{tb}, {f2u(scale)}, v57"]
            a,b=ta,tb
        else: a,b=56,57
        o+=[f"v_fract_f32 v{tb}, v{b}", f"v_exp_f32 v{ta}, v{a}", f"v_cos_f32 v{dst}, v{tb}", f"v_sin_f32 v{dst+1}, v{tb}",
            f"v_pk_mul_f32 {vr(dst,2)}, {vr(dst,2)}, {vr(ta,2)} op_sel:[0,0] op_sel_hi:[1,0]"]
        return o
    Z1,Z8,Q,Z16=58,60,62,64
    W=cmul(66,20,18,70)+[f"v_pk_mul_f32 v[66:67], v[66:67], v[54:55] op_sel:[0,0] op_sel_hi:[1,0]"]
    mf=[f"v_mfma_f32_32x32x16_bf16 v[112:127], {vr(128+8*i,4)}, {vr(132+8*i,4)}, v[112:127]" for i in range(8)]
    head=pre+merge(cexp(Z8,8.,82,83),cexp(Q,256.,86,87),cexp(Z1,1,90,91),W)
    rot=["v_mov_b64 v[16:17], v[22:23]","v_mov_b64 v[18:19], v[24:25]","v_mov_b64 v[20:21], v[26:27]","v_mov_b64 v[22:23], v[28:29]","v_mov_b64 v[24:25], v[30:31]","v_mov_b64 v[26:27], v[32:33]"]
    A=put(0,66,94,True)+cmul(68,66,Q,70)+put(8,68,94,True)
    for row in (12,14,16,17,18,19,20): A+=cmul(68,68,Q,70)+put(row,68,94,True)
    B=cmul(72,66,Z1,80)+put(1,72,95,True)
    for b in range(2,8):
        B+=cmul(72,72,Z1,80)+put(b,72,95,True)
        if b==2: B+=cmul(76,72,Q,78)+put(9,76,96,True)
        if b==4: B+=cmul(76,72,Q,78)+put(10,76,96,True)+cmul(76,76,Q,78)+put(13,76,96,True)+cmul(76,76,Q,78)+put(15,76,96,True)
        if b==6: B+=cmul(76,72,Q,78)+put(11,76,96,True)
    E=put(23,Z16,97,False)+cmul(82,Z16,Z16,86)+put(25,82,97,False)
    for j in range(6,32,2): E+=cmul(82,82,Z16,86)+put(21+j,82,97,False)
    O=put(22,Z8,98,False)+cmul(88,Z8,Z16,92)+put(24,88,98,False)
    for j in range(5,32,2): O+=cmul(88,88,Z16,92)+put(21+j,88,98,False)
    body=head+cmul(Z16,Z8,Z8,92)+merge(A,B,E,O,rot)
    out=[];mi=0
    for i,x in enumerate(body):
        out.append(x)
        if i%8==3 and mi<8: out.append(mf[mi]); mi+=1
    for x in out: k(x)
    k("s_waitcnt lgkmcnt(0)")
    for i in range(8):
        k(f"ds_read_b128 {vr(128+8*i,4)}, v8 offset:{32*i}\nds_read_b128 {vr(132+8*i,4)}, v8 offset:{32*i+21*272}")
    k(f"""
    s_add_u32 s14, s14, 1
    s_cmp_lt_u32 s14, 3
    s_waitcnt lgkmcnt(0)
    s_cbranch_scc1 L1_kg
    """)
    T()
    def stats_loads():
        for j in range(4): k(f"global_load_dwordx4 {vr(64+4*j,4)}, v231, {WS} offset:{16*j} sc1")
        k(f"global_load_dword v80, v234, {DBG} sc1")
    stats_loads()
    for x in mf: k(x)
    for i in range(6): k(f"v_cvt_pk_bf16_f32 v{128+i}, v{112+2*i}, v{113+2*i}")
    k(f"""
    ds_write_b64 v11, v[128:129]
    ds_write_b32 v12, v130
    ds_write_b32 v13, v131
    ds_write_b16 v14, v132 offset:1024
    ds_write_b16_d16_hi v14, v132 offset:1088
    ds_write_b16 v14, v133 offset:1152
    ds_write_b16_d16_hi v14, v133 offset:1216
    s_waitcnt lgkmcnt(0)
    ds_read_b64 v[136:137], v15
    ds_read_b64 v[138:139], v15 offset:8
    ds_read_b32 v140, v15 offset:16
    ds_read2_b32 v[142:143], v102 offset0:192 offset1:193
    ds_read_u16 v144, v103 offset:1024
    ds_read_u16 v145, v103 offset:1152
    ds_read_u16_d16_hi v146, v103 offset:1026
    ds_read_u16_d16_hi v147, v103 offset:1154
    s_mov_b32 s48, 0x01000100
    s_mov_b32 s49, 0x03020302
    s_mov_b32 s51, 0x07060100
    s_waitcnt lgkmcnt(5)
    v_mov_b64 v[148:149], v[136:137]
    v_mov_b64 v[150:151], v[138:139]
    v_alignbit_b32 v152, v137, v136, 16
    v_alignbit_b32 v153, v138, v137, 16
    v_alignbit_b32 v154, v139, v138, 16
    v_alignbit_b32 v155, v140, v139, 16
    s_mov_b32 exec_lo, 0
    v_perm_b32 v148, v136, v136, s48
    v_mov_b32 v149, v152
    v_perm_b32 v150, v137, v137, s48
    v_mov_b32 v151, v153
    v_mov_b32 v152, v136
    v_mov_b32 v153, v150
    v_mov_b32 v154, v137
    v_perm_b32 v155, v138, v138, s48
    s_mov_b32 exec_lo, -1
    ds_write_b128 v104, v[148:151] offset:32
    ds_write_b128 v104, v[152:155] offset:{32+4160}
    ds_write_b16 v104, v136 offset:{32+4160-2}
    s_waitcnt lgkmcnt(7)
    v_perm_b32 v156, v142, v142, s48
    v_mov_b32 v157, v142
    v_perm_b32 v158, v142, v142, s49
    v_perm_b32 v159, v143, v143, s48
    v_mov_b32 v160, v156
    v_mov_b32 v161, v158
    v_alignbit_b32 v162, v143, v142, 16
    v_mov_b32 v163, v159
    ds_write_b128 v104, v[156:159] offset:{32+1024}
    ds_write_b128 v104, v[160:163] offset:{32+4160+1024}
    s_waitcnt lgkmcnt(5)
    v_perm_b32 v144, v146, v144, s51
    v_perm_b32 v145, v147, v145, s51
    """)
    for q,src,b in ((2,144,164),(3,145,172)):
        k(f"""
        v_perm_b32 v{b}, v{src}, v{src}, s48
        v_perm_b32 v{b+3}, v{src}, v{src}, s49
        v_perm_b32 v{b+2}, v{src}, v{src}, v105
        v_mov_b32 v{b+1}, v{b}
        v_mov_b32 v{b+4}, v{b}
        v_perm_b32 v{b+5}, v{src}, v{src}, v106
        v_mov_b32 v{b+6}, v{b+3}
        v_mov_b32 v{b+7}, v{b+3}
        ds_write_b128 v104, {vr(b,4)} offset:{32+1024*q}
        ds_write_b128 v104, {vr(b+4,4)} offset:{32+4160+1024*q}
        """)
    T()
    XB=192
    k("s_waitcnt vmcnt(5)")
    for i in range(8):
        k(f"""
        v_lshlrev_b32 v{XB+i}, 16, v{34+2*i}
        v_and_b32 v{XB+8+i}, 0xffff0000, v{34+2*i}
        v_lshlrev_b32 v{XB+16+i}, 16, v{35+2*i}
        v_and_b32 v{XB+24+i}, 0xffff0000, v{35+2*i}
        """)
    k(f"""
    s_lshl_b32 s52, s44, 16
    s_and_b32 s54, s44, 0xffff0000
    s_lshl_b32 s56, s45, 16
    s_and_b32 s58, s45, 0xffff0000
L1_poll:
    s_waitcnt vmcnt(0)
    v_cmp_ne_u32 vcc, v67, v80
    v_cmp_ne_u32 s[60:61], v71, v80
    v_cmp_ne_u32 s[62:63], v75, v80
    v_cmp_ne_u32 s[64:65], v79, v80
    v_cmp_eq_u32 s[66:67], 0, v80
    s_or_b64 vcc, vcc, s[60:61]
    s_or_b64 s[62:63], s[62:63], s[64:65]
    s_or_b64 vcc, vcc, s[66:67]
    s_or_b64 vcc, vcc, s[62:63]
    s_cbranch_vccz L1_go
    s_sleep 2
    """)
    stats_loads()
    k("s_branch L1_poll\nL1_go:")
    T()
    for j in range(4):
        k(f"""
        v_lshlrev_b32 v{82+2*j}, 16, v{66+4*j}
        v_and_b32 v{83+2*j}, 0xffff0000, v{66+4*j}
        v_pk_mul_f32 {vr(82+2*j,2)}, {vr(82+2*j,2)}, {vr(64+4*j,2)} neg_lo:[1,0] neg_hi:[1,0]
        """)
    UBR=128
    for c in range(4):
        for j in range(4):
            k(f"v_pk_fma_f32 {vr(UBR+8*c+2*j,2)}, {vr(XB+8*c+2*j,2)}, {vr(64+4*j,2)}, {vr(82+2*j,2)}")
        for w in range(4):
            k(f"v_cvt_pk_bf16_f32 v{160+4*c+w}, v{UBR+8*c+7-2*w}, v{UBR+8*c+6-2*w}")
        for j in range(4):
            k(f"v_pk_fma_f32 {vr(XB+8*c+2*j,2)}, {vr(UBR+8*c+2*j,2)}, s[{52+2*c}:{53+2*c}], {vr(XB+8*c+2*j,2)} op_sel:[0,0,0] op_sel_hi:[1,0,1]")
        k(f"""
        ds_write_b128 v232, {vr(160+4*c,4)} offset:{US*c}
        ds_write_b128 v233, {vr(XB+8*c,4)} offset:{8192*c}
        ds_write_b128 v233, {vr(XB+8*c+4,4)} offset:{8192*c+16}
        """)
    k("s_waitcnt lgkmcnt(0)\ns_barrier")
    T()
    if dump:
        k(f"""
        v_lshlrev_b32 v64, 4, v0
        s_mul_i32 s13, s2, 0x30000
        s_add_u32 s13, s13, 0x1000000
        v_add_u32 v65, s13, v64
        s_mov_b32 s13, 0
L1_dump:
        ds_read_b128 v[68:71], v64
        s_waitcnt lgkmcnt(0)
        global_store_dwordx4 v65, v[68:71], {WS}
        v_add_u32 v64, 4096, v64
        v_add_u32 v65, 4096, v65
        s_add_u32 s13, s13, 1
        s_cmp_lt_u32 s13, 34
        s_cbranch_scc1 L1_dump
        """)
    T(True)
    AB=[64,128]; BB=[96,160]; ACC=192
    def loads(buf,second):
        o=[]
        for a in range(8):
            off=(a&1)*128+(16 if second else 0)
            o.append(f"ds_read2_b32 {vr(AB[buf]+4*a,2)}, v{224+(a>>1)} offset0:{off} offset1:{off+1}")
            o.append(f"ds_read2_b32 {vr(AB[buf]+4*a+2,2)}, v{224+(a>>1)} offset0:{off+2} offset1:{off+3}")
            o.append(f"ds_read_b128 {vr(BB[buf]+4*a,4)}, v228 offset:{512*a+(0 if second else 64)}")
        return o
    def mfs(buf):
        return [f"v_mfma_f32_16x16x32_bf16 {vr(ACC+4*c,4)}, {vr(AB[buf]+4*a,4)}, {vr(BB[buf]+4*(c-a),4)}, {vr(ACC+4*c,4)}" for a in range(8) for c in range(a,8)]
    for c in range(8): k(f"ds_read_b128 {vr(ACC+4*c,4)}, v229 offset:{1024*c}")
    for x in loads(0,False): k(x)
    k("s_mov_b32 s14, 0\nL1_cv:\ns_waitcnt lgkmcnt(0)")
    def inter(m,l,extra=[]):
        o=[];li=0
        l=l+extra
        for i,x in enumerate(m):
            o.append(x)
            if li<len(l): o.append(l[li]); li+=1
        return o
    for x in inter(mfs(0),loads(1,True),[f"v_add_u32 v{224+i}, 128, v{224+i}" for i in range(4)]+["v_subrev_u32 v228, 128, v228"]): k(x)
    k("s_waitcnt lgkmcnt(0)")
    for x in inter(mfs(1),loads(0,False),["s_add_u32 s14, s14, 1","s_cmp_lt_u32 s14, 4"]): k(x)
    k("s_cbranch_scc1 L1_cv")
    T(True)
    T()
    for c in range(8):
        k(f"""
        v_cvt_pk_bf16_f32 v{64+2*c}, v{ACC+4*c}, v{ACC+4*c+1}
        v_cvt_pk_bf16_f32 v{65+2*c}, v{ACC+4*c+2}, v{ACC+4*c+3}
        global_store_dwordx2 v230, {vr(64+2*c,2)}, {WS} offset:{512*c} {st_sc}
        """)
    if diag:
        k("s_waitcnt vmcnt(0)"); T(); T.flush(WS,0)
    k("s_endpgm")
    T2=Stamps(k,diag); T2.n=1
    k(f"""
L1_spare:
    s_sub_u32 s4, s2, 160
    s_and_b32 s5, s2, 7
    s_lshr_b32 s6, s4, 3
    ; colsum role: matrix = idx>=6, cg = idx%6 ; col0 = 384*(xcd&3)+64*cg
    s_cmp_ge_u32 s6, 6
    s_cselect_b32 s7, 1, 0
    s_mul_i32 s8, s7, 6
    s_sub_u32 s8, s6, s8
    s_and_b32 s9, s5, 3
    s_mul_i32 s9, s9, 384
    s_lshl_b32 s8, s8, 6
    s_add_u32 s8, s8, s9
    v_lshrrev_b32 v2, 3, v0
    v_mul_u32_u24 v2, 3072, v2
    v_and_b32 v3, 7, v0
    v_lshl_add_u32 v2, v3, 4, v2
    s_lshl_b32 s9, s8, 1
    v_add_u32 v2, s9, v2
    s_mul_i32 s10, s4, 3
    s_add_u32 s10, s10, s3
    v_lshrrev_b32 v4, 5, v1
    v_mul_u32_u24 v4, 1280, v4
    v_and_b32 v5, 31, v1
    v_lshl_add_u32 v4, v5, 3, v4
    s_mul_i32 s11, s10, 10240
    v_add_u32 v4, s11, v4
    v_add_u32 v5, 5120, v4
    v_mov_b32 v6, 0
    s_lshl_b32 s11, s10, 6
    v_lshl_add_u32 v9, v1, 4, s11
    s_mov_b32 s52, 0x3f803f80
    s_mov_b32 s53, 0x00003f80
    s_mov_b32 s54, 0x3f800000
    s_cmp_eq_u32 s7, 1
    s_waitcnt lgkmcnt(0)
    s_cselect_b32 s56, s38, s36
    s_cselect_b32 s57, s39, s37
    s_mov_b32 s58, {640*3072}
    s_mov_b32 s59, 0x20000
    s_cmp_eq_u32 s3, 3
    s_cbranch_scc1 L1_pollw
    s_cmp_ge_u32 s10, 256
    s_cbranch_scc1 L1_wload
    """)
    for p in range(4):
        for i in range(5): k(f"global_load_dwordx2 {vr(16+10*p+2*i,2)}, v{4+(p>>1)}, {X} offset:{2560*(p&1)+256*i}")
    k(f"""
    s_branch L1_wload
L1_pollw:
    global_load_dword v7, v6, {DBG} sc1
    s_waitcnt vmcnt(0)
    v_cmp_eq_u32 vcc, 0, v7
    s_cbranch_vccnz L1_pollw
    ds_write_b32 v6, v7
L1_wload:
    s_mov_b32 s12, 0
    """)
    for i in range(20): k(f"buffer_load_dwordx4 {vr(64+4*i,4)}, v2, s[56:59], s12 offen\ns_add_u32 s12, s12, {32*3072}")
    k(f"""
    s_cmp_eq_u32 s3, 3
    s_cbranch_scc1 L1_bar
    s_cmp_ge_u32 s10, 256
    s_cbranch_scc1 L1_bar
    s_waitcnt vmcnt(20)
    """)
    T2()
    for r in range(160,168): k(f"v_mov_b32 v{r}, 0")
    for i in range(10):
        for p in range(4):
            k(f"v_dot2_f32_bf16 v{160+p}, v{16+10*p+i}, s52, v{160+p}\nv_dot2_f32_bf16 v{164+p}, v{16+10*p+i}, v{16+10*p+i}, v{164+p}")
    reduce32(k,list(range(160,168)),list(range(168,176)))
    k(f"""
    v_and_b32 v8, 3, v1
    v_cmp_eq_u32 vcc, 1, v8
    v_cmp_eq_u32 s[60:61], 2, v8
    v_cmp_eq_u32 s[62:63], 3, v8
    v_cndmask_b32 v160, v160, v161, vcc
    v_cndmask_b32 v164, v164, v165, vcc
    v_cndmask_b32 v160, v160, v162, s[60:61]
    v_cndmask_b32 v164, v164, v166, s[60:61]
    v_cndmask_b32 v160, v160, v163, s[62:63]
    v_cndmask_b32 v164, v164, v167, s[62:63]
    """)
    ln_finalize(k,160,164,168,170,171)
    k(f"""
    v_rcp_f32 v172, v171
    v_mov_b32 v176, v170
    v_mov_b32 v173, v172
    v_permlane32_swap_b32 v170, v176
    v_permlane32_swap_b32 v172, v173
    v_lshrrev_b32 v170, 16, v170
    v_or_b32 v174, v170, v176
L1_bar:
    s_waitcnt lgkmcnt(0)
    s_barrier
    s_cmp_eq_u32 s3, 3
    s_cbranch_scc1 L1_cs
    s_cmp_ge_u32 s10, 256
    s_cbranch_scc1 L1_cs
    ds_read_b32 v175, v6
    s_mov_b64 exec, 15
    s_waitcnt lgkmcnt(0)
    global_store_dwordx4 v9, v[172:175], {WS} sc1
    s_mov_b64 exec, -1
L1_cs:
    """)
    T2()
    if pf_w2:
        k(f"""
        s_and_b32 s12, s5, 1
        s_mul_i32 s12, s12, 640
        s_mul_i32 s13, s6, {128*1280}
        s_add_u32 s12, s12, s13
        s_mov_b32 s14, {(1<<32)//10+1}
        """)
        for i in range(5):
            k(f"""
            v_add_u32 v10, {256*i}, v0
            v_mul_hi_u32 v11, v10, s14
            v_mul_u32_u24 v12, 10, v11
            v_sub_u32 v10, v10, v12
            v_mul_u32_u24 v11, 1280, v11
            v_lshl_add_u32 v10, v10, 6, v11
            v_add_u32 v10, s12, v10
            global_load_dword v{180+i}, v10, s[34:35]
            """)
    for r in range(16,24): k(f"v_mov_b32 v{r}, 0")
    k(f"s_waitcnt vmcnt({5 if pf_w2 else 0})")
    for i in range(20):
        for j in range(4):
            k(f"v_dot2_f32_bf16 v{16+2*j}, v{64+4*i+j}, s53, v{16+2*j}\nv_dot2_f32_bf16 v{17+2*j}, v{64+4*i+j}, s54, v{17+2*j}")
    R=list(range(16,24)); Tm=list(range(24,32))
    for r in R: k(f"v_add_f32_dpp v{r}, v{r}, v{r} row_ror:8 row_mask:0xf bank_mask:0xf")
    for sw in ("16","32"):
        for r,t in zip(R,Tm): k(f"v_mov_b32 v{t}, v{r}")
        for r,t in zip(R,Tm): k(f"v_permlane{sw}_swap_b32 v{r}, v{t}")
        for r,t in zip(R,Tm): k(f"v_add_f32 v{r}, v{r}, v{t}")
    k(f"""
    s_lshl_b32 s12, s3, 8
    s_add_u32 s12, s12, 64
    v_lshl_add_u32 v10, v3, 5, s12
    ds_write_b128 v10, v[16:19]
    ds_write_b128 v10, v[20:23] offset:16
    s_waitcnt lgkmcnt(0)
    s_barrier
    s_cmp_lg_u32 s3, 0
    s_cbranch_scc1 L1_sdone
    s_cmp_ge_u32 s5, 4
    s_cbranch_scc1 L1_sdone
    v_lshlrev_b32 v10, 2, v1
    ds_read_b32 v11, v10 offset:64
    ds_read_b32 v12, v10 offset:320
    ds_read_b32 v13, v10 offset:576
    ds_read_b32 v14, v10 offset:832
    s_mul_i32 s12, s7, 1536
    s_add_u32 s12, s12, s8
    s_lshl_b32 s12, s12, 2
    s_add_u32 s12, s12, {WS_COLSUM}
    v_add_u32 v10, s12, v10
    s_waitcnt lgkmcnt(0)
    v_add_f32 v11, v11, v12
    v_add_f32 v13, v13, v14
    v_add_f32 v11, v11, v13
    global_store_dword v10, v11, {WS}
L1_sdone:
    """)
    if diag:
        k("s_waitcnt vmcnt(0)"); T2(); T2.flush(WS,0)
    k("L1_end:\ns_endpgm")
    return k
if __name__=="__main__":
    import sys
    open("t1.s","w").write(emit([gen_k1(diag=True)],verbose=True))
```

```python
from ag import *
from common import *
from k1 import Stamps, ln_finalize
import math
STAGE=20480; NST=7; LDS2=STAGE*NST
def gen_k2(diag=False, st_sc=""):
    k=K("gemm1_kernel",(256,1,1),(256,1,1),LDS2,vgpr=512,sgpr=102,accum=256,hazard=True)
    T=Stamps(k,diag)
    WS="s[42:43]"
    T()
    k(f"""
    s_cmp_ge_u32 s2, 256
    s_cbranch_scc1 L2_end
    s_load_dwordx4 s[36:39], s[0:1], 80
    s_load_dwordx2 s[42:43], s[0:1], 120
    v_and_b32 v1, 63, v0
    v_lshrrev_b32 v2, 6, v0
    v_readfirstlane_b32 s3, v2
    s_and_b32 s4, s2, 7
    s_lshr_b32 s5, s2, 3
    s_and_b32 s6, s4, 3
    s_lshl_b32 s6, s6, 2
    s_and_b32 s7, s5, 3
    s_add_u32 s6, s6, s7
    s_lshr_b32 s7, s4, 2
    s_lshl_b32 s7, s7, 3
    s_lshr_b32 s5, s5, 2
    s_add_u32 s7, s7, s5
    ; weight DMA offsets v10..v12 : unit u = 12*(w&1) + 4*i + (lane>>4); kappa=u/3, ct=u%3
    v_lshrrev_b32 v3, 4, v1
    s_and_b32 s8, s3, 1
    s_mul_i32 s8, s8, 12
    v_add_u32 v3, s8, v3
    v_bfe_u32 v4, v1, 2, 2
    v_and_b32 v5, 3, v1
    s_mul_i32 s9, s6, 192
    v_lshl_add_u32 v5, v5, 4, s9
    """)
    for i in range(3):
        k(f"""
        v_add_u32 v6, {4*i}, v3
        v_mul_u32_u24 v7, 43, v6
        v_lshrrev_b32 v7, 7, v7
        v_mul_u32_u24 v8, 3, v7
        v_sub_u32 v8, v6, v8
        v_lshl_add_u32 v7, v7, 2, v4
        v_mul_u32_u24 v7, 3072, v7
        v_lshl_add_u32 v7, v8, 6, v7
        v_add_u32 v{10+i}, v7, v5
        """)
    k(f"""
    s_lshl_b32 s8, s3, 3
    v_add_u32 v6, s8, v4
    v_lshlrev_b32 v6, 12, v6
    v_lshrrev_b32 v7, 4, v1
    v_lshl_add_u32 v6, v7, 6, v6
    v_and_b32 v7, 3, v1
    v_lshl_add_u32 v6, v7, 4, v6
    s_lshl_b32 s8, s7, 8
    v_add_u32 v13, s8, v6
    v_add_u32 v14, 16384, v13
    s_lshr_b32 s8, s3, 1
    s_mul_i32 s20, s8, 6144
    s_and_b32 s9, s3, 1
    s_mul_i32 s9, s9, 3072
    s_add_u32 s20, s20, s9
    s_lshl_b32 s23, s3, 11
    s_add_u32 s23, s23, 12288
    s_cmp_eq_u32 s8, 1
    s_waitcnt lgkmcnt(0)
    s_cselect_b32 s48, s38, s36
    s_cselect_b32 s49, s39, s37
    s_mov_b32 s50, {640*3072}
    s_mov_b32 s51, 0x20000
    s_add_u32 s52, s42, {WS_HT}
    s_addc_u32 s53, s43, 0
    s_mov_b32 s54, {640*4096}
    s_mov_b32 s55, 0x20000
    s_mov_b32 s26, 0
    s_mov_b32 s27, 0
    s_mov_b32 s28, 0
    """)
    def dma():
        o=[]
        for i in range(3):
            o+=[f"s_add_u32 s29, s28, s20" if i==0 else "s_add_u32 s29, s29, 1024", "s_mov_b32 m0, s29", f"buffer_load_dwordx4 v{10+i}, s[48:51], s26 offen lds"]
        for e in range(2):
            o+=[f"s_add_u32 s29, s28, s23" if e==0 else "s_add_u32 s29, s29, 1024", "s_mov_b32 m0, s29", f"buffer_load_dwordx4 v{13+e}, s[52:55], s27 offen lds"]
        o+=[f"s_add_u32 s26, s26, {32*3072}", f"s_add_u32 s27, s27, {32*4096}", f"s_add_u32 s28, s28, {STAGE}", f"s_cmp_eq_u32 s28, {LDS2}", "s_cselect_b32 s28, 0, s28"]
        return o
    CS=96
    k(f"""
    v_lshrrev_b32 v2, 5, v1
    s_mul_i32 s8, s6, 384
    s_add_u32 s8, s8, {WS_COLSUM}
    v_lshl_add_u32 v17, v2, 4, s8
    v_add_u32 v19, 6144, v17
    """)
    for t in range(6):
        for q in range(4):
            k(f"global_load_dwordx4 {vr(CS+16*t+4*q,4)}, v{17 if t<3 else 19}, {WS} offset:{(t%3)*128+q*32}")
    k("s_mov_b32 s30, 0\nL2_pro:")
    for x in dma(): k(x)
    k(f"s_add_u32 s30, s30, 1\ns_cmp_lt_u32 s30, {NST-1}\ns_cbranch_scc1 L2_pro")
    T()
    k(f"""
    v_lshrrev_b32 v2, 5, v1
    v_bfe_u32 v3, v1, 4, 1
    v_lshlrev_b32 v4, 6, v4
    v_lshl_add_u32 v4, v3, 5, v4
    v_and_b32 v3, 3, v1
    v_lshl_add_u32 v4, v3, 3, v4
    v_mul_u32_u24 v15, 1536, v2
    v_add_u32 v15, v15, v4
    v_lshl_add_u32 v16, v2, 11, v4
    s_lshl_b32 s8, s3, 8
    s_add_u32 s8, s8, 12288
    v_add_u32 v16, s8, v16
    v_mov_b32 v20, 0
    v_mov_b32 v21, 0
    s_mov_b32 s31, 0x3f803f80
    s_lshl_b32 s8, s7, 3
    s_lshl_b32 s9, s3, 1
    s_add_u32 s8, s8, s9
    s_mul_i32 s8, s8, 48
    s_mul_i32 s9, s6, 3
    s_add_u32 s8, s8, s9
    s_lshl_b32 s8, s8, 10
    s_add_u32 s8, s8, {WS_HID}
    v_bfe_u32 v3, v1, 4, 1
    v_mul_u32_u24 v18, {48*1024}, v3
    v_lshl_add_u32 v18, v2, 8, v18
    v_and_b32 v3, 15, v1
    v_lshl_add_u32 v18, v3, 4, v18
    v_add_u32 v18, s8, v18
    """)
    ACC=0
    for r in range(96): k(f"v_accvgpr_write_b32 a{r}, 0")
    FA=[32,64]
    def reads(buf,kk,va,vb):
        o=[]
        for e in range(2): o.append(f"ds_read_b64_tr_b16 {vr(FA[buf]+24+2*e,2)}, v{vb} offset:{(4*kk+e)*1024}")
        for t in range(6):
            for e in range(2):
                off=(t//3)*6144+((4*kk+e)*3+(t%3))*256
                o.append(f"ds_read_b64_tr_b16 {vr(FA[buf]+4*t+2*e,2)}, v{va} offset:{off}")
        return o
    def mfs(buf): return [f"v_mfma_f32_32x32x16_bf16 {ar(16*t,16)}, {vr(FA[buf]+4*t,4)}, {vr(FA[buf]+24,4)}, {ar(16*t,16)}" for t in range(6)]
    def dots(buf):
        o=[]
        for j in range(4): o+=[f"v_dot2_f32_bf16 v20, v{FA[buf]+24+j}, s31, v20", f"v_dot2_f32_bf16 v21, v{FA[buf]+24+j}, v{FA[buf]+24+j}, v21"]
        return o
    def inter(m,fill):
        o=[];n=len(m);p=0
        for i,x in enumerate(m):
            o.append(x)
            q=(len(fill)*(i+1)+n-1)//n
            o+=fill[p:q]; p=q
        return o
    k(f"""
    s_waitcnt vmcnt({5*(NST-2)})
    s_barrier
    """)
    T()
    k("v_mov_b32 v22, v15\nv_mov_b32 v23, v16")
    for x in reads(0,0,22,23): k(x)
    k(f"s_mov_b32 s33, {STAGE}\ns_mov_b32 s30, 0\nL2_loop:\ns_waitcnt lgkmcnt(0)")
    for x in inter(mfs(0),reads(1,1,22,23)+dots(0)+["v_add_u32 v22, s33, v15","v_add_u32 v23, s33, v16",f"s_add_u32 s33, s33, {STAGE}",f"s_cmp_eq_u32 s33, {LDS2}","s_cselect_b32 s33, 0, s33"]): k(x)
    k(f"s_waitcnt vmcnt({5*(NST-3)}) lgkmcnt(0)\ns_barrier")
    for x in inter(mfs(1),merge(reads(0,0,22,23),dma())+dots(1)): k(x)
    k(f"s_add_u32 s30, s30, 1\ns_cmp_lt_u32 s30, 20\ns_cbranch_scc1 L2_loop")
    T()
    k("""
    v_mov_b32 v26, v20
    v_mov_b32 v27, v21
    v_permlane32_swap_b32 v20, v26
    v_permlane32_swap_b32 v21, v27
    v_add_f32 v20, v20, v26
    v_add_f32 v21, v21, v27
    """)
    ln_finalize(k,20,21,26,28,30)
    k(f"""
    v_rcp_f32 v26, v30
    v_mul_f32 v30, v30, v30
    v_mul_f32 v26, {f2u(-math.log2(math.e))}, v26
    """)
    for i in range(3):
        G=32; U=48; E=64
        for r in range(16): k(f"v_accvgpr_read_b32 v{G+r}, a{16*i+r}\nv_accvgpr_read_b32 v{U+r}, a{48+16*i+r}")
        for p in range(8):
            k(f"v_pk_fma_f32 {vr(G+2*p,2)}, {vr(CS+16*i+2*p,2)}, v[28:29], {vr(G+2*p,2)} op_sel:[0,0,0] op_sel_hi:[1,0,1] neg_lo:[1,0,0] neg_hi:[1,0,0]")
            k(f"v_pk_fma_f32 {vr(U+2*p,2)}, {vr(CS+48+16*i+2*p,2)}, v[28:29], {vr(U+2*p,2)} op_sel:[0,0,0] op_sel_hi:[1,0,1] neg_lo:[1,0,0] neg_hi:[1,0,0]")
        for p in range(8): k(f"v_pk_mul_f32 {vr(E+2*p,2)}, {vr(G+2*p,2)}, v[26:27] op_sel:[0,0] op_sel_hi:[1,0]")
        for r in range(16): k(f"v_exp_f32 v{E+r}, v{E+r}")
        for p in range(8): k(f"v_pk_mul_f32 {vr(G+2*p,2)}, {vr(G+2*p,2)}, {vr(U+2*p,2)}")
        for p in range(8): k(f"v_pk_fma_f32 {vr(E+2*p,2)}, {vr(E+2*p,2)}, v[30:31], v[30:31] op_sel:[0,0,0] op_sel_hi:[1,0,0]")
        for r in range(16): k(f"v_rcp_f32 v{E+r}, v{E+r}")
        for p in range(8): k(f"v_pk_mul_f32 {vr(G+2*p,2)}, {vr(G+2*p,2)}, {vr(E+2*p,2)}")
        O=80+8*(i&1)
        for p in range(8): k(f"v_cvt_pk_bf16_f32 v{O+p}, v{G+2*p}, v{G+2*p+1}")
        for qq in (0,4):
            k(f"v_permlane32_swap_b32 v{O+qq}, v{O+qq+2}\nv_permlane32_swap_b32 v{O+qq+1}, v{O+qq+3}")
            k(f"global_store_dwordx4 v18, {vr(O+qq,4)}, {WS} offset:{1024*i+128*qq} {st_sc}")
    if diag:
        T(); k("s_waitcnt vmcnt(0)"); T(); T.flush(WS,1)
    k("L2_end:\ns_endpgm")
    return k
if __name__=="__main__":
    open("t2.s","w").write(emit([gen_k2(diag=True)],verbose=True))
```

```python
from ag import *
from common import *
from k1 import Stamps
WREG=30720; SLOT=5120; NS=6; RES=4*WREG; LDS3=RES+10240
RSTR=336; RW=64*RSTR
def gen_k3(diag=False, st_sc=""):
    k=K("gemm2_kernel",(256,1,1),(256,1,1),LDS3,vgpr=512,sgpr=102,accum=256,hazard=True)
    T=Stamps(k,diag)
    WS="s[42:43]"
    T()
    k(f"""
    s_cmp_ge_u32 s2, 256
    s_cbranch_scc1 L3_end
    s_load_dwordx4 s[36:39], s[0:1], 96
    s_load_dwordx2 s[42:43], s[0:1], 120
    v_and_b32 v1, 63, v0
    v_lshrrev_b32 v2, 6, v0
    v_readfirstlane_b32 s3, v2
    s_and_b32 s4, s2, 7
    s_lshr_b32 s5, s2, 3
    s_and_b32 s6, s4, 1
    s_lshl_b32 s6, s6, 2
    s_and_b32 s7, s5, 3
    s_add_u32 s6, s6, s7
    s_lshr_b32 s7, s4, 1
    s_lshl_b32 s7, s7, 3
    s_lshr_b32 s5, s5, 2
    s_add_u32 s7, s7, s5
    ; w2 DMA offsets v10..v14: unit u=4i+(lane>>4); P=u/5, dt=u%5; kappa=(P&1)+4*(P>>1)+2b; row=4kappa+r
    v_lshrrev_b32 v3, 4, v1
    v_bfe_u32 v4, v1, 3, 1
    v_bfe_u32 v5, v1, 1, 2
    v_lshl_add_u32 v4, v4, 3, v5
    v_and_b32 v5, 1, v1
    v_lshlrev_b32 v5, 4, v5
    s_mul_i32 s8, s6, 160
    s_mul_i32 s9, s3, {384*1280}
    s_add_u32 s8, s8, s9
    v_add_u32 v5, s8, v5
    """)
    for i in range(5):
        k(f"""
        v_add_u32 v6, {4*i}, v3
        v_mul_u32_u24 v7, 52, v6
        v_lshrrev_b32 v7, 8, v7
        v_mul_u32_u24 v8, 5, v7
        v_sub_u32 v8, v6, v8
        v_and_b32 v9, 1, v7
        v_lshrrev_b32 v7, 1, v7
        v_lshlrev_b32 v7, 4, v7
        v_lshl_add_u32 v7, v9, 2, v7
        v_add_u32 v7, v7, v4
        v_mul_u32_u24 v7, 1280, v7
        v_lshl_add_u32 v7, v8, 5, v7
        v_add_u32 v{10+i}, v7, v5
        """)
    k(f"""
    s_mul_i32 s8, s7, 192
    s_mul_i32 s9, s3, 12
    s_add_u32 s8, s8, s9
    s_lshl_b32 s8, s8, 10
    v_lshl_add_u32 v15, v1, 4, s8
    v_lshrrev_b32 v6, 5, v1
    v_bfe_u32 v7, v1, 1, 2
    v_lshl_add_u32 v6, v6, 2, v7
    v_lshlrev_b32 v6, 12, v6
    v_bfe_u32 v7, v1, 3, 2
    v_lshl_add_u32 v6, v7, 5, v6
    v_and_b32 v7, 1, v1
    v_lshl_add_u32 v6, v7, 4, v6
    s_mul_i32 s8, s6, {80*4096}
    s_lshl_b32 s9, s7, 7
    s_add_u32 s8, s8, s9
    v_add_u32 v16, s8, v6
    s_mul_i32 s20, s3, {WREG}
    s_waitcnt lgkmcnt(0)
    s_mov_b32 s48, s36
    s_mov_b32 s49, s37
    s_mov_b32 s50, {1536*1280}
    s_mov_b32 s51, 0x20000
    s_add_u32 s52, s42, {WS_HID}
    s_addc_u32 s53, s43, 0
    s_mov_b32 s54, {2048*1536*2}
    s_mov_b32 s55, 0x20000
    s_add_u32 s56, s42, {WS_HT}
    s_addc_u32 s57, s43, 0
    s_mov_b32 s58, {640*4096}
    s_mov_b32 s59, 0x20000
    s_mov_b32 s21, 0
    s_mov_b32 s22, {48*1024}
    s_mov_b32 s23, {96*1024}
    s_mov_b32 s24, {144*1024}
    """)
    BF=[160+16*s for s in range(NS)]
    AF=[32,52]
    def issue(s):
        o=[]
        sl=s%NS
        o.append(f"s_mov_b32 s26, {s*32*1280}")
        for i in range(5):
            o+=[f"s_add_u32 s29, s20, {sl*SLOT+i*1024}", "s_mov_b32 m0, s29", f"buffer_load_dwordx4 v{10+i}, s[48:51], s26 offen lds"]
        for tt in range(4):
            o.append(f"buffer_load_dwordx4 {vr(BF[sl]+4*tt,4)}, v{17 if s>=4 and s<8 else 18 if s>=8 else 15}, s[52:55], s{21+tt} offen offset:{(s%4)*1024}")
        return o
    k("v_add_u32 v17, 4096, v15\nv_add_u32 v18, 8192, v15")
    k(f"""
    s_cmp_ge_u32 s3, 2
    s_cbranch_scc1 L3_nores
    s_mul_i32 s27, s3, 5
    s_lshl_b32 s28, s27, 15
    s_lshl_b32 s27, s27, 10
    s_add_u32 s27, s27, {RES}
    """)
    for i in range(5):
        k(f"s_mov_b32 m0, s27\ns_add_u32 s27, s27, 1024\nbuffer_load_dwordx4 v16, s[56:59], s28 offen lds\ns_add_u32 s28, s28, 32768")
    k("L3_nores:")
    for s in range(NS):
        for x in issue(s): k(x)
    T()
    k(f"""
    v_lshrrev_b32 v2, 5, v1
    v_mul_u32_u24 v19, 2560, v2
    v_bfe_u32 v3, v1, 4, 1
    v_lshl_add_u32 v19, v3, 7, v19
    v_and_b32 v3, 15, v1
    v_lshl_add_u32 v19, v3, 3, v19
    v_add_u32 v19, s20, v19
    v_lshrrev_b32 v2, 4, v1
    v_mul_u32_u24 v20, {RSTR}, v3
    v_lshl_add_u32 v20, v2, 4, v20
    s_mul_i32 s8, s3, {16*RSTR}
    v_add_u32 v21, s8, v20
    s_mul_i32 s8, s3, {RW}
    v_add_u32 v20, s8, v20
    v_lshlrev_b32 v22, 9, v2
    v_lshl_add_u32 v22, v3, 3, v22
    s_lshl_b32 s8, s3, 7
    s_add_u32 s8, s8, {RES}
    v_add_u32 v22, s8, v22
    s_lshl_b32 s8, s7, 6
    s_lshl_b32 s9, s3, 4
    s_add_u32 s8, s8, s9
    v_add_u32 v23, s8, v3
    v_mul_u32_u24 v23, 1280, v23
    v_lshl_add_u32 v23, v2, 3, v23
    s_mul_i32 s8, s6, 160
    v_add_u32 v23, s8, v23
    """)
    def areads(s):
        o=[]
        for dt in range(5):
            for e in range(2): o.append(f"ds_read_b64_tr_b16 {vr(AF[s&1]+4*dt+2*e,2)}, v19 offset:{(s%NS)*SLOT+(e*5+dt)*256}")
        return o
    def mfs(s):
        return [f"v_mfma_f32_16x16x32_bf16 {ar(16*dt+4*tt,4)}, {vr(AF[s&1]+4*dt,4)}, {vr(BF[s%NS]+4*tt,4)}, {ar(16*dt+4*tt,4) if s else '0'}" for dt in range(5) for tt in range(4)]
    k(f"s_waitcnt vmcnt({9*(NS-1)})")
    T()
    for x in areads(0): k(x)
    for s in range(12):
        issued=min(12,s+NS)
        fill=[]
        if s+1<12:
            k(f"s_waitcnt vmcnt({9*(issued-(s+2))}) lgkmcnt(0)")
            fill+=areads(s+1)
        else: k("s_waitcnt lgkmcnt(0)")
        m=mfs(s)
        o=[]
        for i,x in enumerate(m):
            o.append(x)
            if i<len(fill): o.append(fill[i])
        for x in o: k(x)
        if s+NS<12:
            for x in issue(s+NS): k(x)
    T()
    k("s_barrier")
    for dt in range(5):
        for tt in range(4): k(f"ds_write_b128 v20, {ar(16*dt+4*tt,4)} offset:{tt*16*RSTR+dt*64}")
    k("s_waitcnt lgkmcnt(0)\ns_barrier")
    for dt in range(5):
        for w in range(4): k(f"ds_read_b128 {vr(32+16*dt+4*w,4)}, v21 offset:{w*RW+dt*64}" if w*RW+dt*64<65536 else f"ds_read_b128 {vr(32+16*dt+4*w,4)}, v24 offset:{w*RW+dt*64-2*RW}")
        k(f"ds_read_b64_tr_b16 {vr(112+2*dt,2)}, v22 offset:{dt*2048}")
    for dt in range(5):
        b=32+16*dt
        k(f"s_waitcnt lgkmcnt({min(15,5*(4-dt))})")
        k(f"""
        v_pk_add_f32 {vr(b,2)}, {vr(b,2)}, {vr(b+4,2)}
        v_pk_add_f32 {vr(b+2,2)}, {vr(b+2,2)}, {vr(b+6,2)}
        v_pk_add_f32 {vr(b+8,2)}, {vr(b+8,2)}, {vr(b+12,2)}
        v_pk_add_f32 {vr(b+10,2)}, {vr(b+10,2)}, {vr(b+14,2)}
        v_lshlrev_b32 v{b+4}, 16, v{112+2*dt}
        v_and_b32 v{b+5}, 0xffff0000, v{112+2*dt}
        v_lshlrev_b32 v{b+6}, 16, v{113+2*dt}
        v_and_b32 v{b+7}, 0xffff0000, v{113+2*dt}
        v_pk_add_f32 {vr(b,2)}, {vr(b,2)}, {vr(b+8,2)}
        v_pk_add_f32 {vr(b+2,2)}, {vr(b+2,2)}, {vr(b+10,2)}
        v_pk_add_f32 {vr(b,2)}, {vr(b,2)}, {vr(b+4,2)}
        v_pk_add_f32 {vr(b+2,2)}, {vr(b+2,2)}, {vr(b+6,2)}
        v_cvt_pk_bf16_f32 v{b}, v{b}, v{b+1}
        v_cvt_pk_bf16_f32 v{b+1}, v{b+2}, v{b+3}
        global_store_dwordx2 v23, {vr(b,2)}, s[38:39] offset:{dt*32} {st_sc}
        """)
    if diag:
        T(); k("s_waitcnt vmcnt(0)"); T(); T.flush(WS,2)
    k("L3_end:\ns_endpgm")
    return k
if __name__=="__main__":
    open("t3.s","w").write(emit([gen_k3(diag=True)],verbose=True))
```

```python
import sys
from ag import *
from gate import *
import k1,k2,k3
HDR=open("sequential_preLN__ssm_conv_s4__glu_gated_swiglu__prompt.s.ref").read().split("; Override launch")[0]
def build(path, diag, extra_empty=0, **kw):
    ks=[k1.gen_k1(diag=diag,later="L3_end",**kw.get("k1",{})),k2.gen_k2(diag=diag,**kw.get("k2",{})),k3.gen_k3(diag=diag,**kw.get("k3",{}))]
    la=list(ks)
    if extra_empty:
        e=K("empty_kernel",(256,1,1),(256,1,1),0,vgpr=8,sgpr=16); e("s_endpgm"); ks.append(e); la+= [e]*extra_empty
    if diag: ks=[gate(),scrub()]+ks; la=ks
    open(path,"w").write(emit(ks,la,comment=HDR))
if __name__=="__main__":
    build("full_diag.s",True)
    build("sequential_preLN__ssm_conv_s4__glu_gated_swiglu__prompt.s",False)
    build("v_empty2.s",False,extra_empty=2)
```

```python
from ag import *
from common import *
from k1 import Stamps, ln_finalize
import math
STAGE=20480; NST=7; LDS2=STAGE*NST
def gen_k2(diag=False, st_sc="", name="gemm1_kernel", slot=1, pfx="L2_"):
    k=K(name,(256,1,1),(256,1,1),LDS2,vgpr=512,sgpr=102,accum=256,hazard=True)
    T=Stamps(k,diag)
    WS="s[42:43]"
    T()
    k(f"""
    s_cmp_ge_u32 s2, 256
    s_cbranch_scc1 L2_end
    s_load_dwordx4 s[36:39], s[0:1], 80
    s_load_dwordx2 s[42:43], s[0:1], 120
    v_and_b32 v1, 63, v0
    v_lshrrev_b32 v2, 6, v0
    v_readfirstlane_b32 s3, v2
    s_and_b32 s4, s2, 7
    s_lshr_b32 s5, s2, 3
    s_and_b32 s6, s4, 3
    s_lshl_b32 s6, s6, 2
    s_and_b32 s7, s5, 3
    s_add_u32 s6, s6, s7
    s_lshr_b32 s7, s4, 2
    s_lshl_b32 s7, s7, 3
    s_lshr_b32 s5, s5, 2
    s_add_u32 s7, s7, s5
    ; weight DMA offsets v10..v12 : unit u = 12*(w&1) + 4*i + (lane>>4); kappa=u/3, ct=u%3
    v_lshrrev_b32 v3, 4, v1
    s_and_b32 s8, s3, 1
    s_mul_i32 s8, s8, 12
    v_add_u32 v3, s8, v3
    v_bfe_u32 v4, v1, 2, 2
    v_and_b32 v5, 3, v1
    s_mul_i32 s9, s6, 192
    v_lshl_add_u32 v5, v5, 4, s9
    """)
    for i in range(3):
        k(f"""
        v_add_u32 v6, {4*i}, v3
        v_mul_u32_u24 v7, 43, v6
        v_lshrrev_b32 v7, 7, v7
        v_mul_u32_u24 v8, 3, v7
        v_sub_u32 v8, v6, v8
        v_lshl_add_u32 v7, v7, 2, v4
        v_mul_u32_u24 v7, 3072, v7
        v_lshl_add_u32 v7, v8, 6, v7
        v_add_u32 v{10+i}, v7, v5
        """)
    k(f"""
    s_lshl_b32 s8, s3, 3
    v_add_u32 v6, s8, v4
    v_lshlrev_b32 v6, 12, v6
    v_lshrrev_b32 v7, 4, v1
    v_lshl_add_u32 v6, v7, 6, v6
    v_and_b32 v7, 3, v1
    v_lshl_add_u32 v6, v7, 4, v6
    s_lshl_b32 s8, s7, 8
    v_add_u32 v13, s8, v6
    v_add_u32 v14, 16384, v13
    s_lshr_b32 s8, s3, 1
    s_mul_i32 s20, s8, 6144
    s_and_b32 s9, s3, 1
    s_mul_i32 s9, s9, 3072
    s_add_u32 s20, s20, s9
    s_lshl_b32 s23, s3, 11
    s_add_u32 s23, s23, 12288
    s_cmp_eq_u32 s8, 1
    s_waitcnt lgkmcnt(0)
    s_cselect_b32 s48, s38, s36
    s_cselect_b32 s49, s39, s37
    s_mov_b32 s50, {640*3072}
    s_mov_b32 s51, 0x20000
    s_add_u32 s52, s42, {WS_HT}
    s_addc_u32 s53, s43, 0
    s_mov_b32 s54, {640*4096}
    s_mov_b32 s55, 0x20000
    s_mov_b32 s26, 0
    s_mov_b32 s27, 0
    s_mov_b32 s28, 0
    """)
    def dma():
        o=[]
        for i in range(3):
            o+=[f"s_add_u32 s29, s28, s20" if i==0 else "s_add_u32 s29, s29, 1024", "s_mov_b32 m0, s29", f"buffer_load_dwordx4 v{10+i}, s[48:51], s26 offen lds"]
        for e in range(2):
            o+=[f"s_add_u32 s29, s28, s23" if e==0 else "s_add_u32 s29, s29, 1024", "s_mov_b32 m0, s29", f"buffer_load_dwordx4 v{13+e}, s[52:55], s27 offen lds"]
        o+=[f"s_add_u32 s26, s26, {32*3072}", f"s_add_u32 s27, s27, {32*4096}", f"s_add_u32 s28, s28, {STAGE}", f"s_cmp_eq_u32 s28, {LDS2}", "s_cselect_b32 s28, 0, s28"]
        return o
    CS=96
    k(f"""
    v_lshrrev_b32 v2, 5, v1
    s_mul_i32 s8, s6, 384
    s_add_u32 s8, s8, {WS_COLSUM}
    v_lshl_add_u32 v17, v2, 4, s8
    v_add_u32 v19, 6144, v17
    """)
    for t in range(6):
        for q in range(4):
            k(f"global_load_dwordx4 {vr(CS+16*t+4*q,4)}, v{17 if t<3 else 19}, {WS} offset:{(t%3)*128+q*32}")
    k("s_mov_b32 s30, 0\nL2_pro:")
    for x in dma(): k(x)
    k(f"s_add_u32 s30, s30, 1\ns_cmp_lt_u32 s30, {NST-1}\ns_cbranch_scc1 L2_pro")
    T()
    k(f"""
    v_lshrrev_b32 v2, 5, v1
    v_bfe_u32 v3, v1, 4, 1
    v_lshlrev_b32 v4, 6, v4
    v_lshl_add_u32 v4, v3, 5, v4
    v_and_b32 v3, 3, v1
    v_lshl_add_u32 v4, v3, 3, v4
    v_mul_u32_u24 v15, 1536, v2
    v_add_u32 v15, v15, v4
    v_lshl_add_u32 v16, v2, 11, v4
    s_lshl_b32 s8, s3, 8
    s_add_u32 s8, s8, 12288
    v_add_u32 v16, s8, v16
    v_mov_b32 v20, 0
    v_mov_b32 v21, 0
    s_mov_b32 s31, 0x3f803f80
    s_lshl_b32 s8, s7, 3
    s_lshl_b32 s9, s3, 1
    s_add_u32 s8, s8, s9
    s_mul_i32 s8, s8, 48
    s_mul_i32 s9, s6, 3
    s_add_u32 s8, s8, s9
    s_lshl_b32 s8, s8, 10
    s_add_u32 s8, s8, {WS_HID}
    v_bfe_u32 v3, v1, 4, 1
    v_mul_u32_u24 v18, {48*1024}, v3
    v_lshl_add_u32 v18, v2, 8, v18
    v_and_b32 v3, 15, v1
    v_lshl_add_u32 v18, v3, 4, v18
    v_add_u32 v18, s8, v18
    """)
    ACC=0
    for r in range(96): k(f"v_accvgpr_write_b32 a{r}, 0")
    FA=[32,64]
    def reads(buf,kk,va,vb):
        o=[]
        for e in range(2): o.append(f"ds_read_b64_tr_b16 {vr(FA[buf]+24+2*e,2)}, v{vb} offset:{(4*kk+e)*1024}")
        for t in range(6):
            for e in range(2):
                off=(t//3)*6144+((4*kk+e)*3+(t%3))*256
                o.append(f"ds_read_b64_tr_b16 {vr(FA[buf]+4*t+2*e,2)}, v{va} offset:{off}")
        return o
    def mfs(buf): return [f"v_mfma_f32_32x32x16_bf16 {ar(16*t,16)}, {vr(FA[buf]+4*t,4)}, {vr(FA[buf]+24,4)}, {ar(16*t,16)}" for t in range(6)]
    def dots(buf):
        o=[]
        for j in range(4): o+=[f"v_dot2_f32_bf16 v20, v{FA[buf]+24+j}, s31, v20", f"v_dot2_f32_bf16 v21, v{FA[buf]+24+j}, v{FA[buf]+24+j}, v21"]
        return o
    def inter(m,fill):
        o=[];n=len(m);p=0
        for i,x in enumerate(m):
            o.append(x)
            q=(len(fill)*(i+1)+n-1)//n
            o+=fill[p:q]; p=q
        return o
    k(f"""
    s_waitcnt vmcnt({5*(NST-2)})
    s_barrier
    """)
    T()
    k("v_mov_b32 v22, v15\nv_mov_b32 v23, v16")
    for x in reads(0,0,22,23): k(x)
    k(f"s_mov_b32 s33, {STAGE}\ns_mov_b32 s30, 0\nL2_loop:\ns_waitcnt lgkmcnt(0)")
    for x in inter(mfs(0),reads(1,1,22,23)+dots(0)+["v_add_u32 v22, s33, v15","v_add_u32 v23, s33, v16",f"s_add_u32 s33, s33, {STAGE}",f"s_cmp_eq_u32 s33, {LDS2}","s_cselect_b32 s33, 0, s33"]): k(x)
    k(f"s_waitcnt vmcnt({5*(NST-3)}) lgkmcnt(0)\ns_barrier")
    for x in inter(mfs(1),merge(reads(0,0,22,23),dma())+dots(1)): k(x)
    k(f"s_add_u32 s30, s30, 1\ns_cmp_lt_u32 s30, 20\ns_cbranch_scc1 L2_loop")
    T()
    k("""
    v_mov_b32 v26, v20
    v_mov_b32 v27, v21
    v_permlane32_swap_b32 v20, v26
    v_permlane32_swap_b32 v21, v27
    v_add_f32 v20, v20, v26
    v_add_f32 v21, v21, v27
    """)
    ln_finalize(k,20,21,26,28,30)
    k(f"""
    v_rcp_f32 v26, v30
    v_mul_f32 v30, v30, v30
    v_mul_f32 v26, {f2u(-math.log2(math.e))}, v26
    """)
    for i in range(3):
        G=32; U=48; E=64
        for r in range(16): k(f"v_accvgpr_read_b32 v{G+r}, a{16*i+r}\nv_accvgpr_read_b32 v{U+r}, a{48+16*i+r}")
        for p in range(8):
            k(f"v_pk_fma_f32 {vr(G+2*p,2)}, {vr(CS+16*i+2*p,2)}, v[28:29], {vr(G+2*p,2)} op_sel:[0,0,0] op_sel_hi:[1,0,1] neg_lo:[1,0,0] neg_hi:[1,0,0]")
            k(f"v_pk_fma_f32 {vr(U+2*p,2)}, {vr(CS+48+16*i+2*p,2)}, v[28:29], {vr(U+2*p,2)} op_sel:[0,0,0] op_sel_hi:[1,0,1] neg_lo:[1,0,0] neg_hi:[1,0,0]")
        for p in range(8): k(f"v_pk_mul_f32 {vr(E+2*p,2)}, {vr(G+2*p,2)}, v[26:27] op_sel:[0,0] op_sel_hi:[1,0]")
        for r in range(16): k(f"v_exp_f32 v{E+r}, v{E+r}")
        for p in range(8): k(f"v_pk_mul_f32 {vr(G+2*p,2)}, {vr(G+2*p,2)}, {vr(U+2*p,2)}")
        for p in range(8): k(f"v_pk_fma_f32 {vr(E+2*p,2)}, {vr(E+2*p,2)}, v[30:31], v[30:31] op_sel:[0,0,0] op_sel_hi:[1,0,0]")
        for r in range(16): k(f"v_rcp_f32 v{E+r}, v{E+r}")
        for p in range(8): k(f"v_pk_mul_f32 {vr(G+2*p,2)}, {vr(G+2*p,2)}, {vr(E+2*p,2)}")
        O=80+8*(i&1)
        for p in range(8): k(f"v_cvt_pk_bf16_f32 v{O+p}, v{G+2*p}, v{G+2*p+1}")
        for qq in (0,4):
            k(f"v_permlane32_swap_b32 v{O+qq}, v{O+qq+2}\nv_permlane32_swap_b32 v{O+qq+1}, v{O+qq+3}")
            k(f"global_store_dwordx4 v18, {vr(O+qq,4)}, {WS} offset:{1024*i+128*qq} {st_sc}")
    if diag:
        T(); k("s_waitcnt vmcnt(0)"); T(); T.flush(WS,slot)
    k("L2_end:\ns_endpgm")
    k.lines=[l.replace("L2_",pfx) for l in k.lines]
    return k
if __name__=="__main__":
    open("t2.s","w").write(emit([gen_k2(diag=True)],verbose=True))
```

```python
from ag import *
from common import *
from k1 import Stamps
WREG=30720; SLOT=5120; NS=6; RES=4*WREG; LDS3=RES+10240
RSTR=336; RW=64*RSTR
def gen_k3(diag=False, st_sc="", name="gemm2_kernel", slot=2, pfx="L3_"):
    k=K(name,(256,1,1),(256,1,1),LDS3,vgpr=512,sgpr=102,accum=256,hazard=True)
    T=Stamps(k,diag)
    WS="s[42:43]"
    T()
    k(f"""
    s_cmp_ge_u32 s2, 256
    s_cbranch_scc1 L3_end
    s_load_dwordx4 s[36:39], s[0:1], 96
    s_load_dwordx2 s[42:43], s[0:1], 120
    v_and_b32 v1, 63, v0
    v_lshrrev_b32 v2, 6, v0
    v_readfirstlane_b32 s3, v2
    s_and_b32 s4, s2, 7
    s_lshr_b32 s5, s2, 3
    s_and_b32 s6, s4, 1
    s_lshl_b32 s6, s6, 2
    s_and_b32 s7, s5, 3
    s_add_u32 s6, s6, s7
    s_lshr_b32 s7, s4, 1
    s_lshl_b32 s7, s7, 3
    s_lshr_b32 s5, s5, 2
    s_add_u32 s7, s7, s5
    ; w2 DMA offsets v10..v14: unit u=4i+(lane>>4); P=u/5, dt=u%5; kappa=(P&1)+4*(P>>1)+2b; row=4kappa+r
    v_lshrrev_b32 v3, 4, v1
    v_bfe_u32 v4, v1, 3, 1
    v_bfe_u32 v5, v1, 1, 2
    v_lshl_add_u32 v4, v4, 3, v5
    v_and_b32 v5, 1, v1
    v_lshlrev_b32 v5, 4, v5
    s_mul_i32 s8, s6, 160
    s_mul_i32 s9, s3, {384*1280}
    s_add_u32 s8, s8, s9
    v_add_u32 v5, s8, v5
    """)
    for i in range(5):
        k(f"""
        v_add_u32 v6, {4*i}, v3
        v_mul_u32_u24 v7, 52, v6
        v_lshrrev_b32 v7, 8, v7
        v_mul_u32_u24 v8, 5, v7
        v_sub_u32 v8, v6, v8
        v_and_b32 v9, 1, v7
        v_lshrrev_b32 v7, 1, v7
        v_lshlrev_b32 v7, 4, v7
        v_lshl_add_u32 v7, v9, 2, v7
        v_add_u32 v7, v7, v4
        v_mul_u32_u24 v7, 1280, v7
        v_lshl_add_u32 v7, v8, 5, v7
        v_add_u32 v{10+i}, v7, v5
        """)
    k(f"""
    s_mul_i32 s8, s7, 192
    s_mul_i32 s9, s3, 12
    s_add_u32 s8, s8, s9
    s_lshl_b32 s8, s8, 10
    v_lshl_add_u32 v15, v1, 4, s8
    v_lshrrev_b32 v6, 5, v1
    v_bfe_u32 v7, v1, 1, 2
    v_lshl_add_u32 v6, v6, 2, v7
    v_lshlrev_b32 v6, 12, v6
    v_bfe_u32 v7, v1, 3, 2
    v_lshl_add_u32 v6, v7, 5, v6
    v_and_b32 v7, 1, v1
    v_lshl_add_u32 v6, v7, 4, v6
    s_mul_i32 s8, s6, {80*4096}
    s_lshl_b32 s9, s7, 7
    s_add_u32 s8, s8, s9
    v_add_u32 v16, s8, v6
    s_mul_i32 s20, s3, {WREG}
    s_waitcnt lgkmcnt(0)
    s_mov_b32 s48, s36
    s_mov_b32 s49, s37
    s_mov_b32 s50, {1536*1280}
    s_mov_b32 s51, 0x20000
    s_add_u32 s52, s42, {WS_HID}
    s_addc_u32 s53, s43, 0
    s_mov_b32 s54, {2048*1536*2}
    s_mov_b32 s55, 0x20000
    s_add_u32 s56, s42, {WS_HT}
    s_addc_u32 s57, s43, 0
    s_mov_b32 s58, {640*4096}
    s_mov_b32 s59, 0x20000
    s_mov_b32 s21, 0
    s_mov_b32 s22, {48*1024}
    s_mov_b32 s23, {96*1024}
    s_mov_b32 s24, {144*1024}
    """)
    BF=[160+16*s for s in range(NS)]
    AF=[32,52]
    def issue(s):
        o=[]
        sl=s%NS
        o.append(f"s_mov_b32 s26, {s*32*1280}")
        for i in range(5):
            o+=[f"s_add_u32 s29, s20, {sl*SLOT+i*1024}", "s_mov_b32 m0, s29", f"buffer_load_dwordx4 v{10+i}, s[48:51], s26 offen lds"]
        for tt in range(4):
            o.append(f"buffer_load_dwordx4 {vr(BF[sl]+4*tt,4)}, v{17 if s>=4 and s<8 else 18 if s>=8 else 15}, s[52:55], s{21+tt} offen offset:{(s%4)*1024}")
        return o
    k("v_add_u32 v17, 4096, v15\nv_add_u32 v18, 8192, v15")
    k(f"""
    s_cmp_ge_u32 s3, 2
    s_cbranch_scc1 L3_nores
    s_mul_i32 s27, s3, 5
    s_lshl_b32 s28, s27, 15
    s_lshl_b32 s27, s27, 10
    s_add_u32 s27, s27, {RES}
    """)
    for i in range(5):
        k(f"s_mov_b32 m0, s27\ns_add_u32 s27, s27, 1024\nbuffer_load_dwordx4 v16, s[56:59], s28 offen lds\ns_add_u32 s28, s28, 32768")
    k("L3_nores:")
    for s in range(NS):
        for x in issue(s): k(x)
    T()
    k(f"""
    v_lshrrev_b32 v2, 5, v1
    v_mul_u32_u24 v19, 2560, v2
    v_bfe_u32 v3, v1, 4, 1
    v_lshl_add_u32 v19, v3, 7, v19
    v_and_b32 v3, 15, v1
    v_lshl_add_u32 v19, v3, 3, v19
    v_add_u32 v19, s20, v19
    v_lshrrev_b32 v2, 4, v1
    v_mul_u32_u24 v20, {RSTR}, v3
    v_lshl_add_u32 v20, v2, 4, v20
    s_mul_i32 s8, s3, {16*RSTR}
    v_add_u32 v21, s8, v20
    s_mul_i32 s8, s3, {RW}
    v_add_u32 v20, s8, v20
    v_lshlrev_b32 v22, 9, v2
    v_lshl_add_u32 v22, v3, 3, v22
    s_lshl_b32 s8, s3, 7
    s_add_u32 s8, s8, {RES}
    v_add_u32 v22, s8, v22
    s_lshl_b32 s8, s7, 6
    s_lshl_b32 s9, s3, 4
    s_add_u32 s8, s8, s9
    v_add_u32 v23, s8, v3
    v_mul_u32_u24 v23, 1280, v23
    v_lshl_add_u32 v23, v2, 3, v23
    s_mul_i32 s8, s6, 160
    v_add_u32 v23, s8, v23
    """)
    def areads(s):
        o=[]
        for dt in range(5):
            for e in range(2): o.append(f"ds_read_b64_tr_b16 {vr(AF[s&1]+4*dt+2*e,2)}, v19 offset:{(s%NS)*SLOT+(e*5+dt)*256}")
        return o
    def mfs(s):
        return [f"v_mfma_f32_16x16x32_bf16 {ar(16*dt+4*tt,4)}, {vr(AF[s&1]+4*dt,4)}, {vr(BF[s%NS]+4*tt,4)}, {ar(16*dt+4*tt,4) if s else '0'}" for dt in range(5) for tt in range(4)]
    k(f"s_waitcnt vmcnt({9*(NS-1)})")
    T()
    for x in areads(0): k(x)
    for s in range(12):
        issued=min(12,s+NS)
        fill=[]
        if s+1<12:
            k(f"s_waitcnt vmcnt({9*(issued-(s+2))}) lgkmcnt(0)")
            fill+=areads(s+1)
        else: k("s_waitcnt lgkmcnt(0)")
        m=mfs(s)
        o=[]
        for i,x in enumerate(m):
            o.append(x)
            if i<len(fill): o.append(fill[i])
        for x in o: k(x)
        if s+NS<12:
            for x in issue(s+NS): k(x)
    T()
    k("s_barrier")
    for dt in range(5):
        for tt in range(4): k(f"ds_write_b128 v20, {ar(16*dt+4*tt,4)} offset:{tt*16*RSTR+dt*64}")
    k("s_waitcnt lgkmcnt(0)\ns_barrier")
    for dt in range(5):
        for w in range(4): k(f"ds_read_b128 {vr(32+16*dt+4*w,4)}, v21 offset:{w*RW+dt*64}" if w*RW+dt*64<65536 else f"ds_read_b128 {vr(32+16*dt+4*w,4)}, v24 offset:{w*RW+dt*64-2*RW}")
        k(f"ds_read_b64_tr_b16 {vr(112+2*dt,2)}, v22 offset:{dt*2048}")
    for dt in range(5):
        b=32+16*dt
        k(f"s_waitcnt lgkmcnt({min(15,5*(4-dt))})")
        k(f"""
        v_pk_add_f32 {vr(b,2)}, {vr(b,2)}, {vr(b+4,2)}
        v_pk_add_f32 {vr(b+2,2)}, {vr(b+2,2)}, {vr(b+6,2)}
        v_pk_add_f32 {vr(b+8,2)}, {vr(b+8,2)}, {vr(b+12,2)}
        v_pk_add_f32 {vr(b+10,2)}, {vr(b+10,2)}, {vr(b+14,2)}
        v_lshlrev_b32 v{b+4}, 16, v{112+2*dt}
        v_and_b32 v{b+5}, 0xffff0000, v{112+2*dt}
        v_lshlrev_b32 v{b+6}, 16, v{113+2*dt}
        v_and_b32 v{b+7}, 0xffff0000, v{113+2*dt}
        v_pk_add_f32 {vr(b,2)}, {vr(b,2)}, {vr(b+8,2)}
        v_pk_add_f32 {vr(b+2,2)}, {vr(b+2,2)}, {vr(b+10,2)}
        v_pk_add_f32 {vr(b,2)}, {vr(b,2)}, {vr(b+4,2)}
        v_pk_add_f32 {vr(b+2,2)}, {vr(b+2,2)}, {vr(b+6,2)}
        v_cvt_pk_bf16_f32 v{b}, v{b}, v{b+1}
        v_cvt_pk_bf16_f32 v{b+1}, v{b+2}, v{b+3}
        global_store_dwordx2 v23, {vr(b,2)}, s[38:39] offset:{dt*32} {st_sc}
        """)
    if diag:
        T(); k("s_waitcnt vmcnt(0)"); T(); T.flush(WS,slot)
    k("L3_end:\ns_endpgm")
    k.lines=[l.replace("L3_",pfx) for l in k.lines]
    return k
if __name__=="__main__":
    open("t3.s","w").write(emit([gen_k3(diag=True)],verbose=True))
```

```python
from ag import *
from common import *
def report(offs):
    k=K("report_kernel",(1,1,1),(64,1,1),0,vgpr=32,sgpr=32,hazard=True)
    k("""
    s_cmp_ge_u32 s2, 1
    s_cbranch_scc1 LR_end
    s_load_dwordx4 s[4:7], s[0:1], 112
    v_mov_b32 v2, 0
    s_waitcnt lgkmcnt(0)
    """)
    for i,o in enumerate(offs):
        k(f"v_mov_b32 v1, {o}\nglobal_load_dword v{8+i}, v1, s[6:7]")
    k("s_waitcnt vmcnt(0)\ns_mov_b64 exec, 1")
    for i,o in enumerate(offs):
        k(f"v_sub_u32 v3, v{8+i}, v8\nglobal_store_dword v2, v3, s[4:5] offset:{4*i}")
    k("LR_end:\ns_endpgm")
    return k
```

```python
from ag import *
from common import *
import k1,k2,k3,report,build
S=WS_STAMP
offs=[S+0,S+4,S+8,S+12,S+24,S+40, S+65536,S+65536+8,S+65536+12,S+65536+20, S+131072,S+131072+8,S+131072+12,S+131072+20]
ks=[k1.gen_k1(diag=True),k2.gen_k2(diag=True),k3.gen_k3(diag=True),report.report(offs)]
open("v_rep.s","w").write(emit(ks,comment=build.HDR))
```

```python
import hz
HEADER = '.amdgcn_target "amdgcn-amd-amdhsa--gfx950"\n.text\n'

class K:
    def __init__(self, name, grid, block, lds=0, vgpr=256, sgpr=102, accum=None, wg_y=False, hazard=False):
        self.name=name; self.grid=grid; self.block=block; self.lds=lds
        self.vgpr=vgpr; self.sgpr=sgpr; self.accum=accum; self.lines=[]; self.wg_y=wg_y
        self._lab=0; self.hazard=hazard
    def __call__(self, s):
        for l in s.strip("\n").split("\n"):
            l=l.strip()
            if not l: continue
            self.lines.append("    "+l if not l.endswith(":") else l)
    def label(self, base="L"):
        self._lab+=1
        return "%s_%s_%d"%(base,self.name[:2],self._lab)
    def launch_line(self):
        g=self.grid; b=self.block
        return "; @launch kernel=%s grid=(%d,%d,%d) block=(%d,%d,%d) lds=%d"%(self.name,g[0],g[1],g[2],b[0],b[1],b[2],self.lds)
    def text(self, verbose=False):
        lines=self.lines
        if self.hazard:
            lines,n=hz.fix(lines,verbose)
        return ".globl %s\n.p2align 8\n.type %s,@function\n%s:\n"%(self.name,self.name,self.name)+"\n".join(lines)+"\n"
    def desc(self):
        acc=self.accum if self.accum is not None else min(256,(self.vgpr+3)//4*4)
        s=".amdhsa_kernel %s\n"%self.name
        s+="  .amdhsa_next_free_vgpr %d\n  .amdhsa_next_free_sgpr %d\n  .amdhsa_accum_offset %d\n"%(self.vgpr,self.sgpr,acc)
        s+="  .amdhsa_group_segment_fixed_size 0\n  .amdhsa_kernarg_size 128\n  .amdhsa_user_sgpr_count 2\n  .amdhsa_user_sgpr_kernarg_segment_ptr 1\n  .amdhsa_system_sgpr_workgroup_id_x 1\n"
        if self.wg_y: s+="  .amdhsa_system_sgpr_workgroup_id_y 1\n"
        s+="  .amdhsa_float_denorm_mode_32 3\n"
        s+=".end_amdhsa_kernel\n"
        return s

def emit(kernels, launches=None, comment="", verbose=False):
    launches = launches or kernels
    s = comment
    for k in launches: s += k.launch_line()+"\n"
    s += HEADER
    for k in kernels: s += k.text(verbose)
    s += '.section .rodata,"a"\n'
    for k in kernels: s += ".p2align 6\n"+k.desc()
    return s

def vr(a,n=1): return "v%d"%a if n==1 else "v[%d:%d]"%(a,a+n-1)
def ar(a,n=1): return "a%d"%a if n==1 else "a[%d:%d]"%(a,a+n-1)
def sr(a,n=1): return "s%d"%a if n==1 else "s[%d:%d]"%(a,a+n-1)

def merge(*streams):
    streams=[list(s) for s in streams if s]
    tot=sum(len(s) for s in streams); pos=[0]*len(streams); out=[]
    for _ in range(tot):
        best=None;bv=None
        for i,s in enumerate(streams):
            if pos[i]<len(s):
                v=(pos[i]+0.5)/len(s)
                if bv is None or v<bv: bv=v;best=i
        out.append(streams[best][pos[best]]); pos[best]+=1
    return out

def stamp(k, slot, sreg_ws, idx, tmp_s=90, tmp_v=250):
    pass

def sched(ops, lat_valu=3, lat_trans=4, lat_ds=3):
    I=[hz.I(o) for o in ops]; n=len(I)
    succ=[[] for _ in I]; npred=[0]*n
    for j in range(n):
        for i in range(j):
            l=None
            if I[i].defs & I[j].uses: l=lat_trans if I[i].trans else (lat_ds if not I[j].valu else lat_valu)
            elif (I[i].uses & I[j].defs) or (I[i].defs & I[j].defs): l=1
            if l is not None: succ[i].append((j,l)); npred[j]+=1
    cp=[0]*n
    for i in range(n-1,-1,-1): cp[i]=max([l+cp[j] for j,l in succ[i]]+[1])
    ready=[0]*n; done=[False]*n; out=[]; t=0
    for _ in range(n):
        c=[i for i in range(n) if not done[i] and npred[i]==0]
        ok=[i for i in c if ready[i]<=t]
        i=max(ok,key=lambda x:(cp[x],-x)) if ok else min(c,key=lambda x:(ready[x],-cp[x]))
        done[i]=True; out.append(ops[i]); t=max(t,ready[i])+1
        for j,l in succ[i]:
            npred[j]-=1; ready[j]=max(ready[j],t-1+l)
    return out
```

```python
WS_STATS=0
WS_COLSUM=0x8000
WS_STAMP=0x2000000
WS_HT=0x100000
WS_HID=0x400000
LOG2E=0x3fb8aa3b
def f2u(x):
    import struct
    return struct.unpack("<I",struct.pack("<f",x))[0]
WS_CNT=0xA00000
CSTR=4352
WS_PART=0x40000
WS_W13=0xC00000
WS_W2=0x1000000
```

```python
import re
REG = re.compile(r'(?<![\w.])([vas])(\d+)(?![\w\[])|(?<![\w.])([vas])\[(\d+):(\d+)\]|(?<![\w.])(vcc|exec|m0|scc)(?:_lo|_hi)?(?![\w])')
TRANS = ("v_exp_f32","v_log_f32","v_rcp_f32","v_rsq_f32","v_sqrt_f32","v_sin_f32","v_cos_f32","v_rcp_iflag_f32")
def regs(tok):
    out=set()
    for m in REG.finditer(tok):
        if m.group(1): out.add((m.group(1),int(m.group(2))))
        elif m.group(3):
            for i in range(int(m.group(4)),int(m.group(5))+1): out.add((m.group(3),i))
        else: out.add((m.group(6),0))
    return out
class I:
    def __init__(s,text):
        s.text=text
        t=text.split(";")[0].split("//")[0].strip()
        s.label=t[:-1] if t.endswith(":") else None
        s.dir=t.startswith(".") or t==""
        s.mn=""; s.ops=[]
        s.defs=set(); s.uses=set()
        if s.label or s.dir: return
        p=t.split(None,1); s.mn=p[0]
        rest=p[1] if len(p)>1 else ""
        ops=[];cur="";d=0
        for ch in rest:
            if ch in "[(": d+=1
            if ch in "])": d-=1
            if ch=="," and d==0: ops.append(cur.strip());cur=""
            else: cur+=ch
        if cur.strip(): ops.append(cur.strip())
        s.ops=ops
        mn=s.mn
        for suf in ("_e32","_e64","_dpp","_sdwa"):
            if mn.endswith(suf): mn=mn[:-len(suf)]
        s.base=mn
        s.mfma=mn.startswith("v_mfma")
        s.valu=mn.startswith("v_") and not s.mfma
        s.salu=mn.startswith("s_") and not mn.startswith(("s_load","s_buffer_load","s_waitcnt","s_nop","s_barrier","s_endpgm","s_branch","s_cbranch","s_sleep","s_setprio","s_memtime","s_memrealtime","s_atomic"))
        s.vmem=mn.startswith(("buffer_","global_","flat_","scratch_"))
        s.ds=mn.startswith("ds_")
        s.trans=mn in TRANS
        s.dpp=("_dpp" in s.mn) or any(x in rest for x in ("row_shr","row_shl","row_ror","wave_sh","wave_ro","row_bcast","row_mirror","row_half_mirror","quad_perm","row_newbcast"))
        s.permlane=mn.startswith("v_permlane")
        s.readlane=mn in("v_readlane_b32","v_readfirstlane_b32")
        s.branch=mn.startswith(("s_branch","s_cbranch"))
        if mn=="s_setpc_b64": s.mn="s_endpgm"
        s.lds_dma=s.vmem and (" lds" in " "+rest or "load_lds" in mn)
        R=[regs(o) for o in ops]
        if s.mfma:
            s.defs=R[0]; s.A=R[1]; s.B=R[2]; s.C=R[3] if len(R)>3 else set(); s.uses=s.A|s.B|s.C
            s.passes=8 if "32x32x16" in mn or "32x32x8" in mn else 4 if "16x16x32" in mn or "16x16x16" in mn else 2 if "4x4x4" in mn else 16
        elif s.valu:
            if mn.startswith("v_cmp"):
                s.defs=set(R[0]); s.uses=set().union(*R[1:]) if len(R)>1 else set()
                if mn.startswith("v_cmpx"): s.defs.add(("exec",0))
            elif s.permlane and "swap" in mn:
                s.defs=R[0]|R[1]; s.uses=R[0]|R[1]
            elif mn in("v_add_co_u32","v_sub_co_u32","v_addc_co_u32","v_subb_co_u32","v_subrev_co_u32","v_mad_u64_u32","v_div_scale_f32"):
                s.defs=R[0]|R[1]; s.uses=set().union(*R[2:])
            else:
                s.defs=set(R[0]); s.uses=set().union(*R[1:]) if len(R)>1 else set()
                if mn in("v_fmac_f32","v_dot2c_f32_bf16","v_pk_fmac_f16","v_writelane_b32") or s.dpp: s.uses|=R[0]
        elif s.vmem:
            allr=set().union(*R) if R else set()
            if "store" in mn or (("atomic" in mn)):
                s.uses=allr
                if "atomic" in mn and ("sc0" in rest): s.defs=set(R[0])
                s.wide=("x3" in mn or "x4" in mn)
                s.sdata=(R[0] if mn.startswith("buffer") else R[1])
                if "atomic" in mn and "sc0" in rest and mn.startswith("global"): s.uses=set().union(*R[1:])
            elif s.lds_dma:
                s.uses=allr|{("m0",0)}
            elif mn in ("buffer_inv","buffer_wbl2"):
                pass
            else:
                s.defs=set(R[0]); s.uses=set().union(*R[1:])
                if "d16" in mn: s.uses|=R[0]
        elif s.ds:
            if mn.startswith(("ds_read","ds_bpermute","ds_permute","ds_swizzle")) or "_rtn" in mn:
                s.defs=set(R[0]); s.uses=set().union(*R[1:]) if len(R)>1 else set()
                if "d16" in mn: s.uses|=R[0]
            else:
                s.uses=set().union(*R) if R else set()
            if "addtid" in mn: s.uses|={("m0",0)}
        elif mn.startswith("s_"):
            if mn.startswith(("s_cmp","s_bitcmp")): s.uses=set().union(*R) if R else set()
            elif s.branch or mn in("s_waitcnt","s_nop","s_barrier","s_endpgm","s_sleep","s_setprio"):
                if "vcc" in mn: s.uses={("vcc",0)}
            else:
                s.defs=set(R[0]) if R else set(); s.uses=set().union(*R[1:]) if len(R)>1 else set()
                if "saveexec" in mn: s.defs|={("exec",0)}
    def states(s):
        if s.label or s.dir: return 0
        if s.mn=="s_nop": return int(s.ops[0],0)+1
        return 1
def vg(x): return {r for r in x if r[0] in "va"}
def sg(x): return {r for r in x if r[0]=="s" or r[0]=="vcc"}
def need(p,c):
    n=0
    if p.label or p.dir: return 0
    if p.valu:
        dv=vg(p.defs); dsg=sg(p.defs)
        if c.mfma and dv&c.uses: n=max(n,2)
        if c.valu:
            if c.dpp and dv&c.uses: n=max(n,2)
            if c.permlane and dv&c.uses: n=max(n,2)
            if c.readlane and dv&c.uses: n=max(n,1)
            if p.trans and not c.trans and dv&c.uses: n=max(n,1)
            if dsg&c.uses:
                n=max(n,2)
                if c.base in("v_readlane_b32","v_writelane_b32") and dsg&regs(c.ops[-1]): n=max(n,4)
                if c.base=="v_div_fmas_f32": n=max(n,4)
            if c.base=="v_div_fmas_f32" and ("vcc",0) in dsg: n=max(n,4)
            if ("exec",0) in p.defs:
                if c.dpp: n=max(n,5)
                if c.readlane or c.permlane or c.base=="v_writelane_b32": n=max(n,4)
            if ("op_sel" in p.text and not p.base.startswith("v_pk") and not p.base.startswith("v_dot")) or "dst_sel" in p.text:
                if dv&(c.uses|c.defs): n=max(n,1)
        if c.mfma and ("exec",0) in p.defs: n=max(n,4)
        if c.vmem and dsg&c.uses: n=max(n,5)
        if p.trans and (c.vmem or c.ds) and dv&c.uses: n=max(n,1)
        if p.base.startswith("v_dot2"):
            if dv&(c.uses|c.defs) and (c.valu or c.mfma or c.vmem or c.ds):
                if c.base==p.base:
                    srcAB=set().union(*[regs(o) for o in c.ops[1:3]])
                    if dv&srcAB: n=max(n,3)
                else: n=max(n,3)
        if c.branch and ("vcc",0) in c.uses and ("vcc",0) in dsg: n=max(n,0)
        if c.salu and dsg&c.uses: n=max(n,1)
    if p.mfma:
        D=p.defs; P=p.passes
        t={2:5,4:8,8:12,16:20}[P]
        if c.mfma:
            if D&(c.A|c.B): n=max(n,t)
            if D&c.C:
                if D==c.C and c.passes==P: n=max(n,2 if P==2 else 0)
                else: n=max(n,{2:4,4:6,8:10,16:18}[P])
            elif D&c.defs and not (D==c.defs): n=max(n,t)
        elif c.valu or c.vmem or c.ds:
            if D&(c.uses|c.defs): n=max(n,t)
        if c.valu and p.C&c.defs: n=max(n,{2:1,4:3,8:7,16:15}[P])
    if p.salu and ("m0",0) in p.defs and ("m0",0) in c.uses and (c.vmem or c.ds): n=max(n,1)
    if p.vmem and getattr(p,"wide",False) and "store" in p.base:
        if c.valu and p.sdata&c.defs: n=max(n,2)
        elif (c.mfma or c.ds or c.vmem) and p.sdata&c.defs: n=max(n,1)
    return n
def fix(lines, verbose=False):
    ins=[I(l) for l in lines]
    changed=True; total=0
    while changed:
        changed=False
        lab={x.label:i for i,x in enumerate(ins) if x.label}
        brs={}
        for i,x in enumerate(ins):
            if not(x.label or x.dir) and x.branch:
                brs.setdefault(lab[x.ops[0]],[]).append(i)
        def preds(i):
            out=[]
            if i>0:
                q=ins[i-1]
                if q.label or q.dir or q.mn not in("s_branch","s_endpgm"): out.append(i-1)
            out+=brs.get(i,[])
            return out
        for i,c in enumerate(ins):
            if c.label or c.dir or c.mn in("s_nop","s_waitcnt","s_barrier"): continue
            worst=0
            st=[(j,0) for j in preds(i)]; seen={}
            while st:
                j,d=st.pop()
                if d>=21 or seen.get(j,99)<=d: continue
                seen[j]=d
                p=ins[j]
                n=need(p,c)
                if n-d>worst: worst=n-d; why=p
                for q in preds(j): st.append((q,d+p.states()))
            if worst>0:
                if verbose: print("nop %d before '%s' (after '%s')"%(worst,c.text.strip(),why.text.strip()))
                k=worst; new=[]
                while k>0:
                    m=min(k,16); new.append(I("    s_nop %d"%(m-1))); k-=m
                ins[i:i]=new; total+=1; changed=True
                break
    return [x.text for x in ins], total
```

```python
from ag import *
from common import *
import math, struct
HB=5712; LB=8704; LO0=8*HB; UB=LO0+8*LB; US=4608; XB0=UB+4*US; SC0=XB0+16384; LDS1=SC0+64

def cmul(dst,x,m,t):
    return [f"v_pk_mul_f32 {vr(t,2)}, {vr(x,2)}, {vr(m,2)} op_sel:[0,0] op_sel_hi:[0,1]",
            f"v_pk_fma_f32 {vr(dst,2)}, {vr(x,2)}, {vr(m,2)}, {vr(t,2)} op_sel:[1,1,0] op_sel_hi:[1,0,1] neg_lo:[1,0,0]"]
def put(row,x,c,neg,base=0):
    n="-" if neg else ""
    return [f"v_cvt_pk_bf16_f32 v{c}, v{x}, {n}v{x+1}", f"ds_write_addtid_b32 v{c} offset:{base+row*272}"]

class Stamps:
    def __init__(s,k,on,base=80): s.k=k;s.on=on;s.n=0;s.base=base
    def __call__(s,cyc=False):
        if s.on:
            s.k(f"{'s_memtime' if cyc else 's_memrealtime'} s[{s.base+2*s.n}:{s.base+2*s.n+1}]"); s.n+=1
    def flush(s,ws,slot,wreg="s3"):
        if not s.on: return
        k=s.k
        k("s_waitcnt lgkmcnt(0)")
        k(f"s_lshl_b32 s78, s2, 9\ns_lshl_b32 s79, {wreg}, 6\ns_add_u32 s78, s78, s79\ns_add_u32 s78, s78, {WS_STAMP+slot*131072}\nv_mov_b32 v2, s78\ns_mov_b64 exec, 1")
        for i in range(s.n): k(f"v_mov_b32 v3, s{s.base+2*i}\nglobal_store_dword v2, v3, {ws} offset:{4*i}")
        for i,r in enumerate((72,100,98,96,94,76,74)): k(f"v_mov_b32 v3, s{r}\nglobal_store_dword v2, v3, {ws} offset:{36+4*i}")
        k("s_mov_b64 exec, -1")

def reduce32(k, regs, tmp):
    for m in ("quad_perm:[1,0,3,2]","quad_perm:[2,3,0,1]","row_half_mirror","row_mirror"):
        for r in regs: k(f"v_add_f32_dpp v{r}, v{r}, v{r} {m} row_mask:0xf bank_mask:0xf")
    for r,t in zip(regs,tmp): k(f"v_mov_b32 v{t}, v{r}")
    for r,t in zip(regs,tmp): k(f"v_permlane16_swap_b32 v{r}, v{t}")
    for r,t in zip(regs,tmp): k(f"v_add_f32 v{r}, v{r}, v{t}")

def ln_finalize(k, s1, s2, t, mean_out, sd_out):
    k(f"""
    v_mul_f32 v{s1}, {f2u(1/640.)}, v{s1}
    v_mul_f32 v{s2}, {f2u(1/640.)}, v{s2}
    v_fma_f32 v{s2}, -v{s1}, v{s1}, v{s2}
    v_max_f32 v{s2}, 0, v{s2}
    v_cvt_pk_bf16_f32 v{t}, v{s1}, v{s2}
    v_lshlrev_b32 v{mean_out}, 16, v{t}
    v_and_b32 v{t}, 0xffff0000, v{t}
    v_add_f32 v{t}, {f2u(1e-5)}, v{t}
    v_cvt_pk_bf16_f32 v{t}, v{t}, v{t}
    v_and_b32 v{t}, 0xffff0000, v{t}
    v_sqrt_f32 v{t}, v{t}
    v_cvt_pk_bf16_f32 v{t}, v{t}, v{t}
    v_and_b32 v{sd_out}, 0xffff0000, v{t}
    """)
def cexp(dst,scale,ta,tb):
    o=[]
    if scale!=1:
        o+=[f"v_mul_f32 v{ta}, {f2u(scale)}, v56", f"v_mul_f32 v{tb}, {f2u(scale)}, v57"]
        a,b=ta,tb
    else: a,b=56,57
    o+=[f"v_fract_f32 v{tb}, v{b}", f"v_exp_f32 v{ta}, v{a}", f"v_cos_f32 v{dst}, v{tb}", f"v_sin_f32 v{dst+1}, v{tb}",
        f"v_pk_mul_f32 {vr(dst,2)}, {vr(dst,2)}, {vr(ta,2)} op_sel:[0,0] op_sel_hi:[1,0]"]
    return o
def dt_code(k):
    l2e_hi=f2u(math.log2(math.e)); l2e_f=struct.unpack("<f",struct.pack("<I",l2e_hi))[0]; l2e_lo=f2u(math.log2(math.e)-l2e_f)
    k(f"""
    s_mov_b32 s14, {l2e_hi}
    s_mov_b32 s15, {l2e_lo}
    v_mul_f32 v51, s14, v50
    v_fma_f32 v52, v50, s14, -v51
    v_fma_f32 v52, v50, s15, v52
    v_exp_f32 v51, v51
    v_mul_f32 v52, {f2u(math.log(2))}, v52
    v_fma_f32 v51, v51, v52, v51
    v_cvt_pk_bf16_f32 v51, v51, v51
    v_and_b32 v54, 0xffff0000, v51
    v_mul_f32 v52, s14, v54
    v_mul_f32 v53, {f2u(1/(2*math.pi))}, v54
    """)


def cmul16(dst,x,m,t):
    return [f"v_pk_mul_f16 v{t}, v{x}, v{m} op_sel:[0,0] op_sel_hi:[0,1]",
            f"v_pk_fma_f16 v{dst}, v{x}, v{m}, v{t} op_sel:[1,1,0] op_sel_hi:[1,0,1] neg_lo:[1,0,0]"]
def wavemax(k,r,t):
    for m in ("quad_perm:[1,0,3,2]","quad_perm:[2,3,0,1]","row_half_mirror","row_mirror"):
        k(f"v_max_f32_dpp v{r}, v{r}, v{r} {m} row_mask:0xf bank_mask:0xf")
    for sw in ("16","32"):
        k(f"v_mov_b32 v{t}, v{r}\nv_permlane{sw}_swap_b32 v{r}, v{t}\nv_max_f32 v{r}, v{r}, v{t}")
def prep(k):
    l2e_hi=f2u(math.log2(math.e)); l2e_f=struct.unpack("<f",struct.pack("<I",l2e_hi))[0]; l2e_lo=f2u(math.log2(math.e)-l2e_f)
    k(f"""
    s_mov_b32 s14, {l2e_hi}
    s_mov_b32 s15, {l2e_lo}
    v_max3_f32 v54, v16, v22, v28
    v_mul_f32 v51, s14, v50
    v_max_f32 v54, 0, v54
    v_fma_f32 v52, v50, s14, -v51
    v_fma_f32 v52, v50, s15, v52
    v_exp_f32 v51, v51
    v_mul_f32 v52, {f2u(math.log(2))}, v52
    v_fma_f32 v51, v51, v52, v51
    v_cvt_pk_bf16_f32 v51, v51, v51
    v_and_b32 v51, 0xffff0000, v51
    v_mul_f32 v52, s14, v51
    v_mul_f32 v53, {f2u(1/(2*math.pi))}, v51
    """)
    wavemax(k,54,55)
    k("v_mul_f32 v54, -v52, v54\nv_mov_b32 v55, 0")

def gen_k1(diag=False, st_sc="", pf_w2=True, kgd=False, early=40, gpos=((20,60),(20,60),()), prioM=0, prioG=1, ngup=4, later=None):
    k=K("ssm_kernel",(256,1,1),(512,1,1),LDS1,vgpr=256,sgpr=102,hazard=True)
    T=Stamps(k,diag)
    X="s[16:17]"; PTR=["s[18:19]","s[20:21]","s[22:23]","s[24:25]","s[26:27]","s[28:29]"]; LDT="s[30:31]"
    DSK="s[32:33]"; DBG="s[40:41]"; WS="s[42:43]"
    def kgstamp():
        if kgd: k("s_memtime s[66:67]\ns_waitcnt lgkmcnt(0)\ns_mov_b32 s100, s98\ns_mov_b32 s98, s96\ns_mov_b32 s96, s94\ns_mov_b32 s94, s76\ns_mov_b32 s76, s74\ns_mov_b32 s74, s66")
    T()
    k(f"""
    s_load_dwordx16 s[16:31], s[0:1], 0
    s_load_dwordx4 s[40:43], s[0:1], 112
    s_load_dwordx2 s[32:33], s[0:1], 64
    s_memrealtime s[46:47]
    s_cmp_ge_u32 s2, 256
    s_cbranch_scc1 L1_end
    s_getpc_b64 s[70:71]
    v_lshlrev_b32 v255, 7, v0
    v_min_u32 v255, L1_end-ssm_kernel-64, v255
    global_load_dword v255, v255, s[70:71]
    v_lshrrev_b32 v2, 6, v0
    v_and_b32 v1, 63, v0
    v_readfirstlane_b32 s3, v2
    s_cmp_ge_u32 s2, 160
    s_cbranch_scc1 L1_spare
    s_and_b32 s4, s2, 7
    s_mul_i32 s4, s4, 80
    s_lshr_b32 s68, s2, 3
    s_lshl_b32 s5, s68, 2
    s_add_u32 s4, s4, s5
    s_and_b32 s9, s3, 3
    s_add_u32 s5, s4, s9
    s_mul_i32 s6, s5, 384
    v_lshl_add_u32 v2, v1, 1, s6
    s_lshl_b32 s7, s5, 1
    v_mov_b32 v3, s7
    v_mov_b32 v50, 0
    """)
    for r in range(16,34,2): k(f"v_mov_b64 {vr(r,2)}, 0")
    k(f"s_cmp_ge_u32 s3, 4\ns_waitcnt lgkmcnt(0)\nglobal_load_short_d16_hi v50, v3, {LDT}")
    for c in range(3):
        for j in range(2): k(f"global_load_short_d16_hi v{16+6*c+j}, v2, {PTR[j]} offset:{128*c}")
    k("s_cbranch_scc0 L1_M")
    for c in range(3):
        for j in range(2,6): k(f"global_load_short_d16_hi v{16+6*c+j}, v2, {PTR[j]} offset:{128*c}")
    k("s_branch L1_A")
    T2=Stamps(k,diag); T2.n=1
    k(f"""
L1_spare:
    s_sub_u32 s4, s2, 160
    s_mul_i32 s10, s4, 7
    s_add_u32 s10, s10, s3
    v_lshrrev_b32 v4, 5, v1
    v_mul_u32_u24 v4, 1280, v4
    v_and_b32 v5, 31, v1
    v_lshl_add_u32 v4, v5, 3, v4
    s_mul_i32 s11, s10, 5120
    v_add_u32 v4, s11, v4
    v_mov_b32 v6, 0
    s_mov_b32 s52, 0x3f803f80
    s_cmp_eq_u32 s3, 7
    s_waitcnt lgkmcnt(0)
    s_cbranch_scc1 L1_pollw
    s_cmp_ge_u32 s10, 512
    s_cbranch_scc1 L1_bar
    """)
    for p in range(2):
        for i in range(5): k(f"global_load_dwordx2 {vr(16+10*p+2*i,2)}, v4, {X} offset:{2560*p+256*i}")
    for r in range(160,164): k(f"v_mov_b32 v{r}, 0")
    k(f"""
    v_and_b32 v8, 1, v1
    v_cmp_eq_u32 vcc, 1, v8
    v_lshlrev_b32 v9, 4, v1
    s_lshl_b32 s11, s3, 5
    v_add_u32 v9, s11, v9
    s_waitcnt vmcnt(0)
    """)
    T2()
    for i in range(10):
        for p in range(2):
            k(f"v_dot2_f32_bf16 v{160+p}, v{16+10*p+i}, s52, v{160+p}\nv_dot2_f32_bf16 v{162+p}, v{16+10*p+i}, v{16+10*p+i}, v{162+p}")
    reduce32(k,list(range(160,164)),list(range(168,172)))
    k(f"""
    v_cndmask_b32 v160, v160, v161, vcc
    v_cndmask_b32 v164, v162, v163, vcc
    """)
    ln_finalize(k,160,164,168,170,171)
    k(f"""
    v_rcp_f32 v172, v171
    v_mov_b32 v176, v170
    v_mov_b32 v173, v172
    v_permlane32_swap_b32 v170, v176
    v_permlane32_swap_b32 v172, v173
    v_lshrrev_b32 v170, 16, v170
    v_or_b32 v174, v170, v176
    s_mov_b64 exec, 3
    ds_write_b128 v9, v[172:175]
    s_mov_b64 exec, -1
    s_branch L1_bar
L1_pollw:
    global_load_dword v8, v6, {WS}
    s_mul_i32 s11, s4, 14
    v_add_u32 v9, s11, v1
    v_cmp_gt_u32 s[60:61], 14, v1
    v_cmp_gt_u32 vcc, 0x400, v9
    s_and_b64 s[60:61], s[60:61], vcc
    v_lshlrev_b32 v9, 4, v9
    v_lshlrev_b32 v10, 4, v1
L1_pollw2:
    global_load_dword v7, v6, {DBG} sc1
    s_waitcnt vmcnt(0)
    v_cmp_eq_u32 vcc, 0, v7
    s_cbranch_vccnz L1_pollw2
    s_barrier
    ds_read_b128 v[172:175], v10
    s_mov_b64 exec, s[60:61]
    s_waitcnt lgkmcnt(0)
    s_cbranch_execz L1_pub
    v_mov_b32 v175, v7
    global_store_dwordx4 v9, v[172:175], {WS} sc1
L1_pub:
    s_mov_b64 exec, -1
    s_branch L1_cs
L1_bar:
    s_waitcnt lgkmcnt(0)
    s_barrier
L1_cs0:
    s_branch L1_cs
    """)
    k(f"""
L1_M:
    global_load_ushort v49, v3, {DSK}
    s_or_b32 s12, s2, s3
    s_cmp_lg_u32 s12, 0
    s_cbranch_scc1 L1_nononce
    s_or_b32 s46, s46, 1
    v_mov_b32 v6, s46
    v_mov_b32 v7, 0
    s_mov_b64 exec, 1
    global_store_dword v7, v6, {DBG} sc1
    s_mov_b64 exec, -1
L1_nononce:
    s_mul_i32 s10, s3, {2*HB}
    s_mul_i32 s62, s3, {2*LB}
    s_add_u32 s11, s62, {LO0+LB}
    s_mul_i32 s12, s3, {US}
    s_add_u32 s12, s12, {UB}
    s_add_u32 s13, s10, {HB}
    s_add_u32 s63, s62, {LO0}
    s_mov_b32 m0, s62
    s_mov_b32 s60, {LB}
    v_mov_b32 v6, 0x3c00
    ds_write_addtid_b32 v6 offset:{LO0}
    ds_write_addtid_b32 v6 offset:{LO0+LB}
    """)
    for r in range(112,128,2): k(f"v_mov_b64 {vr(r,2)}, 0")
    k(f"""
    v_lshl_add_u32 v6, v1, 3, s12
    ds_write_b64 v6, v[112:113]
    v_and_b32 v7, 3, v1
    v_lshl_add_u32 v107, v7, 3, s11
    v_and_b32 v9, 31, v1
    v_lshrrev_b32 v10, 5, v1
    v_mul_u32_u24 v8, 272, v9
    v_lshl_add_u32 v8, v10, 4, v8
    v_add_u32 v108, s63, v8
    v_add_u32 v8, s10, v8
    v_lshl_add_u32 v11, v9, 4, s13
    v_lshl_add_u32 v11, v10, 3, v11
    v_sub_u32 v6, 3, v10
    v_lshlrev_b32 v6, v6, v9
    v_lshl_add_u32 v12, v10, 8, v6
    v_add3_u32 v12, v12, s13, 64
    v_add_u32 v12, 448, v12
    v_mul_u32_u24 v13, 124, v10
    v_add3_u32 v13, v13, v12, 4
    v_lshl_add_u32 v14, v9, 1, s13
    v_lshl_add_u32 v14, v10, 8, v14
    v_sub_u32 v6, 4, v10
    v_lshlrev_b32 v6, v6, v9
    v_lshlrev_b32 v15, 9, v10
    v_add3_u32 v15, v15, v6, s13
    v_lshl_add_u32 v102, v1, 2, s13
    v_lshl_add_u32 v103, v1, 1, s13
    v_lshl_add_u32 v104, v1, 4, s11
    v_and_b32 v6, 1, v1
    v_mul_u32_u24 v7, 0x0202, v6
    v_add_u32 v105, 0x03020100, v7
    v_lshlrev_b32 v7, 16, v7
    v_add_u32 v106, 0x01000100, v7
    v_mul_u32_u24 v7, 4158, v6
    v_sub_u32 v224, s11, v7
    v_and_b32 v6, 15, v1
    v_bfe_u32 v7, v1, 4, 1
    v_lshl_add_u32 v224, v6, 1, v224
    v_lshl_add_u32 v224, v10, 5, v224
    v_lshlrev_b32 v9, 4, v7
    v_sub_u32 v224, v224, v9
    v_add_u32 v224, {32-14+4158}, v224
    v_add_u32 v225, 1024, v224
    v_add_u32 v226, 2048, v224
    v_add_u32 v227, 3072, v224
    v_sub_u32 v228, v6, v10
    v_lshl_add_u32 v228, v228, 5, v9
    s_add_u32 s13, s12, {512-64}
    v_add_u32 v228, s13, v228
    v_lshrrev_b32 v9, 4, v1
    v_lshlrev_b32 v230, 5, v6
    v_lshl_add_u32 v230, v9, 3, v230
    s_lshl_b32 s13, s3, 12
    s_add_u32 s13, s13, {XB0}
    v_add_u32 v229, s13, v230
    s_lshl_b32 s13, s5, 12
    s_add_u32 s13, s13, {WS_HT}
    v_add_u32 v230, s13, v230
    s_lshl_b32 s13, s3, 3
    s_add_u32 s13, s13, {SC0}
    v_mov_b32 v231, s13
    s_mov_b32 s48, 0x01000100
    s_mov_b32 s49, 0x03020302
    s_mov_b32 s51, 0x07060100
    v_lshlrev_b32 v7, 3, v9
    v_sub_u32 v48, v7, v6
    v_add_u32 v48, 7, v48
    v_lshl_or_b32 v48, v10, 8, v48
    v_and_b32 v6, 1, v48
    v_lshlrev_b32 v6, 4, v6
    v_lshrrev_b32 v48, 1, v48
    v_cmp_eq_u32 s[52:53], 0, v48
    v_cmp_eq_u32 s[54:55], 1, v48
    v_cmp_eq_u32 s[56:57], 2, v48
    v_cmp_eq_u32 s[58:59], 3, v48
    s_waitcnt vmcnt(0)
    v_lshlrev_b32 v49, v6, v49
    """)
    prep(k)
    for j in range(4): k(f"v_cndmask_b32 v{236+j}, 0, v49, s[{52+2*j}:{53+2*j}]")
    k(f"s_mov_b32 s14, 0\ns_mov_b32 s15, {HB}")
    if prioM: k(f"s_setprio {prioM}")
    T()
    if kgd: k("s_memtime s[72:73]")
    k("L1_kgM:")
    mf=[f"v_mfma_f32_32x32x16_f16 v[112:127], {vr(128+8*i,4)}, {vr(132+8*i,4)}, v[112:127]" for i in range(8)]
    L=lambda j: 64+j
    ops=["v_pk_fma_f32 v[56:57], v[16:17], v[52:53], v[54:55]"]+cexp(58,8.,60,61)+["v_mov_b64 v[16:17], v[22:23]","v_mov_b64 v[22:23], v[28:29]"]
    z=58
    for b in (1,2,4,8,16):
        ops+=[f"v_cvt_pk_f16_f32 v{L(b)}, v{z}, v{z+1}", f"ds_write_addtid_b32 v{L(b)} offset:{LO0+272*b}"]
        if b<16:
            z2=36+4*(b.bit_length()-1); ops+=cmul(z2,z,z,z2+2); z=z2
    ti=0
    for j in range(1,32):
        if j&(j-1):
            ops+=cmul16(L(j),L(j&(j-1)),L(j&-j),96+(ti%6))+[f"ds_write_addtid_b32 v{L(j)} offset:{LO0+272*j}"]; ti+=1
    ops=sched(ops)
    cut=len(ops)-48
    for x in ops[:cut]: k(x)
    nwr=sum("ds_write" in x for x in ops[:cut])
    k(f"s_cmp_eq_u32 s14, 0\ns_cbranch_scc1 L1_nomf\ns_waitcnt lgkmcnt({min(15,nwr)})")
    tl=ops[cut:]
    for i,x in enumerate(tl):
        if i%6==0: k(mf[i//6])
        k(x)
    k("s_branch L1_mfdone\nL1_nomf:")
    for x in tl: k(x)
    k("L1_mfdone:\ns_waitcnt lgkmcnt(0)")
    kgstamp()
    k("s_barrier")
    kgstamp()
    for i in range(8):
        k(f"ds_read_b128 {vr(128+8*i,4)}, v8 offset:{32*i}\nds_read_b128 {vr(132+8*i,4)}, v108 offset:{32*i}")
    k(f"""
    s_add_u32 s14, s14, 1
    s_add_u32 m0, m0, s60
    v_add_u32 v8, s15, v8
    v_add_u32 v108, s60, v108
    s_sub_u32 s15, 0, s15
    s_sub_u32 s60, 0, s60
    s_cmp_lt_u32 s14, 3
    s_cbranch_scc1 L1_kgM
    """)
    T()
    AB=[64,128]; BB=[96,160]; ACC=192
    k("ds_read_b32 v110, v231")
    for c in range(8): k(f"ds_read_b64 {vr(64+2*c,2)}, v229 offset:{512*c}")
    k(f"""
    v_mov_b64 v[100:101], 0
    ds_write_b64 v107, v[100:101]
    ds_write_b64 v107, v[100:101] offset:4160
    s_waitcnt lgkmcnt(11)
    """)
    for i,x in enumerate(mf):
        k(x)
        if i==1: k("s_waitcnt lgkmcnt(2)")
        if i>=1:
            for c in ([0,1] if i==1 else [i]):
                k(f"v_lshlrev_b32 v{ACC+4*c}, 16, v{64+2*c}\nv_and_b32 v{ACC+4*c+1}, 0xffff0000, v{64+2*c}\nv_lshlrev_b32 v{ACC+4*c+2}, 16, v{65+2*c}\nv_and_b32 v{ACC+4*c+3}, 0xffff0000, v{65+2*c}")
    k("v_cmp_neq_f32 vcc, 0, v54")
    for i in range(6): k(f"v_pk_mul_f32 {vr(112+2*i,2)}, {vr(112+2*i,2)}, v[110:111] op_sel:[0,0] op_sel_hi:[1,0]")
    k("s_cbranch_vccnz L1_grow\nL1_grown:")
    for i in range(6): k(f"v_cvt_pk_bf16_f32 v{128+i}, v{112+2*i}, v{113+2*i}")
    k(f"""
    ds_write_b64 v11, v[128:129]
    ds_write_b32 v12, v130
    ds_write_b32 v13, v131
    ds_write_b16 v14, v132 offset:1024
    ds_write_b16_d16_hi v14, v132 offset:1088
    ds_write_b16 v14, v133 offset:1152
    ds_write_b16_d16_hi v14, v133 offset:1216
    ds_read_b64 v[136:137], v15
    ds_read_b64 v[138:139], v15 offset:8
    ds_read_b32 v140, v15 offset:16
    ds_read2_b32 v[142:143], v102 offset0:192 offset1:193
    ds_read_u16 v144, v103 offset:1024
    ds_read_u16 v145, v103 offset:1152
    ds_read_u16_d16_hi v146, v103 offset:1026
    ds_read_u16_d16_hi v147, v103 offset:1154
    s_waitcnt lgkmcnt(5)
    v_mov_b64 v[148:149], v[136:137]
    v_mov_b64 v[150:151], v[138:139]
    v_alignbit_b32 v152, v137, v136, 16
    v_alignbit_b32 v153, v138, v137, 16
    v_alignbit_b32 v154, v139, v138, 16
    v_alignbit_b32 v155, v140, v139, 16
    s_mov_b32 exec_lo, 0
    v_perm_b32 v148, v136, v136, s48
    v_mov_b32 v149, v152
    v_perm_b32 v150, v137, v137, s48
    v_mov_b32 v151, v153
    v_mov_b32 v152, v136
    v_mov_b32 v153, v150
    v_mov_b32 v154, v137
    v_perm_b32 v155, v138, v138, s48
    s_mov_b32 exec_lo, -1
    ds_write_b128 v104, v[148:151] offset:32
    ds_write_b128 v104, v[152:155] offset:{32+4160}
    ds_write_b16 v104, v136 offset:{32+4160-2}
    s_waitcnt lgkmcnt(7)
    v_perm_b32 v156, v142, v142, s48
    v_mov_b32 v157, v142
    v_perm_b32 v158, v142, v142, s49
    v_perm_b32 v159, v143, v143, s48
    v_mov_b32 v160, v156
    v_mov_b32 v161, v158
    v_alignbit_b32 v162, v143, v142, 16
    v_mov_b32 v163, v159
    ds_write_b128 v104, v[156:159] offset:{32+1024}
    ds_write_b128 v104, v[160:163] offset:{32+4160+1024}
    s_waitcnt lgkmcnt(5)
    v_perm_b32 v144, v146, v144, s51
    v_perm_b32 v145, v147, v145, s51
    """)
    for q,src,b in ((2,144,164),(3,145,172)):
        k(f"""
        v_perm_b32 v{b}, v{src}, v{src}, s48
        v_perm_b32 v{b+3}, v{src}, v{src}, s49
        v_perm_b32 v{b+2}, v{src}, v{src}, v105
        v_mov_b32 v{b+1}, v{b}
        v_mov_b32 v{b+4}, v{b}
        v_perm_b32 v{b+5}, v{src}, v{src}, v106
        v_mov_b32 v{b+6}, v{b+3}
        v_mov_b32 v{b+7}, v{b+3}
        ds_write_b128 v104, {vr(b,4)} offset:{32+1024*q}
        ds_write_b128 v104, {vr(b+4,4)} offset:{32+4160+1024*q}
        """)
    def loads(buf,second,which="AB"):
        o=[]
        for a in range(8):
            off=(a&1)*128+(16 if second else 0)
            if "A" in which:
                o.append(f"ds_read2_b32 {vr(AB[buf]+4*a,2)}, v{224+(a>>1)} offset0:{off} offset1:{off+1}")
                o.append(f"ds_read2_b32 {vr(AB[buf]+4*a+2,2)}, v{224+(a>>1)} offset0:{off+2} offset1:{off+3}")
            if "B" in which:
                o.append(f"ds_read_b128 {vr(BB[buf]+4*a,4)}, v228 offset:{512*a+(0 if second else 64)}")
        return o
    def mfs(buf):
        return [f"v_mfma_f32_16x16x32_bf16 {vr(ACC+4*c,4)}, {vr(AB[buf]+4*a,4)}, {vr(BB[buf]+4*(c-a),4)}, {vr(ACC+4*c,4)}" for a in range(8) for c in range(a,8)]
    for x in loads(0,False,"A"): k(x)
    T()
    k("s_barrier")
    T()
    for x in loads(0,False,"B"): k(x)
    k("s_mov_b32 s14, 0")
    for c in range(8): k(f"s_waitcnt lgkmcnt({7-c})\nv_mfma_f32_16x16x32_bf16 {vr(ACC+4*c,4)}, v[236:239], {vr(BB[0]+4*c,4)}, {vr(ACC+4*c,4)}")
    k("L1_cv:\ns_waitcnt lgkmcnt(0)")
    def inter(m,l,extra=[]):
        o=[];li=0
        l=l+extra
        for i,x in enumerate(m):
            o.append(x)
            if li<len(l): o.append(l[li]); li+=1
        return o
    for x in inter(mfs(0),loads(1,True),[f"v_add_u32 v{224+i}, 128, v{224+i}" for i in range(4)]+["v_subrev_u32 v228, 128, v228"]): k(x)
    k("s_waitcnt lgkmcnt(0)")
    for x in inter(mfs(1),loads(0,False),["s_add_u32 s14, s14, 1","s_cmp_lt_u32 s14, 4"]): k(x)
    k("s_cbranch_scc1 L1_cv")
    T()
    for c in range(8):
        k(f"""
        v_cvt_pk_bf16_f32 v{64+2*c}, v{ACC+4*c}, v{ACC+4*c+1}
        v_cvt_pk_bf16_f32 v{65+2*c}, v{ACC+4*c+2}, v{ACC+4*c+3}
        global_store_dwordx2 v230, {vr(64+2*c,2)}, {WS} offset:{512*c} {st_sc}
        """)
    if diag:
        k("s_waitcnt vmcnt(0)"); T(); T.flush(WS,0)
    k("s_endpgm")
    TA=Stamps(k,diag); TA.n=1
    k(f"""
L1_A:
    s_lshl_b32 s8, s4, 1
    v_and_b32 v0, 255, v0
    v_mul_u32_u24 v4, 10240, v0
    v_add_u32 v4, s8, v4
    v_add_u32 v5, 5120, v4
    s_mul_i32 s10, s9, {2*HB}
    v_lshlrev_b32 v231, 6, v0
    v_lshlrev_b32 v232, 4, v0
    v_add_u32 v233, {XB0}, v232
    v_add_u32 v232, {UB+512}, v232
    v_mov_b32 v234, 0
    s_lshl_b32 s13, s9, 3
    s_add_u32 s13, s13, {SC0}
    v_mov_b32 v235, s13
    s_mov_b32 m0, s10
    s_mov_b32 s60, {HB}
    s_mov_b32 s52, 0x05040100
    s_mov_b32 s53, 0x07060302
    """)
    for i in range(ngup): k("s_call_b64 s[70:71], L1_gat")
    TA()
    k(f"s_waitcnt vmcnt({12+ngup})")
    prep(k)
    k(f"s_waitcnt vmcnt({ngup})")
    for x in merge(*[cmul(18+6*c,20+6*c,18+6*c,56+2*c) for c in range(3)]): k(x)
    k("""
    v_max3_f32 v56, abs(v18), abs(v19), abs(v24)
    v_max3_f32 v57, abs(v25), abs(v30), abs(v31)
    v_max_f32 v56, v56, v57
    """)
    wavemax(k,56,57)
    k("""
    v_frexp_exp_i32_f32 v56, v56
    v_sub_u32 v57, 14, v56
    v_subrev_u32 v56, 14, v56
    v_ldexp_f32 v56, v51, v56
    ds_write_b32 v235, v56
    """)
    for c in range(3): k(f"v_ldexp_f32 v{18+6*c}, v{18+6*c}, v57\nv_ldexp_f32 v{19+6*c}, v{19+6*c}, v57\nv_cvt_pk_f16_f32 v{20+6*c}, v{18+6*c}, -v{19+6*c}")
    if prioG: k(f"s_setprio {prioG}")
    TA()
    if kgd: k("s_memtime s[72:73]")
    def stats_list():
        return [f"global_load_dwordx4 {vr(104+4*j,4)}, v231, {WS} offset:{16*j} sc1" for j in range(4)]+[f"global_load_dword v120, v234, {DBG} sc1"]
    def stats_loads():
        for x in stats_list(): k(x)
    ngat=ngup
    XB=192
    def xwrite():
        o=[f"s_waitcnt vmcnt(0)"]
        for c in range(4):
            for w in range(4): o.append(f"v_perm_b32 v{160+4*c+w}, v{36+4*w+(c>>1)}, v{34+4*w+(c>>1)}, s{52+(c&1)}")
            o.append(f"ds_write_b128 v233, {vr(160+4*c,4)} offset:{4096*c}")
        return o
    for c in range(3):
        H0=20+6*c
        ops=[f"v_pk_fma_f32 v[56:57], {vr(16+6*c,2)}, v[52:53], v[54:55]"]+cexp(58,1,60,61)+cexp(62,256.,64,65)+[f"ds_write_addtid_b32 v{H0} offset:0"]
        E={1:90,2:91,4:92}; Q={1:93,2:94,4:95}
        for z,D,zt in ((58,E,66),(62,Q,74)):
            for b in (1,2,4):
                ops.append(f"v_cvt_pk_f16_f32 v{D[b]}, v{z}, -v{z+1}")
                if b<4: ops+=cmul(zt,z,z,zt+2); z=zt; zt+=4
        R={0:H0}; rows={0:0,1:1,2:2,3:3,4:4,5:5,6:6,7:7,256:8,258:9,260:10,262:11,512:12,516:13,768:14,772:15,1024:16,1280:17,1536:18,1792:19,2048:20}
        ti=0
        for e,a,m in ((1,0,E[1]),(2,0,E[2]),(4,0,E[4]),(256,0,Q[1]),(512,0,Q[2]),(1024,0,Q[4]),(3,2,E[1]),(5,4,E[1]),(6,4,E[2]),(768,512,Q[1]),(1280,1024,Q[1]),(1536,1024,Q[2]),(2048,1024,Q[4]),(258,2,Q[1]),(260,4,Q[1]),(516,4,Q[2]),(7,6,E[1]),(1792,1536,Q[1]),(262,6,Q[1]),(772,516,Q[1])):
            R[e]=128+rows[e]
            ops+=cmul16(R[e],R[a],m,96+(ti%6))+[f"ds_write_addtid_b32 v{R[e]} offset:{272*rows[e]}"]; ti+=1
        ops=sched(ops)
        for i,x in enumerate(ops):
            if i in gpos[c]: k("s_call_b64 s[70:71], L1_gat"); ngat+=1
            k(x)
        if c<2: k(f"s_add_u32 m0, m0, s60\ns_sub_u32 s60, 0, s60")
        if c==2:
            for x in xwrite(): k(x)
            stats_loads()
        k("s_waitcnt lgkmcnt(0)")
        kgstamp()
        k("s_barrier")
        kgstamp()
    assert ngat==8
    TA()
    for c in range(4):
        for i in range(8):
            k(f"v_lshlrev_b32 v{XB+8*c+i}, 16, v{34+2*i+(c>>1)}" if c&1==0 else f"v_and_b32 v{XB+8*c+i}, 0xffff0000, v{34+2*i+(c>>1)}")
    k(f"""
L1_poll:
    s_waitcnt vmcnt(0)
    v_cmp_ne_u32 vcc, v107, v120
    v_cmp_ne_u32 s[60:61], v111, v120
    v_cmp_ne_u32 s[62:63], v115, v120
    v_cmp_ne_u32 s[64:65], v119, v120
    v_cmp_eq_u32 s[66:67], 0, v120
    s_or_b64 vcc, vcc, s[60:61]
    s_or_b64 s[62:63], s[62:63], s[64:65]
    s_or_b64 vcc, vcc, s[66:67]
    s_or_b64 vcc, vcc, s[62:63]
    s_cbranch_vccz L1_go
    s_sleep 1
    """)
    stats_loads()
    k("s_branch L1_poll\nL1_go:")
    TA()
    for j in range(4):
        k(f"""
        v_lshlrev_b32 v{82+2*j}, 16, v{106+4*j}
        v_and_b32 v{83+2*j}, 0xffff0000, v{106+4*j}
        v_pk_mul_f32 {vr(82+2*j,2)}, {vr(82+2*j,2)}, {vr(104+4*j,2)} neg_lo:[1,0] neg_hi:[1,0]
        """)
    UBR=128
    for c in range(4):
        for j in range(4):
            k(f"v_pk_fma_f32 {vr(UBR+8*c+2*j,2)}, {vr(XB+8*c+2*j,2)}, {vr(104+4*j,2)}, {vr(82+2*j,2)}")
        for w in range(4):
            k(f"v_cvt_pk_bf16_f32 v{160+4*c+w}, v{UBR+8*c+7-2*w}, v{UBR+8*c+6-2*w}")
        k(f"ds_write_b128 v232, {vr(160+4*c,4)} offset:{US*c}")
    k("s_waitcnt lgkmcnt(0)\ns_barrier")
    if diag:
        TA(); TA.flush(WS,0)
    k("s_endpgm")
    k("L1_grow:\nv_and_b32 v128, 31, v1\nv_lshlrev_b32 v128, 3, v128\nv_cmp_gt_u32 vcc, 32, v1")
    hi=[0,1,2,3,4,5,6,7,256,258,260,262,512,516,768,772,1024,1280,1536,1792,2048,2048,2048,2048]
    for r in range(12):
        q,i=divmod(r,4)
        k(f"""
        v_mov_b32 v129, {hi[8*q+4+i]}
        v_mov_b32 v130, {hi[8*q+i]}
        v_cndmask_b32 v129, v129, v130, vcc
        v_add_u32 v129, v129, v128
        v_cvt_f32_u32 v129, v129
        v_mul_f32 v129, -v54, v129
        v_exp_f32 v129, v129
        v_mul_f32 v{112+r}, v{112+r}, v129
        """)
    k("s_branch L1_grown")
    k("L1_gat:\ns_bitcmp1_b32 s68, 2\ns_cbranch_scc1 L1_gat4")
    for hi4 in (0,4):
        if hi4: k("L1_gat4:")
        k(f"s_bitcmp1_b32 s68, 1\ns_cbranch_scc1 L1_gat{hi4+2}b")
        for hi2 in (0,2):
            if hi2: k(f"L1_gat{hi4+2}b:")
            i0=hi4+hi2
            k(f"s_bitcmp1_b32 s68, 0\ns_cbranch_scc1 L1_gat{i0+1}c")
            for lo in (0,1):
                i=i0+lo
                if lo: k(f"L1_gat{i}c:")
                k(f"global_load_dwordx2 {vr(34+2*i,2)}, v{4+(i>>2)}, {X} offset:{1280*(i&3)}\ns_add_u32 s68, s68, 1\ns_setpc_b64 s[70:71]")
    k(f"""
L1_cs:
    """)
    T2()
    k(f"""
    s_load_dwordx4 s[36:39], s[0:1], 80
    s_load_dwordx2 s[56:57], s[0:1], 96
    ; w1/w3 strip: mat = s/48, n = (s%48)/3, ct = s%3
    s_cmp_ge_u32 s4, 48
    s_cselect_b32 s7, 1, 0
    s_mul_i32 s8, s7, 48
    s_sub_u32 s8, s4, s8
    s_mul_i32 s6, s8, 43
    s_lshr_b32 s6, s6, 7
    s_mul_i32 s9, s6, 3
    s_sub_u32 s9, s8, s9
    v_lshrrev_b32 v2, 2, v0
    v_mul_u32_u24 v2, 3072, v2
    v_and_b32 v3, 3, v0
    v_bfe_u32 v4, v0, 5, 1
    v_lshlrev_b32 v5, 1, v4
    v_xor_b32 v3, v3, v5
    v_lshl_add_u32 v2, v3, 4, v2
    s_lshl_b32 s10, s8, 6
    v_add_u32 v2, s10, v2
    v_lshrrev_b32 v5, 7, v0
    v_mul_u32_u24 v7, 12288, v5
    v_bfe_u32 v5, v0, 4, 3
    v_mul_u32_u24 v5, 768, v5
    v_and_b32 v8, 15, v0
    v_lshl_add_u32 v5, v8, 4, v5
    s_mul_i32 s10, s6, {20*12288}
    s_mul_i32 s11, s7, 6144
    s_add_u32 s10, s10, s11
    s_lshl_b32 s11, s9, 8
    s_add_u32 s10, s10, s11
    s_add_u32 s10, s10, {WS_W13}
    v_add3_u32 v7, v7, v5, s10
    s_mov_b32 s53, 0x00003f80
    s_mov_b32 s54, 0x3f800000
    s_mov_b32 s58, {1536*1280}
    s_mov_b32 s59, 0x20000
    s_mov_b32 s62, {640*3072}
    s_mov_b32 s63, 0x20000
    s_cmp_eq_u32 s7, 1
    s_waitcnt lgkmcnt(0)
    s_cselect_b32 s60, s38, s36
    s_cselect_b32 s61, s39, s37
    s_mov_b32 s12, 0
    """)
    for p in range(5): k(f"buffer_load_dwordx4 {vr(64+4*p,4)}, v2, s[60:63], s12 offen\ns_add_u32 s12, s12, {128*3072}")
    k(f"""
    s_cmp_ge_u32 s3, 4
    s_cbranch_scc1 L1_now2
    v_lshrrev_b32 v10, 4, v1
    v_bfe_u32 v11, v1, 3, 1
    v_bfe_u32 v12, v1, 1, 2
    v_lshl_add_u32 v11, v11, 3, v12
    v_and_b32 v12, 1, v1
    v_lshlrev_b32 v12, 4, v12
    s_and_b32 s12, s4, 1
    s_lshl_b32 s12, s12, 2
    s_add_u32 s12, s12, s3
    s_lshr_b32 s13, s4, 1
    s_mul_i32 s14, s12, 160
    s_mul_i32 s15, s13, {32*1280}
    s_add_u32 s14, s14, s15
    s_mul_i32 s15, s3, 5120
    s_add_u32 s15, s15, 4096
    s_mov_b32 m0, s15
    """)
    for i in range(5):
        k(f"""
        v_add_u32 v13, {4*i}, v10
        v_mul_u32_u24 v14, 52, v13
        v_lshrrev_b32 v14, 8, v14
        v_mad_i32_i24 v13, v14, -5, v13
        v_and_b32 v15, 1, v14
        v_lshrrev_b32 v14, 1, v14
        v_lshlrev_b32 v14, 4, v14
        v_lshl_add_u32 v14, v15, 2, v14
        v_add_u32 v14, v14, v11
        v_mul_u32_u24 v14, 1280, v14
        v_lshl_add_u32 v14, v13, 5, v14
        v_add_u32 v14, v14, v12
        buffer_load_dwordx4 v14, s[56:59], s14 offen lds
        s_add_u32 m0, m0, 1024
        """)
    k(f"""
    s_mul_i32 s12, s12, 48
    s_add_u32 s12, s12, s13
    s_mul_i32 s12, s12, 5120
    s_add_u32 s12, s12, {WS_W2}
    v_lshl_add_u32 v13, v1, 4, s12
    v_lshrrev_b32 v14, 5, v1
    v_mul_u32_u24 v14, 2560, v14
    v_bfe_u32 v15, v1, 4, 1
    v_lshl_add_u32 v14, v15, 7, v14
    v_lshl_add_u32 v14, v8, 3, v14
    v_add_u32 v14, s15, v14
    s_waitcnt vmcnt(0)
    """)
    for dt in range(5):
        for e in range(2): k(f"ds_read_b64_tr_b16 {vr(96+4*dt+2*e,2)}, v14 offset:{(e*5+dt)*256}")
    for dt in range(5): k(f"s_waitcnt lgkmcnt({8-2*dt})\nglobal_store_dwordx4 v13, {vr(96+4*dt,4)}, {WS} offset:{1024*dt-2048 if False else (1024*dt if dt<4 else 0)} sc1" if dt<4 else f"s_waitcnt lgkmcnt(0)\nv_add_u32 v13, 4096, v13\nglobal_store_dwordx4 v13, {vr(96+4*dt,4)}, {WS} sc1")
    k(f"""
L1_now2:
    s_cmp_lg_u32 s4, 95
    s_cbranch_scc1 L1_nozero
    v_lshlrev_b32 v10, 2, v0
    v_add_u32 v10, {WS_CNT}, v10
    global_store_dword v10, v6, {WS}
L1_nozero:
    """)
    if later:
        k(f"""
        s_getpc_b64 s[70:71]
L1_pc2:
        v_lshlrev_b32 v10, 6, v0
        v_add_u32 v10, L1_end-L1_pc2+64, v10
        v_min_u32 v10, {later}-L1_pc2-64, v10
        global_load_dword v254, v10, s[70:71]
        """)
    for r in range(16,24,2): k(f"v_mov_b64 {vr(r,2)}, 0")
    k(f"s_waitcnt vmcnt(0)")
    for p in range(5):
        k(f"global_store_dwordx4 v7, {vr(64+4*p,4)}, {WS} sc1\nv_add_u32 v7, {4*12288}, v7")
        for j in range(4):
            k(f"v_dot2_f32_bf16 v{16+2*j}, v{64+4*p+j}, s53, v{16+2*j}\nv_dot2_f32_bf16 v{17+2*j}, v{64+4*p+j}, s54, v{17+2*j}")
    R=list(range(16,24)); Tm=list(range(24,32))
    for rr in (4,8):
        for r in R: k(f"v_add_f32_dpp v{r}, v{r}, v{r} row_ror:{rr} row_mask:0xf bank_mask:0xf")
    for r,t in zip(R,Tm): k(f"v_mov_b32 v{t}, v{r}")
    for r,t in zip(R,Tm): k(f"v_permlane16_swap_b32 v{r}, v{t}")
    for r,t in zip(R,Tm): k(f"v_add_f32 v{r}, v{r}, v{t}")
    k(f"""
    s_lshl_b32 s12, s3, 8
    s_add_u32 s12, s12, 256
    v_lshl_add_u32 v10, v3, 5, s12
    v_lshl_add_u32 v10, v4, 7, v10
    ds_write_b128 v10, v[16:19]
    ds_write_b128 v10, v[20:23] offset:16
    s_waitcnt lgkmcnt(0)
    s_barrier
    s_cmp_lg_u32 s3, 0
    s_cbranch_scc1 L1_sdone
    v_lshlrev_b32 v10, 2, v1
    """)
    for i in range(8): k(f"ds_read_b32 v{16+i}, v10 offset:{256+256*i}")
    k(f"""
    s_mul_i32 s12, s7, 1536
    s_lshl_b32 s13, s8, 5
    s_add_u32 s12, s12, s13
    s_lshl_b32 s12, s12, 2
    s_add_u32 s12, s12, {WS_COLSUM}
    v_add_u32 v10, s12, v10
    s_waitcnt lgkmcnt(0)
    """)
    for a,b in ((16,17),(18,19),(20,21),(22,23),(16,18),(20,22),(16,20)): k(f"v_add_f32 v{a}, v{a}, v{b}")
    k(f"""
    v_mov_b32 v17, v16
    v_permlane32_swap_b32 v16, v17
    v_add_f32 v16, v16, v17
    s_mov_b32 exec_hi, 0
    global_store_dword v10, v16, {WS}
    s_mov_b32 exec_hi, -1
L1_sdone:
    """)
    if diag:
        k("s_waitcnt vmcnt(0)"); T2(); T2.flush(WS,0)
    k("L1_end:\ns_endpgm")
    return k
if __name__=="__main__":
    open("t1.s","w").write(emit([gen_k1(diag=True)],verbose=True))
```

```python
from ag import *
from common import *
from k1 import Stamps, ln_finalize
import math
STAGE=20480; NST=7; CSL=STAGE*NST; PRT=CSL+1024; STA=PRT+1024; LDS2=STA+2048
def gen_k2(diag=False, st_sc="", name="gemm1_kernel", slot=1, pfx="L2_", cyc=False, prio=0, n0=3, step=2, span=18, var='', lprio=0, dry=False):
    k=K(name,(256,1,1),(512,1,1),LDS2,vgpr=256,sgpr=102,hazard=True)
    T=Stamps(k,diag)
    WS="s[42:43]"
    T()
    k(f"""
    s_load_dwordx2 s[42:43], s[0:1], 120
    s_cmp_ge_u32 s2, 256
    s_cbranch_scc1 L2_end
    v_lshrrev_b32 v2, 6, v0
    v_and_b32 v1, 63, v0
    v_readfirstlane_b32 s3, v2
    s_and_b32 s6, s2, 3
    s_lshl_b32 s6, s6, 2
    s_bfe_u32 s7, s2, 0x20003
    s_add_u32 s6, s6, s7
    s_bfe_u32 s7, s2, 0x10002
    s_lshl_b32 s7, s7, 3
    s_lshr_b32 s5, s2, 5
    s_add_u32 s7, s7, s5
    s_mov_b32 s54, {640*4096}
    s_mov_b32 s55, 0x20000
    s_cmp_lt_u32 s3, 4
    s_cbranch_scc1 L2_cons
    s_sub_u32 s3, s3, 4
    s_setprio {lprio}
    v_bfe_u32 v4, v1, 2, 2
    v_and_b32 v5, 3, v1
    v_lshrrev_b32 v3, 4, v1
    s_lshl_b32 s8, s3, 3
    v_add_u32 v6, s8, v4
    v_lshlrev_b32 v6, 12, v6
    v_lshl_add_u32 v6, v3, 6, v6
    s_and_b32 s9, s3, 1
    s_lshl_b32 s8, s9, 1
    v_xor_b32 v7, s8, v5
    v_lshl_add_u32 v6, v7, 4, v6
    s_lshl_b32 s8, s7, 8
    v_add_u32 v13, s8, v6
    v_add_u32 v14, 16384, v13
    v_lshlrev_b32 v10, 4, v1
    s_mul_i32 s20, s3, 3072
    s_mul_i32 s26, s6, {20*12288}
    s_add_u32 s26, s26, s20
    s_lshl_b32 s23, s3, 11
    s_add_u32 s23, s23, 12288
    s_mov_b32 s50, {16*20*12288}
    s_mov_b32 s51, 0x20000
    s_mov_b32 s27, 0
    s_mov_b32 s28, 0
    s_waitcnt lgkmcnt(0)
    s_add_u32 s48, s42, {WS_W13}
    s_addc_u32 s49, s43, 0
    s_add_u32 s52, s42, {WS_HT}
    s_addc_u32 s53, s43, 0
    """)
    def dma():
        o=[]
        for e in range(2):
            o+=[f"s_add_u32 m0, s28, s23" if e==0 else "s_add_u32 m0, m0, 1024", "s_nop 0", f"buffer_load_dwordx4 v{13+e}, s[52:55], s27 offen lds"]
        o+=["s_add_u32 m0, s28, s20",f"s_add_u32 s28, s28, {STAGE}"]
        for i in range(3): o+=[f"buffer_load_dwordx4 v10, s[48:51], s26 offen offset:{1024*i} lds"]
        o+=[f"s_add_u32 s26, s26, 12288", f"s_add_u32 s27, s27, {32*4096}", f"s_cmp_eq_u32 s28, {CSL}", "s_cselect_b32 s28, 0, s28"]
        if "nold" in var: o=[x for x in o if "buffer" not in x]
        return o
    CALL="s_call_b64 s[70:71], L2_dma"
    k("s_branch L2_go\nL2_dma:")
    for x in dma(): k(x)
    k("s_setpc_b64 s[70:71]\nL2_go:")
    for i in range(n0): k(CALL)
    k(f"""
    v_lshlrev_b32 v16, 4, v1
    v_add_u32 v42, {CSL}, v16
    s_lshl_b32 s8, s7, 4
    s_add_u32 s9, s8, s6
    s_lshl_b32 s9, s9, 10
    s_add_u32 s9, s9, {WS_PART}
    v_add_u32 v17, s9, v16
    s_mul_i32 s9, s7, {CSTR}
    s_add_u32 s9, s9, {WS_CNT}
    v_mov_b32 v18, s9
    v_mov_b32 v19, 1
    v_lshrrev_b32 v2, 4, v1
    v_add_u32 v20, s8, v2
    v_lshlrev_b32 v20, 10, v20
    v_bfe_u32 v3, v1, 3, 1
    v_lshl_add_u32 v20, v3, 9, v20
    v_and_b32 v3, 7, v1
    v_lshl_add_u32 v20, v3, 4, v20
    s_lshl_b32 s9, s3, 7
    s_add_u32 s9, s9, {WS_PART}
    v_add_u32 v20, s9, v20
    v_add_u32 v21, 8192, v20
    ; stats LDS write v22 = STA + (32L + 4*chunk + p4)*16
    v_lshl_add_u32 v22, v3, 2, v2
    s_lshl_b32 s9, s3, 5
    v_add_u32 v22, s9, v22
    v_lshlrev_b32 v22, 4, v22
    v_add_u32 v22, {STA}, v22
    v_cmp_lt_u32 vcc, 23, v1
    v_mov_b32 v6, {6144-384}
    s_mul_i32 s9, s6, 384
    s_add_u32 s9, s9, {WS_COLSUM}
    v_cndmask_b32 v6, 0, v6, vcc
    v_add3_u32 v15, v16, v6, s9
    """)
    if dry: k("s_barrier\ns_barrier")
    issued=n0; b=-1; sig=None
    while True:
        k(f"s_waitcnt vmcnt({5*(issued-(b+2))})\ns_barrier")
        if b==0:
            k(f"""
            s_cmp_lg_u32 s3, 0
            s_cbranch_scc1 L2_np
            ds_read_b128 v[24:27], v42 offset:1024
            global_load_dwordx4 v[28:31], v15, {WS}
            s_waitcnt lgkmcnt(0)
            global_store_dwordx4 v17, v[24:27], {WS} sc1
L2_np:
            """)
            sig=issued-1
        lim=min(issued+step,b+1+NST)
        while issued<lim: k(CALL); issued+=1
        b+=1
        if issued==b+NST and b>0: break
    assert sig>=b
    k(f"s_mov_b32 s30, {b}\nL2_lloop:\ns_waitcnt vmcnt({5*(NST-2)})\ns_barrier")
    k(f"""
    s_cmp_lg_u32 s30, {sig}
    s_cbranch_scc1 L2_nsig
    s_cmp_lg_u32 s3, 0
    s_cbranch_scc1 L2_nsig
    ds_write_b128 v42, v[28:31]
    s_mov_b64 exec, 1
    global_atomic_add v18, v19, {WS} sc1
    s_mov_b64 exec, -1
L2_nsig:
    {CALL}
    """)
    k(f"s_add_u32 s30, s30, 1\ns_cmp_lt_u32 s30, {20-NST}\ns_cbranch_scc1 L2_lloop")
    k(f"global_load_dword v23, v18, {WS} sc1")
    for sg in range(20-NST,20):
        left=max(0,19-(sg+1))
        if sg<15: k(f"s_waitcnt vmcnt({5*left+1})\ns_barrier")
        elif sg==15:
            k(f"""
            s_waitcnt vmcnt(0)
            s_barrier
L2_spin:
            v_cmp_ne_u32 vcc, 16, v23
            s_cbranch_vccz L2_cnt
            s_sleep 1
            global_load_dword v23, v18, {WS} sc1
            s_waitcnt vmcnt(0)
            s_branch L2_spin
L2_cnt:
            global_load_dwordx4 v[24:27], v20, {WS} sc1
            global_load_dwordx4 v[28:31], v20, {WS} offset:4096-0 sc1
            global_load_dwordx4 v[32:35], v21, {WS} sc1
            global_load_dwordx4 v[36:39], v21, {WS} offset:4096-0 sc1
            """.replace("v20, s[42:43] offset:4096-0","v40, s[42:43]").replace("v21, s[42:43] offset:4096-0","v41, s[42:43]"))
        else: k("s_barrier")
    k(f"""
    s_waitcnt vmcnt(0)
    v_pk_add_f32 v[24:25], v[24:25], v[28:29]
    v_pk_add_f32 v[26:27], v[26:27], v[30:31]
    v_pk_add_f32 v[32:33], v[32:33], v[36:37]
    v_pk_add_f32 v[34:35], v[34:35], v[38:39]
    v_pk_add_f32 v[24:25], v[24:25], v[32:33]
    v_pk_add_f32 v[26:27], v[26:27], v[34:35]
    v_permlane32_swap_b32 v24, v26
    v_permlane32_swap_b32 v25, v27
    v_add_f32 v24, v24, v26
    v_add_f32 v25, v25, v27
    v_permlane16_swap_b32 v24, v25
    v_add_f32 v24, v24, v25
    v_mov_b32_dpp v25, v24 row_ror:8 row_mask:0xf bank_mask:0xf
    """)
    ln_finalize(k,24,25,26,28,30)
    k(f"""
    v_rcp_f32 v29, v30
    v_mul_f32 v30, v30, v30
    s_mov_b32 exec_lo, 0x00ff00ff
    s_mov_b32 exec_hi, 0x00ff00ff
    v_mul_f32 v29, {f2u(-math.log2(math.e))}, v29
    ds_write_b128 v22, v[28:31]
    s_waitcnt lgkmcnt(0)
    s_barrier
    s_endpgm
    """)
    i=[n for n,l in enumerate(k.lines) if "stats LDS write" in l][0]
    k.lines[i:i]=["    v_add_u32 v40, 4096, v20","    v_add_u32 v41, 4096, v21"]
    k(f"""
L2_cons:
    v_lshrrev_b32 v2, 2, v1
    s_mul_i32 s8, s6, 40
    v_add_u32 v3, s8, v2
    v_lshlrev_b32 v3, 12, v3
    v_and_b32 v4, 3, v1
    v_lshl_add_u32 v3, v4, 4, v3
    s_lshl_b32 s8, s7, 8
    s_lshl_b32 s9, s3, 6
    s_add_u32 s8, s8, s9
    v_add_u32 v3, s8, v3
    v_lshrrev_b32 v5, 5, v1
    v_lshl_or_b32 v6, v5, 30, v3
    s_mov_b32 s9, 0x10000
    s_mov_b32 s10, 0x20000
    s_waitcnt lgkmcnt(0)
    s_add_u32 s52, s42, {WS_HT}
    s_addc_u32 s53, s43, 0
    buffer_load_dwordx4 v[112:115], v3, s[52:55], 0 offen
    buffer_load_dwordx4 v[116:119], v3, s[52:55], s9 offen
    buffer_load_dwordx4 v[120:123], v6, s[52:55], s10 offen
    """)
    if prio: k(f"s_setprio {prio}")
    k(f"""
    v_lshlrev_b32 v7, 9, v5
    v_lshl_add_u32 v7, v4, 5, v7
    v_bfe_u32 v6, v1, 4, 1
    v_lshl_add_u32 v7, v6, 4, v7
    s_lshl_b32 s8, s3, 7
    s_add_u32 s8, s8, {PRT}
    v_add_u32 v7, s8, v7
    v_and_b32 v8, 15, v1
    v_lshrrev_b32 v9, 4, v1
    v_lshlrev_b32 v10, 6, v2
    v_and_b32 v10, 0xc0, v10
    v_lshl_add_u32 v10, v4, 3, v10
    v_lshl_add_u32 v10, v6, 5, v10
    v_mul_u32_u24 v11, 1536, v9
    v_add_u32 v11, v11, v10
    s_and_b32 s8, s3, 1
    s_lshr_b32 s9, s3, 1
    s_lshl_b32 s10, s8, 5
    v_xor_b32 v12, s10, v11
    v_xor_b32 v13, 32, v12
    s_lshl_b32 s10, s8, 8
    v_add_u32 v12, s10, v12
    v_add_u32 v14, 256, v12
    s_lshl_b32 s10, s8, 9
    v_add_u32 v13, s10, v13
    v_lshl_add_u32 v15, v9, 11, v10
    s_lshl_b32 s10, s9, 9
    s_add_u32 s10, s10, 12288
    v_add_u32 v15, s10, v15
    v_xor_b32 v16, 32, v15
    s_mul_i32 s10, s8, 192
    s_add_u32 s10, s10, {CSL}
    v_lshl_add_u32 v17, v9, 4, s10
    s_lshl_b32 s10, s9, 10
    s_add_u32 s10, s10, {STA}
    v_lshl_add_u32 v19, v8, 4, s10
    s_lshl_b32 s10, s7, 3
    s_lshl_b32 s11, s9, 2
    s_add_u32 s10, s10, s11
    s_mul_i32 s10, s10, {48*1024}
    s_mul_i32 s11, s6, 3072
    s_add_u32 s10, s10, s11
    s_mul_i32 s11, s8, 1536
    s_add_u32 s10, s10, s11
    s_add_u32 s10, s10, {WS_HID}
    v_mul_u32_u24 v18, {48*1024}, v6
    v_lshl_add_u32 v18, v5, 8, v18
    v_lshl_add_u32 v18, v8, 4, v18
    v_add_u32 v18, s10, v18
    v_add_u32 v20, {2*48*1024}, v18
    """)
    ACC=160
    if dry:
        for i in range(5): k(f"v_mov_b32 v{22+i}, v{12+i}")
        k("s_mov_b32 s33, 0\ns_mov_b32 s30, 100\ns_branch L2_loop\nL2_dried:")
    for r in range(ACC,ACC+96,2): k(f"v_mov_b64 {vr(r,2)}, 0")
    k("s_waitcnt vmcnt(0)")
    S1=64; S2=72
    for j in range(3):
        for q in range(4):
            k(f"v_lshlrev_b32 v{48+2*q}, 16, v{112+4*j+q}\nv_and_b32 v{49+2*q}, 0xffff0000, v{112+4*j+q}")
        for q in range(4):
            u=vr(48+2*q,2)
            if j==0: k(f"v_mov_b64 {vr(S1+2*q,2)}, {u}\nv_pk_mul_f32 {vr(S2+2*q,2)}, {u}, {u}")
            else: k(f"v_pk_add_f32 {vr(S1+2*q,2)}, {vr(S1+2*q,2)}, {u}\nv_pk_fma_f32 {vr(S2+2*q,2)}, {u}, {u}, {vr(S2+2*q,2)}")
    for i in range(8): k(f"v_permlane32_swap_b32 v{S1+i}, v{S2+i}")
    for i in range(8): k(f"v_add_f32 v{S1+i}, v{S1+i}, v{S2+i}")
    for i in range(4): k(f"v_permlane16_swap_b32 v{S1+i}, v{S1+4+i}")
    for i in range(4): k(f"v_add_f32 v{S1+i}, v{S1+i}, v{S1+4+i}")
    for rr in (8,4):
        for i in range(4): k(f"v_add_f32_dpp v{S1+i}, v{S1+i}, v{S1+i} row_ror:{rr} row_mask:0xf bank_mask:0xf")
    k(f"ds_write_b128 v7, {vr(S1,4)}")
    FA=[32,72]
    def reads(buf,va,vb):
        o=[]
        for j in range(4):
            for e in range(2): o.append(f"ds_read_b64_tr_b16 {vr(FA[buf]+24+4*j+2*e,2)}, v{vb+(j&1)} offset:{e*1024+(j>>1)*256}")
        for t in range(6):
            for e in range(2): o.append(f"ds_read_b64_tr_b16 {vr(FA[buf]+4*t+2*e,2)}, v{va+t%3} offset:{(t//3)*6144+e*768}")
        return o[8:10]+o[0:8]+o[10:]
    def mfs(buf): return [f"v_mfma_f32_16x16x32_bf16 {vr(ACC+16*t+4*j,4)}, {vr(FA[buf]+4*t,4)}, {vr(FA[buf]+24+4*j,4)}, {vr(ACC+16*t+4*j,4)}" for t in range(6) for j in range(4)]
    def adv(b=0):
        return [f"v_add_u32 v{22+5*b+i}, s33, v{12+i}" for i in range(5)]+[f"s_add_u32 s33, s33, {STAGE}",f"s_cmp_eq_u32 s33, {CSL}","s_cselect_b32 s33, 0, s33"]
    T()
    k("s_waitcnt lgkmcnt(0)\ns_barrier")
    T(cyc)
    for x in reads(0,12,15): k(x)
    k(f"s_mov_b32 s33, {STAGE}")
    for x in adv(): k(x)
    k(f"s_mov_b32 s30, 0\nL2_loop:")
    for b in range(2):
        k("s_waitcnt lgkmcnt(0)\ns_barrier")
        rd=reads(1-b,22+5*b,25+5*b)
        if "nord" in var: rd=[]
        rest=adv(1-b)+(["s_add_u32 s30, s30, 1","s_cmp_lt_u32 s30, 10"] if b else [])
        m=mfs(b); p=0
        va=rest[:5]; sa=rest[5:]
        for i,x in enumerate(m):
            if "nomf" not in var: k(x)
            e=min(len(rd),(len(rd)*(i+1)+span-1)//span)
            for y in rd[p:e]: k(y)
            p=e
            if i>=min(span,19) and va: k(va.pop(0))
            elif not va and sa:
                k(sa.pop(0))
        for y in va+sa: k(y)
    if "prof" in var:
        k("s_cselect_b32 s68, 1, 0\ns_memtime s[66:67]\ns_waitcnt lgkmcnt(0)\ns_mov_b32 m0, s30\nv_writelane_b32 v21, s66, m0\ns_cmp_eq_u32 s68, 1")
    k(f"s_cbranch_scc1 L2_loop")
    if dry: k("s_cmp_eq_u32 s30, 101\ns_waitcnt lgkmcnt(0)\ns_cbranch_scc1 L2_dried")
    T(cyc)
    k("s_barrier")
    ST=112; CS=128
    for j in range(4): k(f"ds_read_b128 {vr(ST+4*j,4)}, v19 offset:{256*j}")
    for t in range(6): k(f"ds_read_b128 {vr(CS+4*t,4)}, v17 offset:{(t//3)*384+(t%3)*64}")
    k("s_waitcnt lgkmcnt(0)")
    for i in range(3):
        E=32
        G=lambda j,p: ACC+16*i+4*j+2*p
        U=lambda j,p: ACC+48+16*i+4*j+2*p
        JP=[(j,p) for j in range(4) for p in range(2)]
        for j,p in JP:
            k(f"v_pk_fma_f32 {vr(G(j,p),2)}, {vr(CS+4*i+2*p,2)}, {vr(ST+4*j,2)}, {vr(G(j,p),2)} op_sel:[0,0,0] op_sel_hi:[1,0,1] neg_lo:[1,0,0] neg_hi:[1,0,0]")
        for j,p in JP: k(f"v_pk_mul_f32 {vr(E+4*j+2*p,2)}, {vr(G(j,p),2)}, {vr(ST+4*j,2)} op_sel:[0,1] op_sel_hi:[1,1]")
        ex=[f"v_exp_f32 v{E+r}, v{E+r}" for r in range(16)]
        uu=[f"v_pk_fma_f32 {vr(U(j,p),2)}, {vr(CS+12+4*i+2*p,2)}, {vr(ST+4*j,2)}, {vr(U(j,p),2)} op_sel:[0,0,0] op_sel_hi:[1,0,1] neg_lo:[1,0,0] neg_hi:[1,0,0]" for j,p in JP]
        for x in merge(ex,uu): k(x)
        for j,p in JP: k(f"v_pk_fma_f32 {vr(E+4*j+2*p,2)}, {vr(E+4*j+2*p,2)}, {vr(ST+4*j+2,2)}, {vr(ST+4*j+2,2)} op_sel:[0,0,0] op_sel_hi:[1,0,0]")
        rc=[f"v_rcp_f32 v{E+r}, v{E+r}" for r in range(16)]
        gu=[f"v_pk_mul_f32 {vr(G(j,p),2)}, {vr(G(j,p),2)}, {vr(U(j,p),2)}" for j,p in JP]
        for x in merge(rc,gu): k(x)
        for j,p in JP: k(f"v_pk_mul_f32 {vr(G(j,p),2)}, {vr(G(j,p),2)}, {vr(E+4*j+2*p,2)}")
        O=48+8*(i&1)
        for j,p in JP: k(f"v_cvt_pk_bf16_f32 v{O+2*j+p}, v{G(j,p)}, v{G(j,p)+1}")
        for jj in (0,2):
            k(f"v_permlane16_swap_b32 v{O+2*jj}, v{O+2*jj+2}\nv_permlane16_swap_b32 v{O+2*jj+1}, v{O+2*jj+3}")
            k(f"global_store_dwordx4 v{18 if jj==0 else 20}, {vr(O+2*jj,4)}, {WS} offset:{512*i} {st_sc}")
    if diag:
        T(); k("s_waitcnt vmcnt(0)"); T(); T.flush(WS,slot)
        if "prof" in var: k(f"v_lshl_add_u32 v2, v1, 2, s78\ns_mov_b64 exec, 0xffff\nglobal_store_dword v2, v21, {WS} offset:256")
    k("L2_end:\ns_endpgm")
    k.lines=[l.replace("L2_",pfx) for l in k.lines]
    return k
if __name__=="__main__":
    open("t2.s","w").write(emit([gen_k2(diag=True)],verbose=True))
```

```python
from ag import *
from common import *
from k1 import Stamps
STG3=18432; NS3=8; RES=STG3*NS3; LDS3=RES+10240
def gen_k3(diag=False, st_sc="", name="gemm2_kernel", slot=2, pfx="L3_", n0=4, step=3, dry=False, cyc=False):
    k=K(name,(256,1,1),(512,1,1),LDS3,vgpr=128,sgpr=102,hazard=True)
    T=Stamps(k,diag)
    WS="s[42:43]"; NSTG=24
    T()
    k(f"""
    s_load_dwordx2 s[42:43], s[0:1], 120
    s_load_dwordx2 s[38:39], s[0:1], 104
    s_cmp_ge_u32 s2, 256
    s_cbranch_scc1 L3_end
    v_lshrrev_b32 v2, 6, v0
    v_and_b32 v1, 63, v0
    v_readfirstlane_b32 s3, v2
    s_and_b32 s6, s2, 1
    s_lshl_b32 s6, s6, 2
    s_bfe_u32 s7, s2, 0x20003
    s_add_u32 s6, s6, s7
    s_bfe_u32 s7, s2, 0x20001
    s_lshl_b32 s7, s7, 3
    s_lshr_b32 s5, s2, 5
    s_add_u32 s7, s7, s5
    v_lshlrev_b32 v10, 4, v1
    s_cmp_lt_u32 s3, 4
    s_cbranch_scc1 L3_cons
    s_sub_u32 s3, s3, 4
    s_lshl_b32 s21, s7, 2
    s_add_u32 s21, s21, s3
    s_mul_i32 s21, s21, {48*1024}
    s_add_u32 s21, s21, {WS_HID}
    s_lshl_b32 s23, s3, 11
    s_add_u32 s23, s23, 10240
    s_mul_i32 s22, s3, 3
    s_cmp_eq_u32 s3, 3
    s_cselect_b32 s22, 8, s22
    s_lshl_b32 s22, s22, 10
    s_mul_i32 s20, s6, {48*5120}
    s_add_u32 s20, s20, s22
    s_add_u32 s20, s20, {WS_W2}
    s_mov_b32 s50, {WS_W2+8*48*5120}
    s_mov_b32 s51, 0x20000
    s_mov_b32 s28, 0
    s_cmp_lt_u32 s3, 2
    s_cselect_b32 s24, 1, 0
    s_waitcnt lgkmcnt(0)
    s_mov_b32 s48, s42
    s_mov_b32 s49, s43
    s_branch L3_go
L3_dma:
    s_add_u32 m0, s28, s23
    s_cmp_eq_u32 s24, 1
    buffer_load_dwordx4 v10, s[48:51], s21 offen lds
    buffer_load_dwordx4 v10, s[48:51], s21 offen offset:1024 lds
    s_add_u32 m0, s28, s22
    s_add_u32 s21, s21, 2048
    buffer_load_dwordx4 v10, s[48:51], s20 offen lds
    buffer_load_dwordx4 v10, s[48:51], s20 offen offset:1024 lds
    s_cmp_eq_u32 s24, 1
    s_cbranch_scc0 L3_dma2
    buffer_load_dwordx4 v10, s[48:51], s20 offen offset:2048 lds
L3_dma2:
    s_add_u32 s20, s20, 10240
    s_add_u32 s28, s28, {STG3}
    s_cmp_eq_u32 s28, {RES}
    s_cselect_b32 s28, 0, s28
    s_setpc_b64 s[70:71]
L3_go:
    """)
    CALL="s_call_b64 s[70:71], L3_dma"
    for i in range(n0): k(CALL)
    k(f"""
    v_lshrrev_b32 v6, 5, v1
    v_bfe_u32 v7, v1, 1, 2
    v_lshl_add_u32 v6, v6, 2, v7
    v_lshlrev_b32 v6, 12, v6
    v_bfe_u32 v7, v1, 3, 2
    v_lshl_add_u32 v6, v7, 5, v6
    v_and_b32 v7, 1, v1
    v_lshl_add_u32 v6, v7, 4, v6
    s_mul_i32 s8, s6, {80*4096}
    s_lshl_b32 s9, s7, 7
    s_add_u32 s8, s8, s9
    s_add_u32 s8, s8, {WS_HT}
    v_add_u32 v16, s8, v6
    """)
    if dry: k("s_barrier\ns_barrier")
    def wait(n):
        L=k.label("L3_w")
        if n==0: k("s_waitcnt vmcnt(0)")
        else: k(f"s_cmp_eq_u32 s24, 1\ns_cbranch_scc1 {L}a\ns_waitcnt vmcnt({4*n})\n{L}a:\ns_waitcnt vmcnt({5*n})")
    issued=n0; b=-1
    while True:
        wait(issued-(b+2)); k("s_barrier")
        lim=min(issued+step,b+1+NS3)
        while issued<lim: k(CALL); issued+=1
        b+=1
        if issued==b+NS3 and b>0: break
    k(f"s_mov_b32 s30, {b}\nL3_lloop:")
    wait(NS3-2)
    k(f"s_barrier\n{CALL}\ns_add_u32 s30, s30, 1\ns_cmp_lt_u32 s30, {NSTG-NS3}\ns_cbranch_scc1 L3_lloop")
    k(f"""
    s_cmp_eq_u32 s24, 1
    s_cbranch_scc1 L3_nores
    s_sub_u32 s27, s3, 2
    s_mul_i32 s27, s27, 5
    s_lshl_b32 s26, s27, 15
    s_lshl_b32 s27, s27, 10
    s_add_u32 s27, s27, {RES}
    """)
    for i in range(5): k(f"s_mov_b32 m0, s27\ns_add_u32 s27, s27, 1024\nbuffer_load_dwordx4 v16, s[48:51], s26 offen lds\ns_add_u32 s26, s26, 32768")
    k("L3_nores:")
    for sg in range(NSTG-NS3,NSTG):
        left=max(0,NSTG-1-(sg+1))
        L=k.label("L3_t")
        k(f"s_cmp_eq_u32 s24, 1\ns_cbranch_scc1 {L}\ns_waitcnt vmcnt({4*left+5 if sg<NSTG-1 else 0})\ns_branch {L}b\n{L}:\ns_waitcnt vmcnt({5*left})\n{L}b:\ns_barrier")
    k("s_endpgm")
    k(f"""
L3_cons:
    s_lshl_b32 s8, s3, 11
    s_add_u32 s8, s8, 10240
    v_add_u32 v11, s8, v10
    v_and_b32 v3, 15, v1
    v_lshrrev_b32 v2, 4, v1
    v_lshlrev_b32 v22, 9, v2
    v_lshl_add_u32 v22, v3, 3, v22
    s_lshl_b32 s8, s3, 7
    s_add_u32 s8, s8, {RES}
    v_add_u32 v22, s8, v22
    s_lshl_b32 s8, s7, 6
    s_lshl_b32 s9, s3, 4
    s_add_u32 s8, s8, s9
    v_add_u32 v23, s8, v3
    v_mul_u32_u24 v23, 1280, v23
    v_lshl_add_u32 v23, v2, 3, v23
    s_mul_i32 s8, s6, 160
    v_add_u32 v23, s8, v23
    """)
    ACC=108; FB=[12+0,12+48]
    FB=[12,60]
    def reads(buf,va,vb):
        o=[]
        for ks in range(2):
            o.append(f"ds_read_b128 {vr(FB[buf]+24*ks+20,4)}, v{vb} offset:{1024*ks}")
            for dt in range(5): o.append(f"ds_read_b128 {vr(FB[buf]+24*ks+4*dt,4)}, v{va} offset:{5120*ks+1024*dt}")
        return o
    def mfs(buf): return [f"v_mfma_f32_16x16x32_bf16 {vr(ACC+4*dt,4)}, {vr(FB[buf]+24*ks+4*dt,4)}, {vr(FB[buf]+24*ks+20,4)}, {vr(ACC+4*dt,4)}" for ks in range(2) for dt in range(5)]
    def adv(b): return [f"v_add_u32 v{4+2*b}, s33, v10",f"v_add_u32 v{5+2*b}, s33, v11",f"s_add_u32 s33, s33, {STG3}",f"s_cmp_eq_u32 s33, {RES}","s_cselect_b32 s33, 0, s33"]
    k("v_mov_b32 v8, v22\nv_mov_b32 v9, v23")
    if dry: k("v_mov_b32 v4, v10\nv_mov_b32 v5, v11\ns_mov_b32 s33, 0\ns_mov_b32 s30, 100\ns_branch L3_loop\nL3_dried:")
    for r in range(ACC,ACC+20,2): k(f"v_mov_b64 {vr(r,2)}, 0")
    T()
    k("s_barrier")
    T(cyc)
    for x in reads(0,10,11): k(x)
    k(f"s_mov_b32 s33, {STG3}")
    for x in adv(0): k(x)
    k("s_mov_b32 s30, 0\nL3_loop:")
    for b in range(2):
        k("s_waitcnt lgkmcnt(0)\ns_barrier")
        rd=reads(1-b,4+2*b,5+2*b); rest=adv(1-b)+(["s_add_u32 s30, s30, 1",f"s_cmp_lt_u32 s30, {NSTG//2}"] if b else [])
        m=mfs(b)
        for i,x in enumerate(m):
            k(x)
            if i<6: k(rd[2*i]); k(rd[2*i+1])
            else:
                for y in rest[2*(i-6):2*(i-6)+2]: k(y)
    k("s_cbranch_scc1 L3_loop")
    if dry: k("s_cmp_eq_u32 s30, 101\ns_waitcnt lgkmcnt(0)\ns_cbranch_scc1 L3_dried")
    T(cyc)
    for dt in range(5): k(f"ds_read_b64_tr_b16 {vr(12+2*dt,2)}, v8 offset:{dt*2048}")
    for dt in range(5):
        b=ACC+4*dt; t=24+4*dt
        k(f"""
        s_waitcnt lgkmcnt({4-dt})
        v_lshlrev_b32 v{t}, 16, v{12+2*dt}
        v_and_b32 v{t+1}, 0xffff0000, v{12+2*dt}
        v_lshlrev_b32 v{t+2}, 16, v{13+2*dt}
        v_and_b32 v{t+3}, 0xffff0000, v{13+2*dt}
        v_pk_add_f32 {vr(b,2)}, {vr(b,2)}, {vr(t,2)}
        v_pk_add_f32 {vr(b+2,2)}, {vr(b+2,2)}, {vr(t+2,2)}
        v_cvt_pk_bf16_f32 v{b}, v{b}, v{b+1}
        v_cvt_pk_bf16_f32 v{b+1}, v{b+2}, v{b+3}
        global_store_dwordx2 v9, {vr(b,2)}, s[38:39] offset:{dt*32} {st_sc}
        """)
    if diag:
        T(); k("s_waitcnt vmcnt(0)"); T(); T.flush(WS,slot)
    k("L3_end:\ns_endpgm")
    k.lines=[l.replace("L3_",pfx) for l in k.lines]
    return k
if __name__=="__main__":
    open("t3.s","w").write(emit([gen_k3(diag=True)],verbose=True))
```

```python
from ag import *
from common import *
import math, struct
HB=5712; LB=8704; LO0=8*HB; UB=LO0+8*LB; US=4608; XB0=UB+4*US; SC0=XB0+16384; LDS1=SC0+64

SAFE=False
def bound(lab):
    if not SAFE: return ""
    return f"s_add_u32 s75, s75, 1\ns_cmp_gt_u32 s75, 100000\ns_cbranch_scc1 {lab}"
def cmul(dst,x,m,t):
    return [f"v_pk_mul_f32 {vr(t,2)}, {vr(x,2)}, {vr(m,2)} op_sel:[0,0] op_sel_hi:[0,1]",
            f"v_pk_fma_f32 {vr(dst,2)}, {vr(x,2)}, {vr(m,2)}, {vr(t,2)} op_sel:[1,1,0] op_sel_hi:[1,0,1] neg_lo:[1,0,0]"]
def put(row,x,c,neg,base=0):
    n="-" if neg else ""
    return [f"v_cvt_pk_bf16_f32 v{c}, v{x}, {n}v{x+1}", f"ds_write_addtid_b32 v{c} offset:{base+row*272}"]

class Stamps:
    def __init__(s,k,on,base=80): s.k=k;s.on=on;s.n=0;s.base=base;s.kg=False
    def __call__(s,cyc=False,skip=False):
        if s.on and not skip:
            s.k(f"{'s_memtime' if cyc else 's_memrealtime'} s[{s.base+2*s.n}:{s.base+2*s.n+1}]"); s.n+=1
    def flush(s,ws,slot,wreg="s3"):
        if not s.on: return
        k=s.k
        k("s_waitcnt lgkmcnt(0)")
        k(f"s_lshl_b32 s78, s2, 9\ns_lshl_b32 s79, {wreg}, 6\ns_add_u32 s78, s78, s79\ns_add_u32 s78, s78, {WS_STAMP+slot*131072}\nv_mov_b32 v2, s78\ns_mov_b64 exec, 1")
        for i in range(s.n): k(f"v_mov_b32 v3, s{s.base+2*i}\nglobal_store_dword v2, v3, {ws} offset:{4*i}")
        for i,r in enumerate((72,100,98,96,94,76,74) if s.kg else ()): k(f"v_mov_b32 v3, s{r}\nglobal_store_dword v2, v3, {ws} offset:{36+4*i}")
        k("s_mov_b64 exec, -1")

def reduce32(k, regs, tmp):
    for m in ("quad_perm:[1,0,3,2]","quad_perm:[2,3,0,1]","row_half_mirror","row_mirror"):
        for r in regs: k(f"v_add_f32_dpp v{r}, v{r}, v{r} {m} row_mask:0xf bank_mask:0xf")
    for r,t in zip(regs,tmp): k(f"v_mov_b32 v{t}, v{r}")
    for r,t in zip(regs,tmp): k(f"v_permlane16_swap_b32 v{r}, v{t}")
    for r,t in zip(regs,tmp): k(f"v_add_f32 v{r}, v{r}, v{t}")

def ln_finalize(k, s1, s2, t, mean_out, sd_out):
    k(f"""
    v_mul_f32 v{s1}, {f2u(1/640.)}, v{s1}
    v_mul_f32 v{s2}, {f2u(1/640.)}, v{s2}
    v_fma_f32 v{s2}, -v{s1}, v{s1}, v{s2}
    v_max_f32 v{s2}, 0, v{s2}
    v_cvt_pk_bf16_f32 v{t}, v{s1}, v{s2}
    v_lshlrev_b32 v{mean_out}, 16, v{t}
    v_and_b32 v{t}, 0xffff0000, v{t}
    v_add_f32 v{t}, {f2u(1e-5)}, v{t}
    v_cvt_pk_bf16_f32 v{t}, v{t}, v{t}
    v_and_b32 v{t}, 0xffff0000, v{t}
    v_sqrt_f32 v{t}, v{t}
    v_cvt_pk_bf16_f32 v{t}, v{t}, v{t}
    v_and_b32 v{sd_out}, 0xffff0000, v{t}
    """)
def cexp(dst,scale,ta,tb):
    o=[]
    if scale!=1:
        o+=[f"v_mul_f32 v{ta}, {f2u(scale)}, v56", f"v_mul_f32 v{tb}, {f2u(scale)}, v57"]
        a,b=ta,tb
    else: a,b=56,57
    o+=[f"v_fract_f32 v{tb}, v{b}", f"v_exp_f32 v{ta}, v{a}", f"v_cos_f32 v{dst}, v{tb}", f"v_sin_f32 v{dst+1}, v{tb}",
        f"v_pk_mul_f32 {vr(dst,2)}, {vr(dst,2)}, {vr(ta,2)} op_sel:[0,0] op_sel_hi:[1,0]"]
    return o
def dt_code(k):
    l2e_hi=f2u(math.log2(math.e)); l2e_f=struct.unpack("<f",struct.pack("<I",l2e_hi))[0]; l2e_lo=f2u(math.log2(math.e)-l2e_f)
    k(f"""
    s_mov_b32 s14, {l2e_hi}
    s_mov_b32 s15, {l2e_lo}
    v_mul_f32 v51, s14, v50
    v_fma_f32 v52, v50, s14, -v51
    v_fma_f32 v52, v50, s15, v52
    v_exp_f32 v51, v51
    v_mul_f32 v52, {f2u(math.log(2))}, v52
    v_fma_f32 v51, v51, v52, v51
    v_cvt_pk_bf16_f32 v51, v51, v51
    v_and_b32 v54, 0xffff0000, v51
    v_mul_f32 v52, s14, v54
    v_mul_f32 v53, {f2u(1/(2*math.pi))}, v54
    """)


def cmul16(dst,x,m,t):
    return [f"v_pk_mul_f16 v{t}, v{x}, v{m} op_sel:[0,0] op_sel_hi:[0,1]",
            f"v_pk_fma_f16 v{dst}, v{x}, v{m}, v{t} op_sel:[1,1,0] op_sel_hi:[1,0,1] neg_lo:[1,0,0]"]
def wavemax(k,r,t):
    for m in ("quad_perm:[1,0,3,2]","quad_perm:[2,3,0,1]","row_half_mirror","row_mirror"):
        k(f"v_max_f32_dpp v{r}, v{r}, v{r} {m} row_mask:0xf bank_mask:0xf")
    for sw in ("16","32"):
        k(f"v_mov_b32 v{t}, v{r}\nv_permlane{sw}_swap_b32 v{r}, v{t}\nv_max_f32 v{r}, v{r}, v{t}")
def prep(k):
    l2e_hi=f2u(math.log2(math.e)); l2e_f=struct.unpack("<f",struct.pack("<I",l2e_hi))[0]; l2e_lo=f2u(math.log2(math.e)-l2e_f)
    k(f"""
    s_mov_b32 s14, {l2e_hi}
    s_mov_b32 s15, {l2e_lo}
    v_max3_f32 v54, v16, v22, v28
    v_mul_f32 v51, s14, v50
    v_max_f32 v54, 0, v54
    v_fma_f32 v52, v50, s14, -v51
    v_fma_f32 v52, v50, s15, v52
    v_exp_f32 v51, v51
    v_mul_f32 v52, {f2u(math.log(2))}, v52
    v_fma_f32 v51, v51, v52, v51
    v_cvt_pk_bf16_f32 v51, v51, v51
    v_and_b32 v51, 0xffff0000, v51
    v_mul_f32 v52, s14, v51
    v_mul_f32 v53, {f2u(1/(2*math.pi))}, v51
    """)
    wavemax(k,54,55)
    k("v_mul_f32 v54, -v52, v54\nv_mov_b32 v55, 0")

def gen_k1(diag=False, st_sc="", pf_w2=True, kgd=False, early=40, gpos=((20,60),(20,60),()), prioM=0, prioG=1, ngup=4, later=None, fused=None):
    F=fused is not None
    NAME=fused if F else "ssm_kernel"
    k=K(NAME,(256,1,1),(512,1,1),163840 if F else LDS1,vgpr=256,sgpr=102,hazard=True)
    if F: st_sc="sc1"
    T=Stamps(k,diag); T.kg=kgd
    X="s[16:17]"; PTR=["s[18:19]","s[20:21]","s[22:23]","s[24:25]","s[26:27]","s[28:29]"]; LDT="s[30:31]"
    DSK="s[32:33]"; DBG="s[40:41]"; WS="s[42:43]"
    def kgstamp():
        if kgd: k("s_memtime s[66:67]\ns_waitcnt lgkmcnt(0)\ns_mov_b32 s100, s98\ns_mov_b32 s98, s96\ns_mov_b32 s96, s94\ns_mov_b32 s94, s76\ns_mov_b32 s76, s74\ns_mov_b32 s74, s66")
    T()
    k(f"""
    s_load_dwordx16 s[16:31], s[0:1], 0
    s_load_dwordx4 s[40:43], s[0:1], 112
    s_load_dwordx2 s[32:33], s[0:1], 64
    s_memrealtime s[46:47]
    s_cmp_ge_u32 s2, 256
    s_cbranch_scc1 L1_end
    {"s_mov_b32 s75, 0" if SAFE else ""}
    s_getpc_b64 s[70:71]
    v_lshlrev_b32 v255, 7, v0
    v_min_u32 v255, L1_end-{NAME}-64, v255
    global_load_dword v255, v255, s[70:71]
    v_lshrrev_b32 v2, 6, v0
    v_and_b32 v1, 63, v0
    v_readfirstlane_b32 s3, v2
    s_cmp_ge_u32 s2, 160
    s_cbranch_scc1 L1_spare
    s_and_b32 s4, s2, 7
    s_mul_i32 s4, s4, 80
    s_lshr_b32 s68, s2, 3
    s_lshl_b32 s5, s68, 2
    s_add_u32 s4, s4, s5
    s_and_b32 s9, s3, 3
    s_add_u32 s5, s4, s9
    s_mul_i32 s6, s5, 384
    v_lshl_add_u32 v2, v1, 1, s6
    s_lshl_b32 s7, s5, 1
    v_mov_b32 v3, s7
    v_mov_b32 v50, 0
    """)
    for r in range(16,34,2): k(f"v_mov_b64 {vr(r,2)}, 0")
    k(f"s_cmp_ge_u32 s3, 4\ns_waitcnt lgkmcnt(0)\nglobal_load_short_d16_hi v50, v3, {LDT}")
    for c in range(3):
        for j in range(2): k(f"global_load_short_d16_hi v{16+6*c+j}, v2, {PTR[j]} offset:{128*c}")
    k("s_cbranch_scc0 L1_M")
    for c in range(3):
        for j in range(2,6): k(f"global_load_short_d16_hi v{16+6*c+j}, v2, {PTR[j]} offset:{128*c}")
    k("s_branch L1_A")
    T2=Stamps(k,diag and not F); T2.n=1
    k(f"""
L1_spare:
    s_sub_u32 s4, s2, 160
    s_mul_i32 s10, s4, 7
    s_add_u32 s10, s10, s3
    v_lshrrev_b32 v4, 5, v1
    v_mul_u32_u24 v4, 1280, v4
    v_and_b32 v5, 31, v1
    v_lshl_add_u32 v4, v5, 3, v4
    s_mul_i32 s11, s10, 5120
    v_add_u32 v4, s11, v4
    v_mov_b32 v6, 0
    s_mov_b32 s52, 0x3f803f80
    s_cmp_eq_u32 s3, 7
    s_cselect_b32 s10, 512, s10
    s_cmp_ge_u32 s10, 512
    s_waitcnt lgkmcnt(0)
    s_cbranch_scc1 L1_norows
    """)
    for p in range(2):
        for i in range(5): k(f"global_load_dwordx2 {vr(16+10*p+2*i,2)}, v4, {X} offset:{2560*p+256*i}")
    k(f"""
L1_norows:
    """)
    k(f"""
    s_cmp_eq_u32 s3, 7
    s_cbranch_scc1 L1_pollw
    s_cmp_ge_u32 s10, 512
    s_cbranch_scc1 L1_bar
    """)
    for r in range(160,164): k(f"v_mov_b32 v{r}, 0")
    k(f"""
    v_and_b32 v8, 1, v1
    v_cmp_eq_u32 vcc, 1, v8
    v_lshlrev_b32 v9, 4, v1
    s_lshl_b32 s11, s3, 5
    v_add_u32 v9, s11, v9
    s_waitcnt vmcnt(0)
    """)
    T2()
    for i in range(10):
        for p in range(2):
            k(f"v_dot2_f32_bf16 v{160+p}, v{16+10*p+i}, s52, v{160+p}\nv_dot2_f32_bf16 v{162+p}, v{16+10*p+i}, v{16+10*p+i}, v{162+p}")
    reduce32(k,list(range(160,164)),list(range(168,172)))
    k(f"""
    v_cndmask_b32 v160, v160, v161, vcc
    v_cndmask_b32 v164, v162, v163, vcc
    """)
    ln_finalize(k,160,164,168,170,171)
    k(f"""
    v_rcp_f32 v172, v171
    v_mov_b32 v176, v170
    v_mov_b32 v173, v172
    v_permlane32_swap_b32 v170, v176
    v_permlane32_swap_b32 v172, v173
    v_lshrrev_b32 v170, 16, v170
    v_or_b32 v174, v170, v176
    s_mov_b64 exec, 3
    ds_write_b128 v9, v[172:175]
    s_mov_b64 exec, -1
    s_branch L1_bar
L1_pollw:
    s_cmp_lg_u32 s2, 255
    s_cbranch_scc1 L1_nononce
    v_mul_u32_u24 v8, {CSTR}, v1
    v_add_u32 v8, {WS_CNT}, v8
    global_store_dword v8, v6, {WS} sc1
    s_or_b32 s46, s46, 1
    v_mov_b32 v7, s46
    s_mov_b64 exec, 1
    s_waitcnt vmcnt(0)
    global_store_dword v6, v7, {DBG} sc1
    s_mov_b64 exec, -1
L1_nononce:
    global_load_dword v8, v6, {WS}
    s_mul_i32 s11, s4, 14
    v_add_u32 v9, s11, v1
    v_cmp_gt_u32 s[60:61], 14, v1
    v_cmp_gt_u32 vcc, 0x400, v9
    s_and_b64 s[60:61], s[60:61], vcc
    v_lshlrev_b32 v9, 4, v9
    v_lshlrev_b32 v10, 4, v1
L1_pollw2:
    global_load_dword v7, v6, {DBG} sc1
    s_waitcnt vmcnt(0)
    v_cmp_eq_u32 vcc, 0, v7
    {bound("L1_pollw3")}
    s_cbranch_vccnz L1_pollw2
L1_pollw3:
    s_barrier
    ds_read_b128 v[172:175], v10
    s_mov_b64 exec, s[60:61]
    s_waitcnt lgkmcnt(0)
    s_cbranch_execz L1_pub
    v_mov_b32 v175, v7
    global_store_dwordx4 v9, v[172:175], {WS} sc1
L1_pub:
    s_mov_b64 exec, -1
    s_branch L1_cs
L1_bar:
    s_waitcnt lgkmcnt(0)
    s_barrier
L1_cs0:
    s_branch L1_cs
    """)
    k(f"""
L1_M:
    global_load_ushort v49, v3, {DSK}
    s_mul_i32 s10, s3, {2*HB}
    s_mul_i32 s62, s3, {LB}
    s_add_u32 s11, s62, {LO0+4*LB}
    s_mul_i32 s12, s3, {US}
    s_add_u32 s12, s12, {UB}
    s_add_u32 s13, s10, {HB}
    s_add_u32 s63, s62, {LO0}
    s_mov_b32 m0, s62
    s_mov_b32 s60, {4*LB}
    v_mov_b32 v6, 0x3c00
    ds_write_addtid_b32 v6 offset:{LO0}
    s_add_u32 m0, m0, s60
    s_nop 0
    ds_write_addtid_b32 v6 offset:{LO0}
    s_mov_b32 m0, s62
    """)
    for r in range(112,128,2): k(f"v_mov_b64 {vr(r,2)}, 0")
    k(f"""
    v_lshl_add_u32 v6, v1, 3, s12
    ds_write_b64 v6, v[112:113]
    v_mov_b32 v232, {SC0+32}
    ds_write_b32 v232, v112
    v_and_b32 v7, 3, v1
    v_lshl_add_u32 v107, v7, 3, s11
    v_and_b32 v9, 31, v1
    v_lshrrev_b32 v10, 5, v1
    v_mul_u32_u24 v8, 272, v9
    v_lshl_add_u32 v8, v10, 4, v8
    v_add_u32 v108, s63, v8
    v_add_u32 v8, s10, v8
    v_lshl_add_u32 v11, v9, 4, s13
    v_lshl_add_u32 v11, v10, 3, v11
    v_sub_u32 v6, 3, v10
    v_lshlrev_b32 v6, v6, v9
    v_lshl_add_u32 v12, v10, 8, v6
    v_add3_u32 v12, v12, s13, 64
    v_add_u32 v12, 448, v12
    v_mul_u32_u24 v13, 124, v10
    v_add3_u32 v13, v13, v12, 4
    v_lshl_add_u32 v14, v9, 1, s13
    v_lshl_add_u32 v14, v10, 8, v14
    v_sub_u32 v6, 4, v10
    v_lshlrev_b32 v6, v6, v9
    v_lshlrev_b32 v15, 9, v10
    v_add3_u32 v15, v15, v6, s13
    v_lshl_add_u32 v102, v1, 2, s13
    v_lshl_add_u32 v103, v1, 1, s13
    v_lshl_add_u32 v104, v1, 4, s11
    v_and_b32 v6, 1, v1
    v_mul_u32_u24 v7, 0x0202, v6
    v_add_u32 v105, 0x03020100, v7
    v_lshlrev_b32 v7, 16, v7
    v_add_u32 v106, 0x01000100, v7
    v_mul_u32_u24 v7, 4158, v6
    v_sub_u32 v224, s11, v7
    v_and_b32 v6, 15, v1
    v_bfe_u32 v7, v1, 4, 1
    v_lshl_add_u32 v224, v6, 1, v224
    v_lshl_add_u32 v224, v10, 5, v224
    v_lshlrev_b32 v9, 4, v7
    v_sub_u32 v224, v224, v9
    v_add_u32 v224, {32-14+4158}, v224
    v_add_u32 v225, 1024, v224
    v_add_u32 v226, 2048, v224
    v_add_u32 v227, 3072, v224
    v_sub_u32 v228, v6, v10
    v_lshl_add_u32 v228, v228, 5, v9
    s_add_u32 s13, s12, {512-64}
    v_add_u32 v228, s13, v228
    v_lshrrev_b32 v9, 4, v1
    v_lshlrev_b32 v230, 5, v6
    v_lshl_add_u32 v230, v9, 3, v230
    s_lshl_b32 s13, s3, 12
    s_add_u32 s13, s13, {XB0}
    v_add_u32 v229, s13, v230
    s_lshl_b32 s13, s5, 12
    s_add_u32 s13, s13, {WS_HT}
    v_add_u32 v230, s13, v230
    s_lshl_b32 s13, s3, 3
    s_add_u32 s13, s13, {SC0}
    v_mov_b32 v231, s13
    s_mov_b32 s48, 0x01000100
    s_mov_b32 s49, 0x03020302
    s_mov_b32 s51, 0x07060100
    v_lshlrev_b32 v7, 3, v9
    v_sub_u32 v48, v7, v6
    v_add_u32 v48, 7, v48
    v_lshl_or_b32 v48, v10, 8, v48
    v_and_b32 v6, 1, v48
    v_lshlrev_b32 v6, 4, v6
    v_lshrrev_b32 v48, 1, v48
    v_cmp_eq_u32 s[52:53], 0, v48
    v_cmp_eq_u32 s[54:55], 1, v48
    v_cmp_eq_u32 s[56:57], 2, v48
    v_cmp_eq_u32 s[58:59], 3, v48
    s_waitcnt vmcnt(0)
    v_lshlrev_b32 v49, v6, v49
    """)
    prep(k)
    for j in range(4): k(f"v_cndmask_b32 v{236+j}, 0, v49, s[{52+2*j}:{53+2*j}]")
    k(f"s_mov_b32 s14, 0\ns_mov_b32 s15, {HB}")
    if prioM: k(f"s_setprio {prioM}")
    T(skip=F)
    if kgd: k("s_memtime s[72:73]")
    k("L1_kgM:")
    mf=[f"v_mfma_f32_32x32x16_f16 v[112:127], {vr(128+8*i,4)}, {vr(132+8*i,4)}, v[112:127]" for i in range(8)]
    L=lambda j: 64+j
    ops=["v_pk_fma_f32 v[56:57], v[16:17], v[52:53], v[54:55]"]+cexp(58,8.,60,61)+["v_mov_b64 v[16:17], v[22:23]","v_mov_b64 v[22:23], v[28:29]"]
    z=58
    for b in (1,2,4,8,16):
        ops+=[f"v_cvt_pk_f16_f32 v{L(b)}, v{z}, v{z+1}", f"ds_write_addtid_b32 v{L(b)} offset:{LO0+272*b}"]
        if b<16:
            z2=36+4*(b.bit_length()-1); ops+=cmul(z2,z,z,z2+2); z=z2
    ti=0
    for j in range(1,32):
        if j&(j-1):
            ops+=cmul16(L(j),L(j&(j-1)),L(j&-j),96+(ti%6))+[f"ds_write_addtid_b32 v{L(j)} offset:{LO0+272*j}"]; ti+=1
    ops=sched(ops)
    cut=len(ops)-48
    for x in ops[:cut]: k(x)
    nwr=sum("ds_write" in x for x in ops[:cut])
    k(f"s_cmp_eq_u32 s14, 0\ns_cbranch_scc1 L1_nomf\ns_waitcnt lgkmcnt({min(15,nwr)})")
    tl=ops[cut:]
    for i,x in enumerate(tl):
        if i%6==0: k(mf[i//6])
        k(x)
    k("s_branch L1_mfdone\nL1_nomf:")
    for x in tl: k(x)
    k("L1_mfdone:\ns_waitcnt lgkmcnt(0)")
    kgstamp()
    k("s_barrier")
    kgstamp()
    for i in range(8):
        k(f"ds_read_b128 {vr(128+8*i,4)}, v8 offset:{32*i}\nds_read_b128 {vr(132+8*i,4)}, v108 offset:{32*i}")
    k(f"""
    s_add_u32 s14, s14, 1
    s_add_u32 m0, m0, s60
    v_add_u32 v8, s15, v8
    v_add_u32 v108, s60, v108
    s_sub_u32 s15, 0, s15
    s_sub_u32 s60, 0, s60
    s_cmp_lt_u32 s14, 3
    s_cbranch_scc1 L1_kgM
    """)
    T()
    AB=[64,128]; BB=[96,160]; ACC=192
    k("ds_read_b32 v110, v231")
    for c in range(8): k(f"ds_read_b64 {vr(64+2*c,2)}, v229 offset:{512*c}")
    k(f"""
    v_mov_b64 v[100:101], 0
    ds_write_b64 v107, v[100:101]
    ds_write_b64 v107, v[100:101] offset:4160
    s_waitcnt lgkmcnt(11)
    """)
    for i,x in enumerate(mf):
        k(x)
        if i==1: k("s_waitcnt lgkmcnt(2)")
        if i>=1:
            for c in ([0,1] if i==1 else [i]):
                k(f"v_lshlrev_b32 v{ACC+4*c}, 16, v{64+2*c}\nv_and_b32 v{ACC+4*c+1}, 0xffff0000, v{64+2*c}\nv_lshlrev_b32 v{ACC+4*c+2}, 16, v{65+2*c}\nv_and_b32 v{ACC+4*c+3}, 0xffff0000, v{65+2*c}")
    k("v_cmp_neq_f32 vcc, 0, v54")
    for i in range(6): k(f"v_pk_mul_f32 {vr(112+2*i,2)}, {vr(112+2*i,2)}, v[110:111] op_sel:[0,0] op_sel_hi:[1,0]")
    k("s_cbranch_vccnz L1_grow\nL1_grown:")
    for i in range(6): k(f"v_cvt_pk_bf16_f32 v{128+i}, v{112+2*i}, v{113+2*i}")
    k(f"""
    ds_write_b64 v11, v[128:129]
    ds_write_b32 v12, v130
    ds_write_b32 v13, v131
    ds_write_b16 v14, v132 offset:1024
    ds_write_b16_d16_hi v14, v132 offset:1088
    ds_write_b16 v14, v133 offset:1152
    ds_write_b16_d16_hi v14, v133 offset:1216
    ds_read_b64 v[136:137], v15
    ds_read_b64 v[138:139], v15 offset:8
    ds_read_b32 v140, v15 offset:16
    ds_read2_b32 v[142:143], v102 offset0:192 offset1:193
    ds_read_u16 v144, v103 offset:1024
    ds_read_u16 v145, v103 offset:1152
    ds_read_u16_d16_hi v146, v103 offset:1026
    ds_read_u16_d16_hi v147, v103 offset:1154
    s_waitcnt lgkmcnt(5)
    v_mov_b64 v[148:149], v[136:137]
    v_mov_b64 v[150:151], v[138:139]
    v_alignbit_b32 v152, v137, v136, 16
    v_alignbit_b32 v153, v138, v137, 16
    v_alignbit_b32 v154, v139, v138, 16
    v_alignbit_b32 v155, v140, v139, 16
    s_mov_b32 exec_lo, 0
    v_perm_b32 v148, v136, v136, s48
    v_mov_b32 v149, v152
    v_perm_b32 v150, v137, v137, s48
    v_mov_b32 v151, v153
    v_mov_b32 v152, v136
    v_mov_b32 v153, v150
    v_mov_b32 v154, v137
    v_perm_b32 v155, v138, v138, s48
    s_mov_b32 exec_lo, -1
    ds_write_b128 v104, v[148:151] offset:32
    ds_write_b128 v104, v[152:155] offset:{32+4160}
    ds_write_b16 v104, v136 offset:{32+4160-2}
    s_waitcnt lgkmcnt(7)
    v_perm_b32 v156, v142, v142, s48
    v_mov_b32 v157, v142
    v_perm_b32 v158, v142, v142, s49
    v_perm_b32 v159, v143, v143, s48
    v_mov_b32 v160, v156
    v_mov_b32 v161, v158
    v_alignbit_b32 v162, v143, v142, 16
    v_mov_b32 v163, v159
    ds_write_b128 v104, v[156:159] offset:{32+1024}
    ds_write_b128 v104, v[160:163] offset:{32+4160+1024}
    s_waitcnt lgkmcnt(5)
    v_perm_b32 v144, v146, v144, s51
    v_perm_b32 v145, v147, v145, s51
    """)
    for q,src,b in ((2,144,164),(3,145,172)):
        k(f"""
        v_perm_b32 v{b}, v{src}, v{src}, s48
        v_perm_b32 v{b+3}, v{src}, v{src}, s49
        v_perm_b32 v{b+2}, v{src}, v{src}, v105
        v_mov_b32 v{b+1}, v{b}
        v_mov_b32 v{b+4}, v{b}
        v_perm_b32 v{b+5}, v{src}, v{src}, v106
        v_mov_b32 v{b+6}, v{b+3}
        v_mov_b32 v{b+7}, v{b+3}
        ds_write_b128 v104, {vr(b,4)} offset:{32+1024*q}
        ds_write_b128 v104, {vr(b+4,4)} offset:{32+4160+1024*q}
        """)
    def loads(buf,second,which="AB"):
        o=[]
        for a in range(8):
            off=(a&1)*128+(16 if second else 0)
            if "A" in which:
                o.append(f"ds_read2_b32 {vr(AB[buf]+4*a,2)}, v{224+(a>>1)} offset0:{off} offset1:{off+1}")
                o.append(f"ds_read2_b32 {vr(AB[buf]+4*a+2,2)}, v{224+(a>>1)} offset0:{off+2} offset1:{off+3}")
            if "B" in which:
                o.append(f"ds_read_b128 {vr(BB[buf]+4*a,4)}, v228 offset:{512*a+(0 if second else 64)}")
        return o
    def mfs(buf):
        return [f"v_mfma_f32_16x16x32_bf16 {vr(ACC+4*c,4)}, {vr(AB[buf]+4*a,4)}, {vr(BB[buf]+4*(c-a),4)}, {vr(ACC+4*c,4)}" for a in range(8) for c in range(a,8)]
    for x in loads(0,False,"A"): k(x)
    T(skip=F)
    k("s_barrier")
    T()
    for x in loads(0,False,"B"): k(x)
    k("s_mov_b32 s14, 0")
    for c in range(8): k(f"s_waitcnt lgkmcnt({7-c})\nv_mfma_f32_16x16x32_bf16 {vr(ACC+4*c,4)}, v[236:239], {vr(BB[0]+4*c,4)}, {vr(ACC+4*c,4)}")
    k("L1_cv:\ns_waitcnt lgkmcnt(0)")
    def inter(m,l,extra=[]):
        o=[];li=0
        l=l+extra
        for i,x in enumerate(m):
            o.append(x)
            if li<len(l): o.append(l[li]); li+=1
        return o
    for x in inter(mfs(0),loads(1,True),[f"v_add_u32 v{224+i}, 128, v{224+i}" for i in range(4)]+["v_subrev_u32 v228, 128, v228"]): k(x)
    k("s_waitcnt lgkmcnt(0)")
    for x in inter(mfs(1),loads(0,False),["s_add_u32 s14, s14, 1","s_cmp_lt_u32 s14, 4"]): k(x)
    k("s_cbranch_scc1 L1_cv")
    T()
    for c in range(8):
        k(f"""
        v_cvt_pk_bf16_f32 v{64+2*c}, v{ACC+4*c}, v{ACC+4*c+1}
        v_cvt_pk_bf16_f32 v{65+2*c}, v{ACC+4*c+2}, v{ACC+4*c+3}
        global_store_dwordx2 v230, {vr(64+2*c,2)}, {WS} offset:{512*c} {st_sc}
        """)
    if F: k("s_branch LF_M")
    else:
        if diag:
            k("s_waitcnt vmcnt(0)"); T(); T.flush(WS,0)
        k("s_endpgm")
    k.T=T
    TA=Stamps(k,diag and not F); TA.n=1; TA.kg=kgd
    k(f"""
L1_A:
    s_lshl_b32 s8, s4, 1
    v_and_b32 v0, 255, v0
    v_mul_u32_u24 v4, 10240, v0
    v_add_u32 v4, s8, v4
    v_add_u32 v5, 5120, v4
    s_mul_i32 s10, s9, {2*HB}
    v_lshlrev_b32 v231, 6, v0
    v_lshlrev_b32 v232, 4, v0
    v_add_u32 v233, {XB0}, v232
    v_add_u32 v232, {UB+512}, v232
    v_mov_b32 v234, 0
    s_lshl_b32 s13, s9, 3
    s_add_u32 s13, s13, {SC0}
    v_mov_b32 v235, s13
    s_mov_b32 m0, s10
    s_mov_b32 s60, {HB}
    s_lshr_b32 s52, s68, 2
    s_lshl_b32 s68, s68, 1
    s_add_u32 s68, s68, s52
    s_mov_b32 s52, 0x05040100
    s_mov_b32 s53, 0x07060302
    """)
    for i in range(ngup): k("s_call_b64 s[70:71], L1_gat")
    TA()
    k(f"s_waitcnt vmcnt({12+ngup})")
    prep(k)
    k(f"s_waitcnt vmcnt({ngup})")
    for x in merge(*[cmul(18+6*c,20+6*c,18+6*c,56+2*c) for c in range(3)]): k(x)
    k("""
    v_max3_f32 v56, abs(v18), abs(v19), abs(v24)
    v_max3_f32 v57, abs(v25), abs(v30), abs(v31)
    v_max_f32 v56, v56, v57
    """)
    wavemax(k,56,57)
    k("""
    v_frexp_exp_i32_f32 v56, v56
    v_sub_u32 v57, 14, v56
    v_subrev_u32 v56, 14, v56
    v_ldexp_f32 v56, v51, v56
    ds_write_b32 v235, v56
    """)
    for c in range(3): k(f"v_ldexp_f32 v{18+6*c}, v{18+6*c}, v57\nv_ldexp_f32 v{19+6*c}, v{19+6*c}, v57\nv_cvt_pk_f16_f32 v{20+6*c}, v{18+6*c}, -v{19+6*c}")
    if prioG: k(f"s_setprio {prioG}")
    TA()
    if kgd: k("s_memtime s[72:73]")
    def stats_list():
        return [f"global_load_dwordx4 {vr(104+4*j,4)}, v231, {WS} offset:{16*j} sc1" for j in range(4)]+[f"global_load_dword v120, v234, {DBG} sc1"]
    def stats_loads():
        for x in stats_list(): k(x)
    ngat=ngup
    XB=192
    def xwrite():
        o=[f"s_waitcnt vmcnt(0)"]
        for c in range(4):
            for w in range(4): o.append(f"v_perm_b32 v{160+4*c+w}, v{36+4*w+(c>>1)}, v{34+4*w+(c>>1)}, s{52+(c&1)}")
            o.append(f"ds_write_b128 v233, {vr(160+4*c,4)} offset:{4096*c}")
        return o
    for c in range(3):
        H0=20+6*c
        ops=[f"v_pk_fma_f32 v[56:57], {vr(16+6*c,2)}, v[52:53], v[54:55]"]+cexp(58,1,60,61)+cexp(62,256.,64,65)+[f"ds_write_addtid_b32 v{H0} offset:0"]
        E={1:90,2:91,4:92}; Q={1:93,2:94,4:95}
        for z,D,zt in ((58,E,66),(62,Q,74)):
            for b in (1,2,4):
                ops.append(f"v_cvt_pk_f16_f32 v{D[b]}, v{z}, -v{z+1}")
                if b<4: ops+=cmul(zt,z,z,zt+2); z=zt; zt+=4
        R={0:H0}; rows={0:0,1:1,2:2,3:3,4:4,5:5,6:6,7:7,256:8,258:9,260:10,262:11,512:12,516:13,768:14,772:15,1024:16,1280:17,1536:18,1792:19,2048:20}
        ti=0
        for e,a,m in ((1,0,E[1]),(2,0,E[2]),(4,0,E[4]),(256,0,Q[1]),(512,0,Q[2]),(1024,0,Q[4]),(3,2,E[1]),(5,4,E[1]),(6,4,E[2]),(768,512,Q[1]),(1280,1024,Q[1]),(1536,1024,Q[2]),(2048,1024,Q[4]),(258,2,Q[1]),(260,4,Q[1]),(516,4,Q[2]),(7,6,E[1]),(1792,1536,Q[1]),(262,6,Q[1]),(772,516,Q[1])):
            R[e]=128+rows[e]
            ops+=cmul16(R[e],R[a],m,96+(ti%6))+[f"ds_write_addtid_b32 v{R[e]} offset:{272*rows[e]}"]; ti+=1
        ops=sched(ops)
        for i,x in enumerate(ops):
            if i in gpos[c]: k("s_call_b64 s[70:71], L1_gat"); ngat+=1
            k(x)
        if c<2: k(f"s_add_u32 m0, m0, s60\ns_sub_u32 s60, 0, s60")
        if c==2:
            for x in xwrite(): k(x)
            stats_loads()
        k("s_waitcnt lgkmcnt(0)")
        kgstamp()
        k("s_barrier")
        kgstamp()
    assert ngat==8
    TA()
    for c in range(4):
        for i in range(8):
            k(f"v_lshlrev_b32 v{XB+8*c+i}, 16, v{34+2*i+(c>>1)}" if c&1==0 else f"v_and_b32 v{XB+8*c+i}, 0xffff0000, v{34+2*i+(c>>1)}")
    k(f"""
L1_poll:
    s_waitcnt vmcnt(0)
    v_cmp_ne_u32 vcc, v107, v120
    v_cmp_ne_u32 s[60:61], v111, v120
    v_cmp_ne_u32 s[62:63], v115, v120
    v_cmp_ne_u32 s[64:65], v119, v120
    v_cmp_eq_u32 s[66:67], 0, v120
    s_or_b64 vcc, vcc, s[60:61]
    s_or_b64 s[62:63], s[62:63], s[64:65]
    s_or_b64 vcc, vcc, s[66:67]
    s_or_b64 vcc, vcc, s[62:63]
    s_cbranch_vccz L1_go
    s_sleep 1
    {bound("L1_go")}
    """)
    stats_loads()
    k("s_branch L1_poll\nL1_go:")
    TA()
    for j in range(4):
        k(f"""
        v_lshlrev_b32 v{82+2*j}, 16, v{106+4*j}
        v_and_b32 v{83+2*j}, 0xffff0000, v{106+4*j}
        v_pk_mul_f32 {vr(82+2*j,2)}, {vr(82+2*j,2)}, {vr(104+4*j,2)} neg_lo:[1,0] neg_hi:[1,0]
        """)
    UBR=128
    for c in range(4):
        for j in range(4):
            k(f"v_pk_fma_f32 {vr(UBR+8*c+2*j,2)}, {vr(XB+8*c+2*j,2)}, {vr(104+4*j,2)}, {vr(82+2*j,2)}")
        for w in range(4):
            k(f"v_cvt_pk_bf16_f32 v{160+4*c+w}, v{UBR+8*c+7-2*w}, v{UBR+8*c+6-2*w}")
        k(f"ds_write_b128 v232, {vr(160+4*c,4)} offset:{US*c}")
    k("s_waitcnt lgkmcnt(0)\ns_barrier")
    if F: k("s_branch LF_G")
    else:
        if diag:
            TA(); TA.flush(WS,0)
        k("s_endpgm")
    k("L1_grow:\nv_and_b32 v128, 31, v1\nv_lshlrev_b32 v128, 3, v128\nv_cmp_gt_u32 vcc, 32, v1")
    hi=[0,1,2,3,4,5,6,7,256,258,260,262,512,516,768,772,1024,1280,1536,1792,2048,2048,2048,2048]
    for r in range(12):
        q,i=divmod(r,4)
        k(f"""
        v_mov_b32 v129, {hi[8*q+4+i]}
        v_mov_b32 v130, {hi[8*q+i]}
        v_cndmask_b32 v129, v129, v130, vcc
        v_add_u32 v129, v129, v128
        v_cvt_f32_u32 v129, v129
        v_mul_f32 v129, -v54, v129
        v_exp_f32 v129, v129
        v_mul_f32 v{112+r}, v{112+r}, v129
        """)
    k("s_branch L1_grown")
    k("L1_gat:\ns_bitcmp1_b32 s68, 2\ns_cbranch_scc1 L1_gat4")
    for hi4 in (0,4):
        if hi4: k("L1_gat4:")
        k(f"s_bitcmp1_b32 s68, 1\ns_cbranch_scc1 L1_gat{hi4+2}b")
        for hi2 in (0,2):
            if hi2: k(f"L1_gat{hi4+2}b:")
            i0=hi4+hi2
            k(f"s_bitcmp1_b32 s68, 0\ns_cbranch_scc1 L1_gat{i0+1}c")
            for lo in (0,1):
                i=i0+lo
                if lo: k(f"L1_gat{i}c:")
                k(f"global_load_dwordx2 {vr(34+2*i,2)}, v{4+(i>>2)}, {X} offset:{1280*(i&3)}\ns_add_u32 s68, s68, 1\ns_setpc_b64 s[70:71]")
    k(f"""
L1_cs:
    """)
    T2()
    SIG=f"v_mov_b32 v10, {WS_CNT+49*CSTR}\nv_mov_b32 v11, 1\ns_mov_b64 exec, 1\ns_waitcnt vmcnt(0)\nglobal_atomic_add v10, v11, {WS} sc1\ns_mov_b64 exec, -1" if F else ""
    k(f"""
    s_load_dwordx4 s[36:39], s[0:1], 80
    s_load_dwordx2 s[56:57], s[0:1], 96
    s_mov_b32 s58, {640*3072}
    s_mov_b32 s59, 0x20000
    v_and_b32 v208, 15, v1
    s_cmp_lt_u32 s3, 4
    s_waitcnt lgkmcnt(0)
    s_cbranch_scc1 L1_w2
    s_and_b32 s5, s2, 7
    s_lshr_b32 s6, s4, 3
    s_cmp_ge_u32 s6, 6
    s_cselect_b32 s7, 1, 0
    s_cselect_b32 s56, s38, s36
    s_cselect_b32 s57, s39, s37
    s_mul_i32 s8, s7, 6
    s_sub_u32 s8, s6, s8
    s_and_b32 s9, s5, 3
    s_mul_i32 s9, s9, 384
    s_lshl_b32 s8, s8, 6
    s_add_u32 s8, s8, s9
    v_bfe_u32 v2, v0, 3, 5
    v_mul_u32_u24 v2, 3072, v2
    v_and_b32 v3, 7, v0
    v_lshl_add_u32 v2, v3, 4, v2
    s_lshl_b32 s9, s8, 1
    v_add_u32 v2, s9, v2
    s_mov_b32 s53, 0x00003f80
    s_mov_b32 s54, 0x3f800000
    s_mov_b32 s12, 0
    """)
    for i in range(20): k(f"buffer_load_dwordx4 {vr(64+4*i,4)}, v2, s[56:59], s12 offen\ns_add_u32 s12, s12, {32*3072}")
    if later:
        k(f"""
        s_getpc_b64 s[70:71]
L1_pc2:
        v_lshlrev_b32 v10, 6, v0
        v_add_u32 v10, L1_end-L1_pc2-16384+64, v10
        v_min_u32 v10, {later}-L1_pc2-64, v10
        global_load_dword v254, v10, s[70:71]
        """)
    for r in range(16,24,2): k(f"v_mov_b64 {vr(r,2)}, 0")
    k("s_mov_b32 s12, 0\nL1_csl:\ns_waitcnt vmcnt(0)")
    for i in range(20):
        for j in range(4):
            k(f"v_dot2_f32_bf16 v{16+2*j}, v{64+4*i+j}, s53, v{16+2*j}\nv_dot2_f32_bf16 v{17+2*j}, v{64+4*i+j}, s54, v{17+2*j}")
    R=list(range(16,24)); Tm=list(range(24,32))
    for r in R: k(f"v_add_f32_dpp v{r}, v{r}, v{r} row_ror:8 row_mask:0xf bank_mask:0xf")
    for sw in ("16","32"):
        for r,t in zip(R,Tm): k(f"v_mov_b32 v{t}, v{r}")
        for r,t in zip(R,Tm): k(f"v_permlane{sw}_swap_b32 v{r}, v{t}")
        for r,t in zip(R,Tm): k(f"v_add_f32 v{r}, v{r}, v{t}")
    k(f"""
    s_lshl_b32 s12, s3, 8
    s_sub_u32 s12, s12, 768
    v_lshl_add_u32 v10, v3, 5, s12
    ds_write_b128 v10, v[16:19]
    ds_write_b128 v10, v[20:23] offset:16
    s_waitcnt lgkmcnt(0)
    s_barrier
    s_cmp_lg_u32 s3, 4
    s_cbranch_scc1 L1_sdone
    s_cmp_ge_u32 s5, 4
    s_cbranch_scc1 L1_sdone
    v_lshlrev_b32 v10, 2, v1
    """)
    for i in range(4): k(f"ds_read_b32 v{16+i}, v10 offset:{256+256*i}")
    k(f"""
    s_mul_i32 s12, s7, 1536
    s_add_u32 s12, s12, s8
    s_lshl_b32 s12, s12, 2
    s_add_u32 s12, s12, {WS_COLSUM}
    v_add_u32 v10, s12, v10
    s_waitcnt lgkmcnt(0)
    v_add_f32 v16, v16, v17
    v_add_f32 v18, v18, v19
    v_add_f32 v16, v16, v18
    global_store_dword v10, v16, {WS} sc1
    {SIG}
    s_branch L1_sdone
L1_w2:
    """)
    k(f"""
    v_lshrrev_b32 v10, 4, v1
    v_bfe_u32 v11, v1, 3, 1
    v_bfe_u32 v12, v1, 1, 2
    v_lshl_add_u32 v11, v11, 3, v12
    v_and_b32 v12, 1, v1
    v_lshlrev_b32 v12, 4, v12
    s_and_b32 s12, s4, 1
    s_lshl_b32 s12, s12, 2
    s_add_u32 s12, s12, s3
    s_lshr_b32 s13, s4, 1
    s_mul_i32 s14, s12, 160
    s_mul_i32 s15, s13, {32*1280}
    s_add_u32 s14, s14, s15
    s_mul_i32 s15, s3, 5120
    s_add_u32 s15, s15, 4096
    s_mov_b32 m0, s15
    """)
    for i in range(5):
        k(f"""
        v_add_u32 v13, {4*i}, v10
        v_mul_u32_u24 v14, 52, v13
        v_lshrrev_b32 v14, 8, v14
        v_mad_i32_i24 v13, v14, -5, v13
        v_and_b32 v15, 1, v14
        v_lshrrev_b32 v14, 1, v14
        v_lshlrev_b32 v14, 4, v14
        v_lshl_add_u32 v14, v15, 2, v14
        v_add_u32 v14, v14, v11
        v_mul_u32_u24 v14, 1280, v14
        v_lshl_add_u32 v14, v13, 5, v14
        v_add_u32 v14, v14, v12
        buffer_load_dwordx4 v14, s[56:59], s14 offen lds
        s_add_u32 m0, m0, 1024
        """)
    k(f"""
    s_mul_i32 s12, s12, 48
    s_add_u32 s12, s12, s13
    s_mul_i32 s12, s12, 5120
    s_add_u32 s12, s12, {WS_W2}
    v_lshl_add_u32 v13, v1, 4, s12
    v_lshrrev_b32 v14, 5, v1
    v_mul_u32_u24 v14, 2560, v14
    v_bfe_u32 v15, v1, 4, 1
    v_lshl_add_u32 v14, v15, 7, v14
    v_lshl_add_u32 v14, v208, 3, v14
    v_add_u32 v14, s15, v14
    s_waitcnt vmcnt(0)
    """)
    for dt in range(5):
        for e in range(2): k(f"ds_read_b64_tr_b16 {vr(96+4*dt+2*e,2)}, v14 offset:{(e*5+dt)*256}")
    for dt in range(5): k(f"s_waitcnt lgkmcnt({8-2*dt})\nglobal_store_dwordx4 v13, {vr(96+4*dt,4)}, {WS} offset:{1024*dt-2048 if False else (1024*dt if dt<4 else 0)} sc1" if dt<4 else f"s_waitcnt lgkmcnt(0)\nv_add_u32 v13, 4096, v13\nglobal_store_dwordx4 v13, {vr(96+4*dt,4)}, {WS} sc1")
    k(f"""
    s_waitcnt vmcnt(0)
    s_barrier
L1_sdone:
    """)
    if F: return k
    if diag:
        k("s_waitcnt vmcnt(0)"); T2(); T2.flush(WS,0)
    k("L1_end:\ns_endpgm")
    return k
if __name__=="__main__":
    open("t1.s","w").write(emit([gen_k1(diag=True)],verbose=True))
```

```python
from ag import *
from common import *
import k1
from k1 import ln_finalize
import math
NAME="sequential_preLN__ssm_conv_s4__glu_gated_swiglu__prompt_kernel"
WSL=12288; NW=9; TSL=8192; NT=6; TR0=NW*WSL; EX0=TR0+NT*TSL
CSL=EX0; PRT=EX0+1024; STA=EX0+2048
W3=20480; NW3=7; NS3=12; RES=NW3*W3
def poll(k,vaddr,target,lab,vt,pre=True,sleep=2):
    k(f"""
{lab}:
    global_load_dword v{vt}, v{vaddr}, s[42:43] sc1
    s_waitcnt vmcnt(0)
    v_cmp_ne_u32 vcc, {target}, v{vt}
    s_cbranch_vccz {lab}d
    s_sleep {sleep}
    {k1.bound(lab+"d")}
    s_branch {lab}
{lab}d:
    """)
def gen(diag=False, span=18, k1a={}, sl1=2, sl2=2, dry=False, nbpre=7, bstep=1, var=''):
    k=k1.gen_k1(diag=diag,fused=NAME,**k1a); T=k.T
    WS="s[42:43]"
    TL=k1.Stamps(k,diag); TL.n=1
    ids1="""
    s_and_b32 s6, s2, 3
    s_lshl_b32 s6, s6, 2
    s_bfe_u32 s7, s2, 0x20003
    s_add_u32 s6, s6, s7
    s_bfe_u32 s7, s2, 0x10002
    s_lshl_b32 s7, s7, 3
    s_lshr_b32 s5, s2, 5
    s_add_u32 s7, s7, s5
    """
    ids2="""
    s_and_b32 s6, s2, 1
    s_lshl_b32 s6, s6, 2
    s_bfe_u32 s7, s2, 0x20003
    s_add_u32 s6, s6, s7
    s_bfe_u32 s7, s2, 0x20001
    s_lshl_b32 s7, s7, 3
    s_lshr_b32 s5, s2, 5
    s_add_u32 s7, s7, s5
    """
    k(f"""
    {"s_memrealtime s[100:101]" if diag else ""}
    s_mov_b32 s69, 0
    s_cmp_ge_u32 s3, 4
    s_cbranch_scc1 LF_L
    s_cmp_lg_u32 s3, 0
    s_cbranch_scc1 LF_C
    v_mov_b32 v2, {WS_CNT+50*CSTR}
    v_mov_b32 v3, 1
    s_mov_b64 exec, 1
    global_atomic_add v2, v3, {WS} sc1
    s_mov_b64 exec, -1
    s_branch LF_C
LF_G:
    s_setprio 0
    s_mov_b32 s69, 1
LF_L:
    """)
    TL()
    k(ids1)
    k(f"""
    s_sub_u32 s3, s3, 4
    s_load_dwordx4 s[36:39], s[0:1], 80
    v_lshlrev_b32 v10, 4, v1
    v_bfe_u32 v4, v1, 2, 2
    v_and_b32 v5, 3, v1
    v_lshrrev_b32 v3, 4, v1
    s_and_b32 s9, s3, 1
    s_mul_i32 s8, s9, 12
    v_add_u32 v2, s8, v3
    s_mul_i32 s10, s6, 192
    """)
    for i in range(3):
        k(f"""
        v_add_u32 v6, {4*i}, v2
        v_mul_u32_u24 v7, 43, v6
        v_lshrrev_b32 v7, 7, v7
        v_mad_i32_i24 v8, v7, -3, v6
        v_and_b32 v9, 2, v7
        v_xor_b32 v9, v9, v5
        v_lshl_add_u32 v7, v7, 2, v4
        v_mul_u32_u24 v7, 3072, v7
        v_lshl_add_u32 v7, v8, 6, v7
        v_lshl_add_u32 v7, v9, 4, v7
        v_add_u32 v{60+i}, s10, v7
        """)
    k(f"""
    v_subrev_u32 v61, 1024, v61
    v_subrev_u32 v62, 2048, v62
    s_mul_i32 s20, s3, 3072
    s_mov_b32 s26, 0
    s_mov_b32 s48, s42
    s_mov_b32 s49, s43
    s_mov_b32 s50, {WS_W2+8*48*5120}
    s_mov_b32 s51, 0x20000
    s_mov_b32 s54, {640*3072}
    s_mov_b32 s55, 0x20000
    s_mov_b32 s28, s20
    s_cmp_ge_u32 s3, 2
    s_waitcnt lgkmcnt(0)
    s_cselect_b32 s52, s38, s36
    s_cselect_b32 s53, s39, s37
    s_branch LF_go1
LF_dw:
    s_mov_b32 m0, s28
    s_add_u32 s28, s28, {WSL}
    buffer_load_dwordx4 v60, s[52:55], s26 offen lds
    buffer_load_dwordx4 v61, s[52:55], s26 offen offset:1024 lds
    buffer_load_dwordx4 v62, s[52:55], s26 offen offset:2048 lds
    s_add_u32 s26, s26, {32*3072}
    s_cmp_ge_u32 s28, {TR0}
    s_cselect_b32 s28, s20, s28
    s_setpc_b64 s[70:71]
LF_dt:
    s_mov_b32 m0, s29
    s_add_u32 s29, s29, 1024
    buffer_load_dwordx4 v13, s[48:51], s27 offen sc1 lds
    s_mov_b32 m0, s29
    s_add_u32 s29, s29, {TSL-1024}
    buffer_load_dwordx4 v14, s[48:51], s27 offen sc1 lds
    s_add_u32 s27, s27, {32*4096}
    s_cmp_ge_u32 s29, {EX0}
    s_cselect_b32 s29, s23, s29
    s_setpc_b64 s[70:71]
LF_go1:
    """)
    DW="s_call_b64 s[70:71], LF_dw"; DT="s_call_b64 s[70:71], LF_dt"
    TL()
    for i in range(6): k(DW)
    k(f"""
    s_lshl_b32 s8, s3, 3
    v_add_u32 v6, s8, v4
    v_lshlrev_b32 v6, 12, v6
    v_lshl_add_u32 v6, v3, 6, v6
    s_and_b32 s9, s3, 1
    s_lshl_b32 s8, s9, 1
    v_xor_b32 v7, s8, v5
    v_lshl_add_u32 v6, v7, 4, v6
    s_lshl_b32 s8, s7, 8
    v_add_u32 v13, s8, v6
    v_add_u32 v14, 16384, v13
    s_lshl_b32 s23, s3, 11
    s_add_u32 s23, s23, {TR0}
    s_mov_b32 s29, s23
    s_mov_b32 s27, {WS_HT}
    ; LN2 partial: source v15/v16 (rows 40n.., tokens 32L..), destination v17, counter v18
    v_lshrrev_b32 v2, 2, v1
    s_mul_i32 s8, s6, 40
    v_add_u32 v15, s8, v2
    v_lshlrev_b32 v15, 12, v15
    v_lshl_add_u32 v15, v5, 4, v15
    s_lshl_b32 s8, s7, 8
    s_lshl_b32 s9, s3, 6
    s_add_u32 s8, s8, s9
    v_add_u32 v15, s8, v15
    v_lshrrev_b32 v6, 5, v1
    v_lshl_or_b32 v16, v6, 30, v15
    v_lshlrev_b32 v17, 9, v6
    v_lshl_add_u32 v17, v5, 5, v17
    v_bfe_u32 v7, v1, 4, 1
    v_lshl_add_u32 v17, v7, 4, v17
    s_lshl_b32 s8, s7, 4
    s_add_u32 s9, s8, s6
    s_lshl_b32 s9, s9, 10
    s_lshl_b32 s10, s3, 7
    s_add_u32 s9, s9, s10
    s_add_u32 s9, s9, {WS_PART}
    v_add_u32 v17, s9, v17
    s_mul_i32 s9, s7, {CSTR}
    s_add_u32 s9, s9, {WS_CNT}
    v_mov_b32 v18, s9
    v_mov_b32 v19, 1
    v_add_u32 v20, s8, v3
    v_lshlrev_b32 v20, 10, v20
    v_bfe_u32 v6, v1, 3, 1
    v_lshl_add_u32 v20, v6, 9, v20
    v_and_b32 v6, 7, v1
    v_lshl_add_u32 v20, v6, 4, v20
    s_add_u32 s9, s10, {WS_PART}
    v_add_u32 v20, s9, v20
    v_add_u32 v21, 8192, v20
    v_add_u32 v40, 4096, v20
    v_add_u32 v41, 4096, v21
    v_lshl_add_u32 v22, v6, 2, v3
    s_lshl_b32 s9, s3, 5
    v_add_u32 v22, s9, v22
    v_lshlrev_b32 v22, 4, v22
    v_add_u32 v22, {STA}, v22
    ; colsum source v42, LDS v43 ; phase-1 counters v44
    v_cmp_lt_u32 vcc, 23, v1
    v_mov_b32 v6, {6144-384}
    s_mul_i32 s9, s6, 384
    s_add_u32 s9, s9, {WS_COLSUM}
    v_cndmask_b32 v6, 0, v6, vcc
    v_add3_u32 v42, v10, v6, s9
    v_add_u32 v43, {CSL}, v10
    s_and_b32 s9, s2, 1
    s_lshl_b32 s9, s9, 2
    v_and_b32 v44, 3, v1
    v_add_u32 v44, s9, v44
    v_mul_u32_u24 v44, {CSTR}, v44
    v_add_u32 v44, {WS_CNT+56*CSTR}, v44
    s_mov_b32 s11, {WS_HT}
    s_mov_b32 s12, {WS_HT+0x10000}
    s_mov_b32 s13, {WS_HT+0x20000}
    s_cmp_eq_u32 s69, 0
    s_cbranch_scc1 LF_l2
    s_barrier
LF_l2:
    """)
    TL()
    k(f"""
    s_cmp_lg_u32 s3, 0
    s_cbranch_scc1 LF_l4
    """)
    TL()
    poll(k,44,1,"LF_p1",12,sleep=sl1)
    k(f"""
LF_l4:
    s_barrier
    {DT}
    {DT}
    buffer_load_dwordx4 v[48:51], v15, s[48:51], s11 offen sc1
    buffer_load_dwordx4 v[52:55], v15, s[48:51], s12 offen sc1
    buffer_load_dwordx4 v[56:59], v16, s[48:51], s13 offen sc1
    """)
    for i in range(NT-2): k(DT)
    ops=["T0","T0","T1","T1","P","P","P"]+sum([["T%d"%i]*2 for i in range(2,NT)],[])
    def wait(need):
        last=max([i for i,o in enumerate(ops) if o in need]+[-1])
        return min(63,len(ops)-1-last)
    k(f"s_waitcnt vmcnt({wait(['T0'])})\ns_barrier")
    for i in range(6,NW): k(DW); ops+=["W%d"%i]*3
    S1=64; S2=72
    def partial():
        for j in range(3):
            for q in range(4):
                k(f"v_lshlrev_b32 v{80+2*q}, 16, v{48+4*j+q}\nv_and_b32 v{81+2*q}, 0xffff0000, v{48+4*j+q}")
            for q in range(8):
                if j==0: k(f"v_mov_b32 v{S1+q}, v{80+q}\nv_mul_f32 v{S2+q}, v{80+q}, v{80+q}")
                else: k(f"v_add_f32 v{S1+q}, v{S1+q}, v{80+q}\nv_fmac_f32 v{S2+q}, v{80+q}, v{80+q}")
    def partial2():
        for i in range(8): k(f"v_permlane32_swap_b32 v{S1+i}, v{S2+i}")
        for i in range(8): k(f"v_add_f32 v{S1+i}, v{S1+i}, v{S2+i}")
        for i in range(4): k(f"v_permlane16_swap_b32 v{S1+i}, v{S1+4+i}")
        for i in range(4): k(f"v_add_f32 v{S1+i}, v{S1+i}, v{S1+4+i}")
        for rr in (8,4):
            for i in range(4): k(f"v_add_f32_dpp v{S1+i}, v{S1+i}, v{S1+i} row_ror:{rr} row_mask:0xf bank_mask:0xf")
        k(f"s_mov_b32 exec_lo, 0x000f000f\ns_mov_b32 exec_hi, 0x000f000f\nglobal_store_dwordx4 v17, {vr(S1,4)}, {WS} sc1\ns_mov_b64 exec, -1")
    sig=None
    for sg in range(20):
        need=["T%d"%(sg+1),"W%d"%(sg+1)]
        if sg==0: need.append("P")
        if sg==7: need.append("S")
        if sg==13: need.append("C")
        k(f"s_waitcnt vmcnt({wait(need)})\ns_barrier")
        if sg+NT<20: k(DT); ops+=["T%d"%(sg+NT)]*2
        if sg+NW<20: k(DW); ops+=["W%d"%(sg+NW)]*3
        if sg==0: partial()
        if sg==1: partial2(); ops.append("S")
        if sg==7:
            k(f"s_cmp_lg_u32 s3, 0\ns_cbranch_scc1 LF_nsig\ns_mov_b64 exec, 1\nglobal_atomic_add v18, v19, {WS} sc1\ns_mov_b64 exec, -1\nLF_nsig:")
        if sg==11: k(f"v_mov_b32 v46, {WS_CNT+50*CSTR}\nv_mov_b32 v47, {WS_CNT+49*CSTR}\nglobal_load_dword v45, v46, {WS} sc1\nglobal_load_dword v12, v47, {WS} sc1\nglobal_load_dword v23, v18, {WS} sc1"); ops+=["C","C","C"]
        if sg==13:
            k(f"v_cmp_ne_u32 vcc, 16, v23\ns_cbranch_vccz LF_cnt")
            poll(k,18,16,"LF_p2",23,sleep=1)
            k(f"""
LF_cnt:
            v_cmp_ne_u32 vcc, 48, v12
            s_cbranch_vccz LF_p5d
            """)
            poll(k,47,48,"LF_p5",12,sleep=4)
            k(f"""
            global_load_dwordx4 v[48:51], v42, {WS} sc1
            global_load_dwordx4 v[24:27], v20, {WS} sc1
            global_load_dwordx4 v[28:31], v40, {WS} sc1
            global_load_dwordx4 v[32:35], v21, {WS} sc1
            global_load_dwordx4 v[36:39], v41, {WS} sc1
            """)
            ops+=["G"]*5
        if sg==17:
            k(f"""
            s_waitcnt vmcnt(0)
            ds_write_b128 v43, v[48:51]
            v_add_f32 v24, v24, v28
            v_add_f32 v25, v25, v29
            v_add_f32 v26, v26, v30
            v_add_f32 v27, v27, v31
            v_add_f32 v32, v32, v36
            v_add_f32 v33, v33, v37
            v_add_f32 v34, v34, v38
            v_add_f32 v35, v35, v39
            v_add_f32 v24, v24, v32
            v_add_f32 v25, v25, v33
            v_add_f32 v26, v26, v34
            v_add_f32 v27, v27, v35
            v_permlane32_swap_b32 v24, v26
            v_permlane32_swap_b32 v25, v27
            v_add_f32 v24, v24, v26
            v_add_f32 v25, v25, v27
            v_permlane16_swap_b32 v24, v25
            v_add_f32 v24, v24, v25
            v_mov_b32_dpp v25, v24 row_ror:8 row_mask:0xf bank_mask:0xf
            """)
            ln_finalize(k,24,25,26,28,30)
            k(f"""
            v_rcp_f32 v29, v30
            v_mul_f32 v30, v30, v30
            s_mov_b32 exec_lo, 0x00ff00ff
            s_mov_b32 exec_hi, 0x00ff00ff
            v_mul_f32 v29, {f2u(-math.log2(math.e))}, v29
            ds_write_b128 v22, v[28:31]
            s_mov_b64 exec, -1
            """)
        if sg==18:
            k("s_waitcnt lgkmcnt(0)")
            k(ids2)
            k(f"""
            s_mul_i32 s22, s3, 5120
            s_mov_b32 s28, s22
            s_mul_i32 s20, s6, {48*5120}
            s_add_u32 s20, s20, s22
            s_add_u32 s20, s20, {WS_W2}
            s_cmp_lt_u32 s3, 2
            s_cselect_b32 s24, 1, 0
            v_lshrrev_b32 v6, 5, v1
            v_bfe_u32 v7, v1, 1, 2
            v_lshl_add_u32 v6, v6, 2, v7
            v_lshlrev_b32 v6, 12, v6
            v_bfe_u32 v7, v1, 3, 2
            v_lshl_add_u32 v6, v7, 5, v6
            v_and_b32 v7, 1, v1
            v_lshl_add_u32 v6, v7, 4, v6
            s_mul_i32 s8, s6, {80*4096}
            s_lshl_b32 s9, s7, 7
            s_add_u32 s8, s8, s9
            s_add_u32 s8, s8, {WS_HT}
            v_add_u32 v16, s8, v6
            """)
    k(f"""
    s_branch LF_go3
LF_dw3:
    s_mov_b32 m0, s28
    s_add_u32 s31, s20, 4096
    buffer_load_dwordx4 v10, s[48:51], s20 offen sc1 lds
    buffer_load_dwordx4 v10, s[48:51], s20 offen offset:1024 sc1 lds
    buffer_load_dwordx4 v10, s[48:51], s20 offen offset:2048 sc1 lds
    buffer_load_dwordx4 v10, s[48:51], s20 offen offset:3072 sc1 lds
    s_add_u32 m0, s28, 4096
    s_add_u32 s28, s28, {W3}
    buffer_load_dwordx4 v10, s[48:51], s31 offen sc1 lds
    s_add_u32 s20, s20, {W3}
    s_setpc_b64 s[70:71]
LF_go3:
    s_barrier
    v_cmp_ne_u32 vcc, 0x60, v45
    s_cbranch_vccz LF_p4d
    """)
    poll(k,46,"0x60","LF_p4",45,sleep=4)
    k(f"""
    s_mov_b32 s30, 0
LF_pf3:
    s_call_b64 s[70:71], LF_dw3
    s_add_u32 s30, s30, 1
    s_cmp_lt_u32 s30, {NW3}
    s_cbranch_scc1 LF_pf3
    s_cmp_eq_u32 s24, 1
    s_cbranch_scc1 LF_nores
    s_sub_u32 s27, s3, 2
    s_mul_i32 s27, s27, 5
    s_lshl_b32 s26, s27, 15
    s_lshl_b32 s27, s27, 10
    s_add_u32 s27, s27, {RES}
    """)
    for i in range(5): k(f"s_mov_b32 m0, s27\ns_add_u32 s27, s27, 1024\nbuffer_load_dwordx4 v16, s[48:51], s26 offen sc1 lds\ns_add_u32 s26, s26, 32768")
    k("LF_nores:\nv_add_u32 v11, s22, v10\ns_waitcnt vmcnt(36)")
    for st in range(NW3,NS3):
        k("s_add_u32 s31, s20, 4096")
        for p in range(5): k(f"buffer_load_dwordx4 {vr(64+20*(st-NW3)+4*p,4)}, v10, s[48:51], s{20 if p<4 else 31} offen offset:{1024*(p%4)} sc1")
        k(f"s_add_u32 s20, s20, {W3}")
    TL()
    k(f"s_waitcnt vmcnt({5*(NS3-NW3)})\ns_barrier")
    for grp in ((7,8),(9,10,11)):
        k(f"s_barrier\ns_waitcnt vmcnt({5*(NS3-1-grp[-1])})")
        for r in grp:
            for p in range(5): k(f"ds_write_b128 v11, {vr(64+20*(r-NW3)+4*p,4)} offset:{1024*p}")
            k(f"v_add_u32 v11, {W3}, v11")
        k("s_waitcnt lgkmcnt(0)")
    k("s_barrier\ns_barrier")
    if diag:
        TL.n=11; k("s_add_u32 s3, s3, 4"); TL.flush(WS,0)
    k("s_endpgm")
    k(f"""
LF_M:
    s_bfe_u32 s7, s2, 0x20003
    s_mul_i32 s7, s7, {CSTR}
    s_add_u32 s8, s7, {WS_CNT+52*CSTR}
    v_mov_b32 v2, s8
    v_mov_b32 v3, 1
    v_mul_u32_u24 v5, {4*CSTR}, v1
    s_add_u32 s8, s7, {WS_CNT+56*CSTR}
    v_add_u32 v5, s8, v5
    s_mov_b64 exec, 1
    s_waitcnt vmcnt(0)
    ds_add_rtn_u32 v4, v232, v3
    s_waitcnt lgkmcnt(0)
    v_cmp_eq_u32 vcc, 3, v4
    s_cbranch_vccz LF_m2
    global_atomic_add v4, v2, v3, {WS} sc0 sc1
    s_waitcnt vmcnt(0)
    v_cmp_eq_u32 vcc, 39, v4
    s_cbranch_vccz LF_m2
    s_mov_b64 exec, 3
    global_store_dword v5, v3, {WS} sc1
LF_m2:
    s_mov_b64 exec, -1
    s_barrier
LF_C:
    """)
    if diag: T.n=4
    k(ids1)
    k(f"""
    v_lshrrev_b32 v2, 2, v1
    v_and_b32 v4, 3, v1
    v_lshrrev_b32 v5, 5, v1
    v_bfe_u32 v6, v1, 4, 1
    v_and_b32 v8, 15, v1
    v_lshrrev_b32 v9, 4, v1
    v_lshlrev_b32 v10, 6, v2
    v_and_b32 v10, 0xc0, v10
    v_lshl_add_u32 v10, v4, 3, v10
    v_lshl_add_u32 v10, v6, 5, v10
    v_mul_u32_u24 v11, 1536, v9
    v_add_u32 v11, v11, v10
    s_and_b32 s8, s3, 1
    s_lshr_b32 s9, s3, 1
    s_lshl_b32 s10, s8, 5
    v_xor_b32 v12, s10, v11
    v_xor_b32 v13, 32, v12
    s_lshl_b32 s10, s8, 8
    v_add_u32 v12, s10, v12
    v_add_u32 v14, 256, v12
    s_lshl_b32 s10, s8, 9
    v_add_u32 v13, s10, v13
    v_lshl_add_u32 v15, v9, 11, v10
    s_lshl_b32 s10, s9, 9
    s_add_u32 s10, s10, {TR0}
    v_add_u32 v15, s10, v15
    v_xor_b32 v16, 32, v15
    s_mul_i32 s10, s8, 192
    s_add_u32 s10, s10, {CSL}
    v_lshl_add_u32 v17, v9, 4, s10
    s_lshl_b32 s10, s9, 10
    s_add_u32 s10, s10, {STA}
    v_lshl_add_u32 v19, v8, 4, s10
    s_lshl_b32 s10, s7, 3
    s_lshl_b32 s11, s9, 2
    s_add_u32 s10, s10, s11
    s_mul_i32 s10, s10, {48*1024}
    s_mul_i32 s11, s6, 3072
    s_add_u32 s10, s10, s11
    s_mul_i32 s11, s8, 1536
    s_add_u32 s10, s10, s11
    s_add_u32 s10, s10, {WS_HID}
    v_mul_u32_u24 v18, {48*1024}, v6
    v_lshl_add_u32 v18, v5, 8, v18
    v_lshl_add_u32 v18, v8, 4, v18
    v_add_u32 v18, s10, v18
    v_add_u32 v20, {2*48*1024}, v18
    s_mul_i32 s10, s7, {CSTR}
    s_add_u32 s10, s10, {WS_CNT+16*CSTR}
    v_mov_b32 v21, s10
    v_mov_b32 v7, {PRT}
    v_mov_b32 v3, 0
    ds_write_b32 v7, v3
    s_load_dwordx2 s[38:39], s[0:1], 104
    """)
    ACC=160
    if dry:
        for i in range(5): k(f"v_mov_b32 v{22+i}, v{12+i}")
        k("s_mov_b32 s33, 0\ns_mov_b32 s34, 0\ns_mov_b32 s30, 100\ns_mov_b64 vcc, -1\ns_branch LF_loop\nLF_dried:\ns_mov_b64 vcc, 0")
    for r in range(ACC,ACC+96,2): k(f"v_mov_b64 {vr(r,2)}, 0")
    FA=[32,72]
    def reads(buf,va,vb):
        o=[]
        for j in range(4):
            for e in range(2): o.append(f"ds_read_b64_tr_b16 {vr(FA[buf]+24+4*j+2*e,2)}, v{vb+(j&1)} offset:{e*1024+(j>>1)*256}")
        for t in range(6):
            for e in range(2): o.append(f"ds_read_b64_tr_b16 {vr(FA[buf]+4*t+2*e,2)}, v{va+t%3} offset:{(t//3)*6144+e*768}")
        return o[8:10]+o[0:8]+o[10:]
    def mfs(buf): return [f"v_mfma_f32_16x16x32_bf16 {vr(ACC+16*t+4*j,4)}, {vr(FA[buf]+4*t,4)}, {vr(FA[buf]+24+4*j,4)}, {vr(ACC+16*t+4*j,4)}" for t in range(6) for j in range(4)]
    def adv(b=0):
        return [f"v_add_u32 v{22+5*b+i}, s{33 if i<3 else 34}, v{12+i}" for i in range(5)]+[f"s_add_u32 s33, s33, {WSL}",f"s_cmp_eq_u32 s33, {NW*WSL}","s_cselect_b32 s33, 0, s33",f"s_add_u32 s34, s34, {TSL}",f"s_cmp_eq_u32 s34, {NT*TSL}","s_cselect_b32 s34, 0, s34"]
    k(f"s_mov_b32 s33, {WSL}\ns_mov_b32 s34, {TSL}")
    for x in adv(): k(x)
    k("s_mov_b32 s30, 0\ns_barrier")
    T()
    k("s_barrier")
    T()
    for x in reads(0,12,15): k(x)
    k(f"LF_loop:")
    for b in range(2):
        k("s_waitcnt lgkmcnt(0)")
        if dry: k(f"s_cbranch_vccnz LF_sk{b}\ns_barrier\nLF_sk{b}:")
        else: k("s_barrier")
        rd=reads(1-b,22+5*b,25+5*b)
        rest=adv(1-b)+(["s_add_u32 s30, s30, 1","s_cmp_lt_u32 s30, 10"] if b else [])
        m=mfs(b); p=0
        va=rest[:5]; sa=rest[5:]
        for i,x in enumerate(m):
            k(x)
            e=min(len(rd),(len(rd)*(i+1)+span-1)//span)
            for y in rd[p:e]: k(y)
            p=e
            if i<5: k(va[i])
            elif sa and i%2==0:
                k(sa.pop(0))
        for y in sa: k(y)
    if "prof" in var:
        k("s_cselect_b32 s68, 1, 0\ns_memtime s[66:67]\ns_waitcnt lgkmcnt(0)\ns_mov_b32 m0, s30\nv_writelane_b32 v159, s66, m0\ns_cmp_eq_u32 s68, 1")
    k(f"s_cbranch_scc1 LF_loop")
    if "prof" in var: k(f"s_lshl_b32 s78, s2, 9\ns_lshl_b32 s79, s3, 6\ns_add_u32 s78, s78, s79\ns_add_u32 s78, s78, {WS_STAMP+131072}\nv_lshl_add_u32 v158, v1, 2, s78\ns_mov_b64 exec, 0xffff\nglobal_store_dword v158, v159, {WS}\ns_mov_b64 exec, -1")
    if dry: k("s_waitcnt lgkmcnt(0)\ns_cbranch_vccnz LF_dried")
    T()
    k("s_barrier")
    ST=112; CS=128
    for j in range(4): k(f"ds_read_b128 {vr(ST+4*j,4)}, v19 offset:{256*j}")
    for t in range(6): k(f"ds_read_b128 {vr(CS+4*t,4)}, v17 offset:{(t//3)*384+(t%3)*64}")
    k("s_waitcnt lgkmcnt(0)")
    for i in range(3):
        E=32
        G=lambda j,p: ACC+16*i+4*j+2*p
        U=lambda j,p: ACC+48+16*i+4*j+2*p
        JP=[(j,p) for j in range(4) for p in range(2)]
        for j,p in JP:
            k(f"v_pk_fma_f32 {vr(G(j,p),2)}, {vr(CS+4*i+2*p,2)}, {vr(ST+4*j,2)}, {vr(G(j,p),2)} op_sel:[0,0,0] op_sel_hi:[1,0,1] neg_lo:[1,0,0] neg_hi:[1,0,0]")
        for j,p in JP: k(f"v_pk_mul_f32 {vr(E+4*j+2*p,2)}, {vr(G(j,p),2)}, {vr(ST+4*j,2)} op_sel:[0,1] op_sel_hi:[1,1]")
        ex=[f"v_exp_f32 v{E+r}, v{E+r}" for r in range(16)]
        uu=[f"v_pk_fma_f32 {vr(U(j,p),2)}, {vr(CS+12+4*i+2*p,2)}, {vr(ST+4*j,2)}, {vr(U(j,p),2)} op_sel:[0,0,0] op_sel_hi:[1,0,1] neg_lo:[1,0,0] neg_hi:[1,0,0]" for j,p in JP]
        for x in merge(ex,uu): k(x)
        for j,p in JP: k(f"v_pk_fma_f32 {vr(E+4*j+2*p,2)}, {vr(E+4*j+2*p,2)}, {vr(ST+4*j+2,2)}, {vr(ST+4*j+2,2)} op_sel:[0,0,0] op_sel_hi:[1,0,0]")
        rc=[f"v_rcp_f32 v{E+r}, v{E+r}" for r in range(16)]
        gu=[f"v_pk_mul_f32 {vr(G(j,p),2)}, {vr(G(j,p),2)}, {vr(U(j,p),2)}" for j,p in JP]
        for x in merge(rc,gu): k(x)
        for j,p in JP: k(f"v_pk_mul_f32 {vr(G(j,p),2)}, {vr(G(j,p),2)}, {vr(E+4*j+2*p,2)}")
        O=48+8*(i&1)
        for j,p in JP: k(f"v_cvt_pk_bf16_f32 v{O+2*j+p}, v{G(j,p)}, v{G(j,p)+1}")
        for jj in (0,2):
            k(f"v_permlane16_swap_b32 v{O+2*jj}, v{O+2*jj+2}\nv_permlane16_swap_b32 v{O+2*jj+1}, v{O+2*jj+3}")
            k(f"global_store_dwordx4 v{18 if jj==0 else 20}, {vr(O+2*jj,4)}, {WS} offset:{512*i} sc1")
    T()
    k(ids2)
    k(f"""
    v_lshlrev_b32 v10, 4, v1
    s_and_b32 s8, s3, 1
    s_lshr_b32 s9, s3, 1
    s_lshl_b32 s21, s7, 2
    s_lshl_b32 s10, s9, 1
    s_add_u32 s21, s21, s10
    s_mul_i32 s21, s21, 48
    s_add_u32 s21, s21, s8
    s_lshl_b32 s21, s21, 10
    s_add_u32 s21, s21, {WS_HID}
    s_add_u32 s22, s21, {48*1024}
    s_mov_b32 s48, s42
    s_mov_b32 s49, s43
    s_mov_b32 s50, {WS_HID+2048*1536*2}
    s_mov_b32 s51, 0x20000
    s_mul_i32 s10, s3, 5120
    s_add_u32 s10, s10, {6*W3}
    v_add_u32 v14, s10, v10
    s_xor_b32 s10, s3, 1
    s_mul_i32 s10, s10, 5120
    s_add_u32 s10, s10, {6*W3}
    v_add_u32 v15, s10, v10
    s_mul_i32 s10, s8, 5120
    v_add_u32 v4, s10, v10
    v_add_u32 v5, {3*W3}, v4
    v_add_u32 v6, {6*W3}, v4
    v_lshlrev_b32 v22, 9, v9
    v_lshl_add_u32 v22, v8, 3, v22
    s_lshl_b32 s10, s3, 7
    s_add_u32 s10, s10, {RES}
    v_add_u32 v2, s10, v22
    s_lshl_b32 s10, s7, 6
    s_lshl_b32 s11, s3, 4
    s_add_u32 s10, s10, s11
    v_add_u32 v23, s10, v8
    v_mul_u32_u24 v23, 1280, v23
    v_lshl_add_u32 v23, v9, 3, v23
    s_mul_i32 s10, s6, 160
    v_add_u32 v3, s10, v23
    v_mov_b32 v9, 1
    s_lshr_b32 s10, s7, 1
    s_mul_i32 s10, s10, {CSTR}
    s_add_u32 s10, s10, {WS_CNT+32*CSTR}
    v_mov_b32 v11, s10
    v_add_u32 v12, {16*CSTR}, v21
    s_mov_b64 exec, 1
    s_waitcnt vmcnt(0)
    ds_add_rtn_u32 v13, v7, v9
    s_waitcnt lgkmcnt(0)
    v_cmp_eq_u32 vcc, 3, v13
    s_cbranch_vccz LF_c3
    global_atomic_add v13, v21, v9, {WS} sc0 sc1
    s_waitcnt vmcnt(0)
    v_cmp_eq_u32 vcc, 15, v13
    s_cbranch_vccz LF_c3
    global_store_dword v12, v9, {WS} sc1
LF_c3:
    s_mov_b64 exec, -1
    s_cmp_lg_u32 s3, 0
    s_cbranch_scc1 LF_p3d
    """)
    poll(k,11,1,"LF_p3",13,sleep=sl2)
    AC3=16; AF=[56,76]; BR=96; NBR=20
    def areads(i):
        st=i//2; slot=st%NW3; off=(slot%3)*W3+(i&1)*10240
        return [f"ds_read_b128 {vr(AF[i&1]+4*dt,4)}, v{4+slot//3} offset:{off+1024*dt}" for dt in range(5)]
    def bload(i):
        o=[f"buffer_load_dwordx4 {vr(BR+8*(i%NBR)+4*j,4)}, v10, s[48:51], s{21+j} offen offset:{2048*(i&1)} {'' if 'nosc' in var else 'sc1 nt' if 'nt' in var else 'sc1'}" for j in range(2)]
        if "nold3" in var: o=[]
        if i&1: o+=["s_add_u32 s21, s21, 4096","s_add_u32 s22, s22, 4096"]
        return o
    k("s_barrier")
    T()
    pre=nbpre
    for i in range(pre):
        for x in bload(i): k(x)
    for x in areads(0): k(x)
    issued=pre
    for i in range(24):
        k(f"s_waitcnt vmcnt({2*(issued-(i+1))}) lgkmcnt(0)")
        if i in (3,9,15): k("s_barrier")
        fill=areads(i+1) if i<23 else []
        c=0
        while issued<24 and issued<i+NBR and c<bstep:
            fill=fill+bload(issued); issued+=1; c+=1
        m=[f"v_mfma_f32_16x16x32_bf16 {vr(AC3+20*j+4*dt,4)}, {vr(AF[i&1]+4*dt,4)}, {vr(BR+8*(i%NBR)+4*j,4)}, {vr(AC3+20*j+4*dt,4) if i else '0'}" for dt in range(5) for j in range(2)]
        for n,x in enumerate(m):
            k(x)
            if n<len(fill): k(fill[n])
        for x in fill[len(m):]: k(x)
    T()
    k("s_cmp_eq_u32 s8, 0\ns_cbranch_scc1 LF_x0")
    for dt in range(5): k(f"ds_write_b128 v14, {vr(AC3+4*dt,4)} offset:{1024*dt}")
    for r in range(0,20,2): k(f"v_mov_b64 {vr(AC3+r,2)}, {vr(AC3+20+r,2)}")
    k("s_branch LF_x1\nLF_x0:")
    for dt in range(5): k(f"ds_write_b128 v14, {vr(AC3+20+4*dt,4)} offset:{1024*dt}")
    k("LF_x1:")
    for dt in range(5): k(f"ds_read_b64_tr_b16 {vr(96+2*dt,2)}, v2 offset:{dt*2048}")
    k("s_waitcnt lgkmcnt(0)\ns_barrier")
    for dt in range(5): k(f"ds_read_b128 {vr(64+4*dt,4)}, v15 offset:{1024*dt}")
    for dt in range(5):
        b=AC3+4*dt; t=112+4*dt
        k(f"""
        v_lshlrev_b32 v{t}, 16, v{96+2*dt}
        v_and_b32 v{t+1}, 0xffff0000, v{96+2*dt}
        v_lshlrev_b32 v{t+2}, 16, v{97+2*dt}
        v_and_b32 v{t+3}, 0xffff0000, v{97+2*dt}
        v_pk_add_f32 {vr(b,2)}, {vr(b,2)}, {vr(t,2)}
        v_pk_add_f32 {vr(b+2,2)}, {vr(b+2,2)}, {vr(t+2,2)}
        """)
    for dt in range(5):
        b=AC3+4*dt; t=64+4*dt
        k(f"""
        s_waitcnt lgkmcnt({4-dt})
        v_pk_add_f32 {vr(b,2)}, {vr(b,2)}, {vr(t,2)}
        v_pk_add_f32 {vr(b+2,2)}, {vr(b+2,2)}, {vr(t+2,2)}
        v_cvt_pk_bf16_f32 v{b}, v{b}, v{b+1}
        v_cvt_pk_bf16_f32 v{b+1}, v{b+2}, v{b+3}
        global_store_dwordx2 v3, {vr(b,2)}, s[38:39] offset:{dt*32}
        """)
    if diag:
        k("s_waitcnt vmcnt(0)"); T(); T.flush(WS,0)
    k("L1_end:\ns_endpgm")
    return k
def single(k, comment=""):
    g=k.grid; b=k.block
    s=comment+"; @launch grid=(%d,%d,%d) block=(%d,%d,%d) lds=%d\n"%(g[0],g[1],g[2],b[0],b[1],b[2],k.lds)
    return s+HEADER+k.text()+'.section .rodata,"a"\n.p2align 6\n'+k.desc()
if __name__=="__main__":
    from gate import *
    import build, sys
    k1.SAFE=True
    open("f_diag.s","w").write(emit([gate(),scrub(),gen(diag=True)],verbose=True))
    for n,a in enumerate(sys.argv[1:]):
        open("f_%s.s"%"bcdefgh"[n],"w").write(emit([gate(),scrub(),gen(diag=True,**eval("dict(%s)"%a))]))
    k1.SAFE=False
    open("v_fused.s","w").write(single(gen(),build.HDR))
```

```python
from ag import *
from common import *
import k1
from k1 import ln_finalize
import math
NAME="sequential_preLN__ssm_conv_s4__glu_gated_swiglu__prompt_kernel"
WSL=12288; NW=9; TSL=8192; NT=6; TR0=NW*WSL; EX0=TR0+NT*TSL
CSL=EX0; PRT=EX0+1024; STA=EX0+2048
W3=20480; NW3=7; NS3=12; RES=NW3*W3
def poll(k,vaddr,target,lab,vt,pre=True,sleep=2):
    k(f"""
{lab}:
    global_load_dword v{vt}, v{vaddr}, s[42:43] sc1
    s_waitcnt vmcnt(0)
    v_cmp_ne_u32 vcc, {target}, v{vt}
    s_cbranch_vccz {lab}d
    s_sleep {sleep}
    {k1.bound(lab+"d")}
    s_branch {lab}
{lab}d:
    """)
def gen(diag=False, span=18, k1a={}, sl1=2, sl2=2, dry=False, nbpre=7, bstep=1, var=''):
    k=k1.gen_k1(diag=diag,fused=NAME,**k1a); T=k.T
    WS="s[42:43]"
    TL=k1.Stamps(k,diag); TL.n=1
    ids1="""
    s_and_b32 s6, s2, 3
    s_lshl_b32 s6, s6, 2
    s_bfe_u32 s7, s2, 0x20003
    s_add_u32 s6, s6, s7
    s_bfe_u32 s7, s2, 0x10002
    s_lshl_b32 s7, s7, 3
    s_lshr_b32 s5, s2, 5
    s_add_u32 s7, s7, s5
    """
    ids2="""
    s_and_b32 s6, s2, 1
    s_lshl_b32 s6, s6, 2
    s_bfe_u32 s7, s2, 0x20003
    s_add_u32 s6, s6, s7
    s_bfe_u32 s7, s2, 0x20001
    s_lshl_b32 s7, s7, 3
    s_lshr_b32 s5, s2, 5
    s_add_u32 s7, s7, s5
    """
    k(f"""
    {"s_memrealtime s[100:101]" if diag else ""}
    s_mov_b32 s69, 0
    s_cmp_ge_u32 s3, 4
    s_cbranch_scc1 LF_L
    s_cmp_lg_u32 s3, 0
    s_cbranch_scc1 LF_C
    v_mov_b32 v2, {WS_CNT+50*CSTR}
    v_mov_b32 v3, 1
    s_mov_b64 exec, 1
    global_atomic_add v2, v3, {WS} sc1
    s_mov_b64 exec, -1
    s_branch LF_C
LF_G:
    s_setprio 0
    s_mov_b32 s69, 1
LF_L:
    """)
    TL()
    k(ids1)
    k(f"""
    s_sub_u32 s3, s3, 4
    s_load_dwordx4 s[36:39], s[0:1], 80
    v_lshlrev_b32 v10, 4, v1
    v_bfe_u32 v4, v1, 2, 2
    v_and_b32 v5, 3, v1
    v_lshrrev_b32 v3, 4, v1
    s_and_b32 s9, s3, 1
    s_mul_i32 s8, s9, 12
    v_add_u32 v2, s8, v3
    s_mul_i32 s10, s6, 192
    """)
    for i in range(3):
        k(f"""
        v_add_u32 v6, {4*i}, v2
        v_mul_u32_u24 v7, 43, v6
        v_lshrrev_b32 v7, 7, v7
        v_mad_i32_i24 v8, v7, -3, v6
        v_and_b32 v9, 2, v7
        v_xor_b32 v9, v9, v5
        v_lshl_add_u32 v7, v7, 2, v4
        v_mul_u32_u24 v7, 3072, v7
        v_lshl_add_u32 v7, v8, 6, v7
        v_lshl_add_u32 v7, v9, 4, v7
        v_add_u32 v{60+i}, s10, v7
        """)
    k(f"""
    v_subrev_u32 v61, 1024, v61
    v_subrev_u32 v62, 2048, v62
    s_mul_i32 s20, s3, 3072
    s_mov_b32 s26, 0
    s_mov_b32 s48, s42
    s_mov_b32 s49, s43
    s_mov_b32 s50, {WS_W2+8*48*5120}
    s_mov_b32 s51, 0x20000
    s_mov_b32 s54, {640*3072}
    s_mov_b32 s55, 0x20000
    s_mov_b32 s28, s20
    s_cmp_ge_u32 s3, 2
    s_waitcnt lgkmcnt(0)
    s_cselect_b32 s52, s38, s36
    s_cselect_b32 s53, s39, s37
    s_branch LF_go1
LF_dw:
    s_mov_b32 m0, s28
    s_add_u32 s28, s28, {WSL}
    buffer_load_dwordx4 v60, s[52:55], s26 offen lds
    buffer_load_dwordx4 v61, s[52:55], s26 offen offset:1024 lds
    buffer_load_dwordx4 v62, s[52:55], s26 offen offset:2048 lds
    s_add_u32 s26, s26, {32*3072}
    s_cmp_ge_u32 s28, {TR0}
    s_cselect_b32 s28, s20, s28
    s_setpc_b64 s[70:71]
LF_dt:
    s_mov_b32 m0, s29
    s_add_u32 s29, s29, 1024
    buffer_load_dwordx4 v13, s[48:51], s27 offen sc1 lds
    s_mov_b32 m0, s29
    s_add_u32 s29, s29, {TSL-1024}
    buffer_load_dwordx4 v14, s[48:51], s27 offen sc1 lds
    s_add_u32 s27, s27, {32*4096}
    s_cmp_ge_u32 s29, {EX0}
    s_cselect_b32 s29, s23, s29
    s_setpc_b64 s[70:71]
LF_go1:
    """)
    DW="s_call_b64 s[70:71], LF_dw"; DT="s_call_b64 s[70:71], LF_dt"
    TL()
    for i in range(6): k(DW)
    k(f"""
    s_lshl_b32 s8, s3, 3
    v_add_u32 v6, s8, v4
    v_lshlrev_b32 v6, 12, v6
    v_lshl_add_u32 v6, v3, 6, v6
    s_and_b32 s9, s3, 1
    s_lshl_b32 s8, s9, 1
    v_xor_b32 v7, s8, v5
    v_lshl_add_u32 v6, v7, 4, v6
    s_lshl_b32 s8, s7, 8
    v_add_u32 v13, s8, v6
    v_add_u32 v14, 16384, v13
    s_lshl_b32 s23, s3, 11
    s_add_u32 s23, s23, {TR0}
    s_mov_b32 s29, s23
    s_mov_b32 s27, {WS_HT}
    ; LN2 partial: source v15/v16 (rows 40n.., tokens 32L..), destination v17, counter v18
    v_lshrrev_b32 v2, 2, v1
    s_mul_i32 s8, s6, 40
    v_add_u32 v15, s8, v2
    v_lshlrev_b32 v15, 12, v15
    v_lshl_add_u32 v15, v5, 4, v15
    s_lshl_b32 s8, s7, 8
    s_lshl_b32 s9, s3, 6
    s_add_u32 s8, s8, s9
    v_add_u32 v15, s8, v15
    v_lshrrev_b32 v6, 5, v1
    v_lshl_or_b32 v16, v6, 30, v15
    v_lshlrev_b32 v17, 9, v6
    v_lshl_add_u32 v17, v5, 5, v17
    v_bfe_u32 v7, v1, 4, 1
    v_lshl_add_u32 v17, v7, 4, v17
    s_lshl_b32 s8, s7, 4
    s_add_u32 s9, s8, s6
    s_lshl_b32 s9, s9, 10
    s_lshl_b32 s10, s3, 7
    s_add_u32 s9, s9, s10
    s_add_u32 s9, s9, {WS_PART}
    v_add_u32 v17, s9, v17
    s_mul_i32 s9, s7, {CSTR}
    s_add_u32 s9, s9, {WS_CNT}
    v_mov_b32 v18, s9
    v_mov_b32 v19, 1
    v_add_u32 v20, s8, v3
    v_lshlrev_b32 v20, 10, v20
    v_bfe_u32 v6, v1, 3, 1
    v_lshl_add_u32 v20, v6, 9, v20
    v_and_b32 v6, 7, v1
    v_lshl_add_u32 v20, v6, 4, v20
    s_add_u32 s9, s10, {WS_PART}
    v_add_u32 v20, s9, v20
    v_add_u32 v21, 8192, v20
    v_add_u32 v40, 4096, v20
    v_add_u32 v41, 4096, v21
    v_lshl_add_u32 v22, v6, 2, v3
    s_lshl_b32 s9, s3, 5
    v_add_u32 v22, s9, v22
    v_lshlrev_b32 v22, 4, v22
    v_add_u32 v22, {STA}, v22
    ; colsum source v42, LDS v43 ; phase-1 counters v44
    v_cmp_lt_u32 vcc, 23, v1
    v_mov_b32 v6, {6144-384}
    s_mul_i32 s9, s6, 384
    s_add_u32 s9, s9, {WS_COLSUM}
    v_cndmask_b32 v6, 0, v6, vcc
    v_add3_u32 v42, v10, v6, s9
    v_add_u32 v43, {CSL}, v10
    s_and_b32 s9, s2, 1
    s_lshl_b32 s9, s9, 2
    v_and_b32 v44, 3, v1
    v_add_u32 v44, s9, v44
    v_mul_u32_u24 v44, {CSTR}, v44
    v_add_u32 v44, {WS_CNT+56*CSTR}, v44
    s_mov_b32 s11, {WS_HT}
    s_mov_b32 s12, {WS_HT+0x10000}
    s_mov_b32 s13, {WS_HT+0x20000}
    s_cmp_eq_u32 s69, 0
    s_cbranch_scc1 LF_l2
    s_barrier
LF_l2:
    """)
    TL()
    k(f"""
    s_cmp_lg_u32 s3, 0
    s_cbranch_scc1 LF_l4
    """)
    TL()
    poll(k,44,1,"LF_p1",12,sleep=sl1)
    k(f"""
LF_l4:
    s_barrier
    {DT}
    {DT}
    buffer_load_dwordx4 v[48:51], v15, s[48:51], s11 offen sc1
    buffer_load_dwordx4 v[52:55], v15, s[48:51], s12 offen sc1
    buffer_load_dwordx4 v[56:59], v16, s[48:51], s13 offen sc1
    """)
    for i in range(NT-2): k(DT)
    ops=["T0","T0","T1","T1","P","P","P"]+sum([["T%d"%i]*2 for i in range(2,NT)],[])
    def wait(need):
        last=max([i for i,o in enumerate(ops) if o in need]+[-1])
        return min(63,len(ops)-1-last)
    k(f"s_waitcnt vmcnt({wait(['T0'])})\ns_barrier")
    for i in range(6,NW): k(DW); ops+=["W%d"%i]*3
    S1=64; S2=72
    def partial():
        for j in range(3):
            for q in range(4):
                k(f"v_lshlrev_b32 v{80+2*q}, 16, v{48+4*j+q}\nv_and_b32 v{81+2*q}, 0xffff0000, v{48+4*j+q}")
            for q in range(8):
                if j==0: k(f"v_mov_b32 v{S1+q}, v{80+q}\nv_mul_f32 v{S2+q}, v{80+q}, v{80+q}")
                else: k(f"v_add_f32 v{S1+q}, v{S1+q}, v{80+q}\nv_fmac_f32 v{S2+q}, v{80+q}, v{80+q}")
    def partial2():
        for i in range(8): k(f"v_permlane32_swap_b32 v{S1+i}, v{S2+i}")
        for i in range(8): k(f"v_add_f32 v{S1+i}, v{S1+i}, v{S2+i}")
        for i in range(4): k(f"v_permlane16_swap_b32 v{S1+i}, v{S1+4+i}")
        for i in range(4): k(f"v_add_f32 v{S1+i}, v{S1+i}, v{S1+4+i}")
        for rr in (8,4):
            for i in range(4): k(f"v_add_f32_dpp v{S1+i}, v{S1+i}, v{S1+i} row_ror:{rr} row_mask:0xf bank_mask:0xf")
        k(f"s_mov_b32 exec_lo, 0x000f000f\ns_mov_b32 exec_hi, 0x000f000f\nglobal_store_dwordx4 v17, {vr(S1,4)}, {WS} sc1\ns_mov_b64 exec, -1")
    sig=None
    for sg in range(20):
        need=["T%d"%(sg+1),"W%d"%(sg+1)]
        if sg==0: need.append("P")
        if sg==7: need.append("S")
        if sg==13: need.append("C")
        k(f"s_waitcnt vmcnt({wait(need)})\ns_barrier")
        if sg+NT<20: k(DT); ops+=["T%d"%(sg+NT)]*2
        if sg+NW<20: k(DW); ops+=["W%d"%(sg+NW)]*3
        if sg==0: partial()
        if sg==1: partial2(); ops.append("S")
        if sg==7:
            k(f"s_cmp_lg_u32 s3, 0\ns_cbranch_scc1 LF_nsig\ns_mov_b64 exec, 1\nglobal_atomic_add v18, v19, {WS} sc1\ns_mov_b64 exec, -1\nLF_nsig:")
        if sg==11: k(f"v_mov_b32 v46, {WS_CNT+50*CSTR}\nv_mov_b32 v47, {WS_CNT+49*CSTR}\nglobal_load_dword v45, v46, {WS} sc1\nglobal_load_dword v12, v47, {WS} sc1\nglobal_load_dword v23, v18, {WS} sc1"); ops+=["C","C","C"]
        if sg==13:
            k(f"v_cmp_ne_u32 vcc, 16, v23\ns_cbranch_vccz LF_cnt")
            poll(k,18,16,"LF_p2",23,sleep=1)
            k(f"""
LF_cnt:
            v_cmp_ne_u32 vcc, 48, v12
            s_cbranch_vccz LF_p5d
            """)
            poll(k,47,48,"LF_p5",12,sleep=4)
            k(f"""
            global_load_dwordx4 v[48:51], v42, {WS} sc1
            global_load_dwordx4 v[24:27], v20, {WS} sc1
            global_load_dwordx4 v[28:31], v40, {WS} sc1
            global_load_dwordx4 v[32:35], v21, {WS} sc1
            global_load_dwordx4 v[36:39], v41, {WS} sc1
            """)
            ops+=["G"]*5
        if sg==17:
            k(f"""
            s_waitcnt vmcnt(0)
            ds_write_b128 v43, v[48:51]
            v_add_f32 v24, v24, v28
            v_add_f32 v25, v25, v29
            v_add_f32 v26, v26, v30
            v_add_f32 v27, v27, v31
            v_add_f32 v32, v32, v36
            v_add_f32 v33, v33, v37
            v_add_f32 v34, v34, v38
            v_add_f32 v35, v35, v39
            v_add_f32 v24, v24, v32
            v_add_f32 v25, v25, v33
            v_add_f32 v26, v26, v34
            v_add_f32 v27, v27, v35
            v_permlane32_swap_b32 v24, v26
            v_permlane32_swap_b32 v25, v27
            v_add_f32 v24, v24, v26
            v_add_f32 v25, v25, v27
            v_permlane16_swap_b32 v24, v25
            v_add_f32 v24, v24, v25
            v_mov_b32_dpp v25, v24 row_ror:8 row_mask:0xf bank_mask:0xf
            """)
            ln_finalize(k,24,25,26,28,30)
            k(f"""
            v_rcp_f32 v29, v30
            v_mul_f32 v30, v30, v30
            s_mov_b32 exec_lo, 0x00ff00ff
            s_mov_b32 exec_hi, 0x00ff00ff
            v_mul_f32 v29, {f2u(-math.log2(math.e))}, v29
            ds_write_b128 v22, v[28:31]
            s_mov_b64 exec, -1
            """)
        if sg==18:
            k("s_waitcnt lgkmcnt(0)")
            k(ids2)
            k(f"""
            s_mul_i32 s22, s3, 5120
            s_mov_b32 s28, s22
            s_mul_i32 s20, s6, {48*5120}
            s_add_u32 s20, s20, s22
            s_add_u32 s20, s20, {WS_W2}
            s_cmp_lt_u32 s3, 2
            s_cselect_b32 s24, 1, 0
            v_lshrrev_b32 v6, 5, v1
            v_bfe_u32 v7, v1, 1, 2
            v_lshl_add_u32 v6, v6, 2, v7
            v_lshlrev_b32 v6, 12, v6
            v_bfe_u32 v7, v1, 3, 2
            v_lshl_add_u32 v6, v7, 5, v6
            v_and_b32 v7, 1, v1
            v_lshl_add_u32 v6, v7, 4, v6
            s_mul_i32 s8, s6, {80*4096}
            s_lshl_b32 s9, s7, 7
            s_add_u32 s8, s8, s9
            s_add_u32 s8, s8, {WS_HT}
            v_add_u32 v16, s8, v6
            """)
    k(f"""
    s_branch LF_go3
LF_dw3:
    s_mov_b32 m0, s28
    s_add_u32 s31, s20, 4096
    buffer_load_dwordx4 v10, s[48:51], s20 offen sc1 lds
    buffer_load_dwordx4 v10, s[48:51], s20 offen offset:1024 sc1 lds
    buffer_load_dwordx4 v10, s[48:51], s20 offen offset:2048 sc1 lds
    buffer_load_dwordx4 v10, s[48:51], s20 offen offset:3072 sc1 lds
    s_add_u32 m0, s28, 4096
    s_add_u32 s28, s28, {W3}
    buffer_load_dwordx4 v10, s[48:51], s31 offen sc1 lds
    s_add_u32 s20, s20, {W3}
    s_setpc_b64 s[70:71]
LF_go3:
    s_barrier
    v_cmp_ne_u32 vcc, 0x60, v45
    s_cbranch_vccz LF_p4d
    """)
    poll(k,46,"0x60","LF_p4",45,sleep=4)
    k(f"""
    s_mov_b32 s30, 0
LF_pf3:
    s_call_b64 s[70:71], LF_dw3
    s_add_u32 s30, s30, 1
    s_cmp_lt_u32 s30, {NW3}
    s_cbranch_scc1 LF_pf3
    s_cmp_eq_u32 s24, 1
    s_cbranch_scc1 LF_nores
    s_sub_u32 s27, s3, 2
    s_mul_i32 s27, s27, 5
    s_lshl_b32 s26, s27, 15
    s_lshl_b32 s27, s27, 10
    s_add_u32 s27, s27, {RES}
    """)
    for i in range(5): k(f"s_mov_b32 m0, s27\ns_add_u32 s27, s27, 1024\nbuffer_load_dwordx4 v16, s[48:51], s26 offen sc1 lds\ns_add_u32 s26, s26, 32768")
    k("LF_nores:\nv_add_u32 v11, s22, v10\ns_waitcnt vmcnt(36)")
    for st in range(NW3,NS3):
        k("s_add_u32 s31, s20, 4096")
        for p in range(5): k(f"buffer_load_dwordx4 {vr(64+20*(st-NW3)+4*p,4)}, v10, s[48:51], s{20 if p<4 else 31} offen offset:{1024*(p%4)} sc1")
        k(f"s_add_u32 s20, s20, {W3}")
    TL()
    k(f"s_waitcnt vmcnt({5*(NS3-NW3)})\ns_barrier")
    for grp in ((7,8),(9,10,11)):
        k(f"s_barrier\ns_waitcnt vmcnt({5*(NS3-1-grp[-1])})")
        for r in grp:
            for p in range(5): k(f"ds_write_b128 v11, {vr(64+20*(r-NW3)+4*p,4)} offset:{1024*p}")
            k(f"v_add_u32 v11, {W3}, v11")
        k("s_waitcnt lgkmcnt(0)")
    k("s_barrier\ns_barrier")
    if diag:
        TL.n=11; k("s_add_u32 s3, s3, 4"); TL.flush(WS,0)
    k("s_endpgm")
    k(f"""
LF_M:
    s_bfe_u32 s7, s2, 0x20003
    s_mul_i32 s7, s7, {CSTR}
    s_add_u32 s8, s7, {WS_CNT+52*CSTR}
    v_mov_b32 v2, s8
    v_mov_b32 v3, 1
    v_mul_u32_u24 v5, {4*CSTR}, v1
    s_add_u32 s8, s7, {WS_CNT+56*CSTR}
    v_add_u32 v5, s8, v5
    s_mov_b64 exec, 1
    s_waitcnt vmcnt(0)
    ds_add_rtn_u32 v4, v232, v3
    s_waitcnt lgkmcnt(0)
    v_cmp_eq_u32 vcc, 3, v4
    s_cbranch_vccz LF_m2
    global_atomic_add v4, v2, v3, {WS} sc0 sc1
    s_waitcnt vmcnt(0)
    v_cmp_eq_u32 vcc, 39, v4
    s_cbranch_vccz LF_m2
    s_mov_b64 exec, 3
    global_store_dword v5, v3, {WS} sc1
LF_m2:
    s_mov_b64 exec, -1
    s_barrier
LF_C:
    """)
    if diag: T.n=4
    k(ids1)
    k(f"""
    v_lshrrev_b32 v2, 2, v1
    v_and_b32 v4, 3, v1
    v_lshrrev_b32 v5, 5, v1
    v_bfe_u32 v6, v1, 4, 1
    v_and_b32 v8, 15, v1
    v_lshrrev_b32 v9, 4, v1
    v_lshlrev_b32 v10, 6, v2
    v_and_b32 v10, 0xc0, v10
    v_lshl_add_u32 v10, v4, 3, v10
    v_lshl_add_u32 v10, v6, 5, v10
    v_mul_u32_u24 v11, 1536, v9
    v_add_u32 v11, v11, v10
    s_and_b32 s8, s3, 1
    s_lshr_b32 s9, s3, 1
    s_lshl_b32 s10, s8, 5
    v_xor_b32 v12, s10, v11
    v_xor_b32 v13, 32, v12
    s_lshl_b32 s10, s8, 8
    v_add_u32 v12, s10, v12
    v_add_u32 v14, 256, v12
    s_lshl_b32 s10, s8, 9
    v_add_u32 v13, s10, v13
    v_lshl_add_u32 v15, v9, 11, v10
    s_lshl_b32 s10, s9, 9
    s_add_u32 s10, s10, {TR0}
    v_add_u32 v15, s10, v15
    v_xor_b32 v16, 32, v15
    s_mul_i32 s10, s8, 192
    s_add_u32 s10, s10, {CSL}
    v_lshl_add_u32 v17, v9, 4, s10
    s_lshl_b32 s10, s9, 10
    s_add_u32 s10, s10, {STA}
    v_lshl_add_u32 v19, v8, 4, s10
    s_lshl_b32 s10, s7, 3
    s_lshl_b32 s11, s9, 2
    s_add_u32 s10, s10, s11
    s_mul_i32 s10, s10, {48*1024}
    s_mul_i32 s11, s6, 3072
    s_add_u32 s10, s10, s11
    s_mul_i32 s11, s8, 1536
    s_add_u32 s10, s10, s11
    s_add_u32 s10, s10, {WS_HID}
    v_mul_u32_u24 v18, {48*1024}, v6
    v_lshl_add_u32 v18, v5, 8, v18
    v_lshl_add_u32 v18, v8, 4, v18
    v_add_u32 v18, s10, v18
    v_add_u32 v20, {2*48*1024}, v18
    s_mul_i32 s10, s7, {CSTR}
    s_add_u32 s10, s10, {WS_CNT+16*CSTR}
    v_mov_b32 v21, s10
    v_mov_b32 v7, {PRT}
    v_mov_b32 v3, 0
    ds_write_b32 v7, v3
    s_load_dwordx2 s[38:39], s[0:1], 104
    """)
    ACC=160
    if dry:
        for i in range(5): k(f"v_mov_b32 v{22+i}, v{12+i}")
        k("s_mov_b32 s33, 0\ns_mov_b32 s34, 0\ns_mov_b32 s30, 100\ns_mov_b64 vcc, -1\ns_branch LF_loop\nLF_dried:\ns_mov_b64 vcc, 0")
    for r in range(ACC,ACC+96,2): k(f"v_mov_b64 {vr(r,2)}, 0")
    FA=[32,72]
    def reads(buf,va,vb):
        o=[]
        for j in range(4):
            for e in range(2): o.append(f"ds_read_b64_tr_b16 {vr(FA[buf]+24+4*j+2*e,2)}, v{vb+(j&1)} offset:{e*1024+(j>>1)*256}")
        for t in range(6):
            for e in range(2): o.append(f"ds_read_b64_tr_b16 {vr(FA[buf]+4*t+2*e,2)}, v{va+t%3} offset:{(t//3)*6144+e*768}")
        return o[8:10]+o[0:8]+o[10:]
    def mfs(buf): return [f"v_mfma_f32_16x16x32_bf16 {vr(ACC+16*t+4*j,4)}, {vr(FA[buf]+4*t,4)}, {vr(FA[buf]+24+4*j,4)}, {vr(ACC+16*t+4*j,4)}" for t in range(6) for j in range(4)]
    def adv(b=0):
        return [f"v_add_u32 v{22+5*b+i}, s{33 if i<3 else 34}, v{12+i}" for i in range(5)]+[f"s_add_u32 s33, s33, {WSL}",f"s_cmp_eq_u32 s33, {NW*WSL}","s_cselect_b32 s33, 0, s33",f"s_add_u32 s34, s34, {TSL}",f"s_cmp_eq_u32 s34, {NT*TSL}","s_cselect_b32 s34, 0, s34"]
    k(f"s_mov_b32 s33, {WSL}\ns_mov_b32 s34, {TSL}")
    for x in adv(): k(x)
    k("s_mov_b32 s30, 0\ns_barrier")
    T()
    k("s_barrier")
    T()
    for x in reads(0,12,15): k(x)
    k(f"LF_loop:")
    for b in range(2):
        k("s_waitcnt lgkmcnt(0)")
        if dry: k(f"s_cbranch_vccnz LF_sk{b}\ns_barrier\nLF_sk{b}:")
        else: k("s_barrier")
        rd=reads(1-b,22+5*b,25+5*b)
        rest=adv(1-b)+(["s_add_u32 s30, s30, 1","s_cmp_lt_u32 s30, 10"] if b else [])
        m=mfs(b); p=0
        va=rest[:5]; sa=rest[5:]
        for i,x in enumerate(m):
            k(x)
            e=min(len(rd),(len(rd)*(i+1)+span-1)//span)
            for y in rd[p:e]: k(y)
            p=e
            if i<5: k(va[i])
            elif sa and i%2==0:
                k(sa.pop(0))
        for y in sa: k(y)
    if "prof" in var:
        k("s_cselect_b32 s68, 1, 0\ns_memtime s[66:67]\ns_waitcnt lgkmcnt(0)\ns_mov_b32 m0, s30\nv_writelane_b32 v159, s66, m0\ns_cmp_eq_u32 s68, 1")
    k(f"s_cbranch_scc1 LF_loop")
    if "prof" in var: k(f"s_lshl_b32 s78, s2, 9\ns_lshl_b32 s79, s3, 6\ns_add_u32 s78, s78, s79\ns_add_u32 s78, s78, {WS_STAMP+131072}\nv_lshl_add_u32 v158, v1, 2, s78\ns_mov_b64 exec, 0xffff\nglobal_store_dword v158, v159, {WS}\ns_mov_b64 exec, -1")
    if dry: k("s_waitcnt lgkmcnt(0)\ns_cbranch_vccnz LF_dried")
    T()
    k("s_barrier")
    ST=112; CS=128
    for j in range(4): k(f"ds_read_b128 {vr(ST+4*j,4)}, v19 offset:{256*j}")
    for t in range(6): k(f"ds_read_b128 {vr(CS+4*t,4)}, v17 offset:{(t//3)*384+(t%3)*64}")
    k("s_waitcnt lgkmcnt(0)")
    for i in range(3):
        E=32
        G=lambda j,p: ACC+16*i+4*j+2*p
        U=lambda j,p: ACC+48+16*i+4*j+2*p
        JP=[(j,p) for j in range(4) for p in range(2)]
        for j,p in JP:
            k(f"v_pk_fma_f32 {vr(G(j,p),2)}, {vr(CS+4*i+2*p,2)}, {vr(ST+4*j,2)}, {vr(G(j,p),2)} op_sel:[0,0,0] op_sel_hi:[1,0,1] neg_lo:[1,0,0] neg_hi:[1,0,0]")
        for j,p in JP: k(f"v_pk_mul_f32 {vr(E+4*j+2*p,2)}, {vr(G(j,p),2)}, {vr(ST+4*j,2)} op_sel:[0,1] op_sel_hi:[1,1]")
        ex=[f"v_exp_f32 v{E+r}, v{E+r}" for r in range(16)]
        uu=[f"v_pk_fma_f32 {vr(U(j,p),2)}, {vr(CS+12+4*i+2*p,2)}, {vr(ST+4*j,2)}, {vr(U(j,p),2)} op_sel:[0,0,0] op_sel_hi:[1,0,1] neg_lo:[1,0,0] neg_hi:[1,0,0]" for j,p in JP]
        for x in merge(ex,uu): k(x)
        for j,p in JP: k(f"v_pk_fma_f32 {vr(E+4*j+2*p,2)}, {vr(E+4*j+2*p,2)}, {vr(ST+4*j+2,2)}, {vr(ST+4*j+2,2)} op_sel:[0,0,0] op_sel_hi:[1,0,0]")
        rc=[f"v_rcp_f32 v{E+r}, v{E+r}" for r in range(16)]
        gu=[f"v_pk_mul_f32 {vr(G(j,p),2)}, {vr(G(j,p),2)}, {vr(U(j,p),2)}" for j,p in JP]
        for x in merge(rc,gu): k(x)
        for j,p in JP: k(f"v_pk_mul_f32 {vr(G(j,p),2)}, {vr(G(j,p),2)}, {vr(E+4*j+2*p,2)}")
        O=48+8*(i&1)
        for j,p in JP: k(f"v_cvt_pk_bf16_f32 v{O+2*j+p}, v{G(j,p)}, v{G(j,p)+1}")
        for jj in (0,2):
            k(f"v_permlane16_swap_b32 v{O+2*jj}, v{O+2*jj+2}\nv_permlane16_swap_b32 v{O+2*jj+1}, v{O+2*jj+3}")
            k(f"global_store_dwordx4 v{18 if jj==0 else 20}, {vr(O+2*jj,4)}, {WS} offset:{512*i} sc1")
    T()
    k(ids2)
    k(f"""
    v_lshlrev_b32 v10, 4, v1
    s_and_b32 s8, s3, 1
    s_lshr_b32 s9, s3, 1
    s_lshl_b32 s21, s7, 2
    s_lshl_b32 s10, s9, 1
    s_add_u32 s21, s21, s10
    s_mul_i32 s21, s21, 48
    s_add_u32 s21, s21, s8
    s_lshl_b32 s21, s21, 10
    s_add_u32 s21, s21, {WS_HID}
    s_add_u32 s22, s21, {48*1024}
    s_mov_b32 s48, s42
    s_mov_b32 s49, s43
    s_mov_b32 s50, {WS_HID+2048*1536*2}
    s_mov_b32 s51, 0x20000
    s_mul_i32 s10, s3, 5120
    s_add_u32 s10, s10, {6*W3}
    v_add_u32 v14, s10, v10
    s_xor_b32 s10, s3, 1
    s_mul_i32 s10, s10, 5120
    s_add_u32 s10, s10, {6*W3}
    v_add_u32 v15, s10, v10
    s_mul_i32 s10, s8, 5120
    v_add_u32 v4, s10, v10
    v_add_u32 v5, {3*W3}, v4
    v_add_u32 v6, {6*W3}, v4
    v_lshlrev_b32 v22, 9, v9
    v_lshl_add_u32 v22, v8, 3, v22
    s_lshl_b32 s10, s3, 7
    s_add_u32 s10, s10, {RES}
    v_add_u32 v2, s10, v22
    s_lshl_b32 s10, s7, 6
    s_lshl_b32 s11, s3, 4
    s_add_u32 s10, s10, s11
    v_add_u32 v23, s10, v8
    v_mul_u32_u24 v23, 1280, v23
    v_lshl_add_u32 v23, v9, 3, v23
    s_mul_i32 s10, s6, 160
    v_add_u32 v3, s10, v23
    v_mov_b32 v9, 1
    s_lshr_b32 s10, s7, 1
    s_mul_i32 s10, s10, {CSTR}
    s_add_u32 s10, s10, {WS_CNT+32*CSTR}
    v_mov_b32 v11, s10
    v_add_u32 v12, {16*CSTR}, v21
    s_mov_b64 exec, 1
    s_waitcnt vmcnt(0)
    ds_add_rtn_u32 v13, v7, v9
    s_waitcnt lgkmcnt(0)
    v_cmp_eq_u32 vcc, 3, v13
    s_cbranch_vccz LF_c3
    global_atomic_add v13, v21, v9, {WS} sc0 sc1
    s_waitcnt vmcnt(0)
    v_cmp_eq_u32 vcc, 15, v13
    s_cbranch_vccz LF_c3
    global_store_dword v12, v9, {WS} sc1
LF_c3:
    s_mov_b64 exec, -1
    s_cmp_lg_u32 s3, 0
    s_cbranch_scc1 LF_p3d
    """)
    poll(k,11,1,"LF_p3",13,sleep=sl2)
    AC3=16; AF=[56,76]; BR=96; NBR=20
    def areads(i):
        st=i//2; slot=st%NW3; off=(slot%3)*W3+(i&1)*10240
        return [f"ds_read_b128 {vr(AF[i&1]+4*dt,4)}, v{4+slot//3} offset:{off+1024*dt}" for dt in range(5)]
    def bload(i):
        o=[f"buffer_load_dwordx4 {vr(BR+8*(i%NBR)+4*j,4)}, v10, s[48:51], s{21+j} offen offset:{2048*(i&1)} {'' if 'nosc' in var else 'sc1 nt' if 'nt' in var else 'sc1'}" for j in range(2)]
        if "nold3" in var: o=[]
        if i&1: o+=["s_add_u32 s21, s21, 4096","s_add_u32 s22, s22, 4096"]
        return o
    k("s_barrier")
    T()
    pre=nbpre
    for i in range(pre):
        for x in bload(i): k(x)
    for x in areads(0): k(x)
    issued=pre
    for i in range(24):
        k(f"s_waitcnt vmcnt({2*(issued-(i+1))}) lgkmcnt(0)")
        if i in (3,9,15): k("s_barrier")
        fill=areads(i+1) if i<23 else []
        c=0
        while issued<24 and issued<i+NBR and c<bstep:
            fill=fill+bload(issued); issued+=1; c+=1
        m=[f"v_mfma_f32_16x16x32_bf16 {vr(AC3+20*j+4*dt,4)}, {vr(AF[i&1]+4*dt,4)}, {vr(BR+8*(i%NBR)+4*j,4)}, {vr(AC3+20*j+4*dt,4) if i else '0'}" for dt in range(5) for j in range(2)]
        for n,x in enumerate(m):
            k(x)
            if n<len(fill): k(fill[n])
        for x in fill[len(m):]: k(x)
    T()
    k("s_cmp_eq_u32 s8, 0\ns_cbranch_scc1 LF_x0")
    for dt in range(5): k(f"ds_write_b128 v14, {vr(AC3+4*dt,4)} offset:{1024*dt}")
    for r in range(0,20,2): k(f"v_mov_b64 {vr(AC3+r,2)}, {vr(AC3+20+r,2)}")
    k("s_branch LF_x1\nLF_x0:")
    for dt in range(5): k(f"ds_write_b128 v14, {vr(AC3+20+4*dt,4)} offset:{1024*dt}")
    k("LF_x1:")
    for dt in range(5): k(f"ds_read_b64_tr_b16 {vr(96+2*dt,2)}, v2 offset:{dt*2048}")
    k("s_waitcnt lgkmcnt(0)\ns_barrier")
    for dt in range(5): k(f"ds_read_b128 {vr(64+4*dt,4)}, v15 offset:{1024*dt}")
    for dt in range(5):
        b=AC3+4*dt; t=112+4*dt
        k(f"""
        v_lshlrev_b32 v{t}, 16, v{96+2*dt}
        v_and_b32 v{t+1}, 0xffff0000, v{96+2*dt}
        v_lshlrev_b32 v{t+2}, 16, v{97+2*dt}
        v_and_b32 v{t+3}, 0xffff0000, v{97+2*dt}
        v_pk_add_f32 {vr(b,2)}, {vr(b,2)}, {vr(t,2)}
        v_pk_add_f32 {vr(b+2,2)}, {vr(b+2,2)}, {vr(t+2,2)}
        """)
    for dt in range(5):
        b=AC3+4*dt; t=64+4*dt
        k(f"""
        s_waitcnt lgkmcnt({4-dt})
        v_pk_add_f32 {vr(b,2)}, {vr(b,2)}, {vr(t,2)}
        v_pk_add_f32 {vr(b+2,2)}, {vr(b+2,2)}, {vr(t+2,2)}
        v_cvt_pk_bf16_f32 v{b}, v{b}, v{b+1}
        v_cvt_pk_bf16_f32 v{b+1}, v{b+2}, v{b+3}
        global_store_dwordx2 v3, {vr(b,2)}, s[38:39] offset:{dt*32}
        """)
    if diag:
        k("s_waitcnt vmcnt(0)"); T(); T.flush(WS,0)
        if "dbgout" in var:
            k("s_or_b32 s78, s2, s3\ns_cmp_lg_u32 s78, 0\ns_cbranch_scc1 L1_end\ns_mov_b64 exec, 1\nv_mov_b32 v2, 0")
            for i in range(1,11): k(f"s_sub_u32 s78, s{80+2*i}, s80\nv_mov_b32 v3, s78\nglobal_store_dword v2, v3, s[40:41] offset:{4*i}")
    k("L1_end:\ns_endpgm")
    return k
def single(k, comment=""):
    g=k.grid; b=k.block
    s=comment+"; @launch grid=(%d,%d,%d) block=(%d,%d,%d) lds=%d\n"%(g[0],g[1],g[2],b[0],b[1],b[2],k.lds)
    return s+HEADER+k.text()+'.section .rodata,"a"\n.p2align 6\n'+k.desc()
if __name__=="__main__":
    from gate import *
    import build, sys
    k1.SAFE=True
    open("f_diag.s","w").write(emit([gate(),scrub(),gen(diag=True)],verbose=True))
    for n,a in enumerate(sys.argv[1:]):
        open("f_%s.s"%"bcdefgh"[n],"w").write(emit([gate(),scrub(),gen(diag=True,**eval("dict(%s)"%a))]))
    k1.SAFE=False
    open("v_fused.s","w").write(single(gen(),build.HDR))
    open("v_dbg.s","w").write(single(gen(diag=True,var="dbgout"),build.HDR))
```

```python
from ag import *
from common import *
import math, struct
HB=5712; LB=8704; LO0=8*HB; UB=LO0+8*LB; US=4608; XB0=UB+4*US; SC0=XB0+16384; LDS1=SC0+64

SAFE=False
def bound(lab):
    if not SAFE: return ""
    return f"s_add_u32 s75, s75, 1\ns_cmp_gt_u32 s75, 100000\ns_cbranch_scc1 {lab}"
def cmul(dst,x,m,t):
    return [f"v_pk_mul_f32 {vr(t,2)}, {vr(x,2)}, {vr(m,2)} op_sel:[0,0] op_sel_hi:[0,1]",
            f"v_pk_fma_f32 {vr(dst,2)}, {vr(x,2)}, {vr(m,2)}, {vr(t,2)} op_sel:[1,1,0] op_sel_hi:[1,0,1] neg_lo:[1,0,0]"]
def put(row,x,c,neg,base=0):
    n="-" if neg else ""
    return [f"v_cvt_pk_bf16_f32 v{c}, v{x}, {n}v{x+1}", f"ds_write_addtid_b32 v{c} offset:{base+row*272}"]

class Stamps:
    def __init__(s,k,on,base=80): s.k=k;s.on=on;s.n=0;s.base=base;s.kg=False
    def __call__(s,cyc=False,skip=False):
        if s.on and not skip:
            s.k(f"{'s_memtime' if cyc else 's_memrealtime'} s[{s.base+2*s.n}:{s.base+2*s.n+1}]"); s.n+=1
    def flush(s,ws,slot,wreg="s3"):
        if not s.on: return
        k=s.k
        k("s_waitcnt lgkmcnt(0)")
        k(f"s_lshl_b32 s78, s2, 9\ns_lshl_b32 s79, {wreg}, 6\ns_add_u32 s78, s78, s79\ns_add_u32 s78, s78, {WS_STAMP+slot*131072}\nv_mov_b32 v2, s78\ns_mov_b64 exec, 1")
        for i in range(s.n): k(f"v_mov_b32 v3, s{s.base+2*i}\nglobal_store_dword v2, v3, {ws} offset:{4*i}")
        for i,r in enumerate((72,100,98,96,94,76,74) if s.kg else ()): k(f"v_mov_b32 v3, s{r}\nglobal_store_dword v2, v3, {ws} offset:{36+4*i}")
        k("s_mov_b64 exec, -1")

def reduce32(k, regs, tmp):
    for m in ("quad_perm:[1,0,3,2]","quad_perm:[2,3,0,1]","row_half_mirror","row_mirror"):
        for r in regs: k(f"v_add_f32_dpp v{r}, v{r}, v{r} {m} row_mask:0xf bank_mask:0xf")
    for r,t in zip(regs,tmp): k(f"v_mov_b32 v{t}, v{r}")
    for r,t in zip(regs,tmp): k(f"v_permlane16_swap_b32 v{r}, v{t}")
    for r,t in zip(regs,tmp): k(f"v_add_f32 v{r}, v{r}, v{t}")

def ln_finalize(k, s1, s2, t, mean_out, sd_out):
    k(f"""
    v_mul_f32 v{s1}, {f2u(1/640.)}, v{s1}
    v_mul_f32 v{s2}, {f2u(1/640.)}, v{s2}
    v_fma_f32 v{s2}, -v{s1}, v{s1}, v{s2}
    v_max_f32 v{s2}, 0, v{s2}
    v_cvt_pk_bf16_f32 v{t}, v{s1}, v{s2}
    v_lshlrev_b32 v{mean_out}, 16, v{t}
    v_and_b32 v{t}, 0xffff0000, v{t}
    v_add_f32 v{t}, {f2u(1e-5)}, v{t}
    v_cvt_pk_bf16_f32 v{t}, v{t}, v{t}
    v_and_b32 v{t}, 0xffff0000, v{t}
    v_sqrt_f32 v{t}, v{t}
    v_cvt_pk_bf16_f32 v{t}, v{t}, v{t}
    v_and_b32 v{sd_out}, 0xffff0000, v{t}
    """)
def cexp(dst,scale,ta,tb):
    o=[]
    if scale!=1:
        o+=[f"v_mul_f32 v{ta}, {f2u(scale)}, v56", f"v_mul_f32 v{tb}, {f2u(scale)}, v57"]
        a,b=ta,tb
    else: a,b=56,57
    o+=[f"v_fract_f32 v{tb}, v{b}", f"v_exp_f32 v{ta}, v{a}", f"v_cos_f32 v{dst}, v{tb}", f"v_sin_f32 v{dst+1}, v{tb}",
        f"v_pk_mul_f32 {vr(dst,2)}, {vr(dst,2)}, {vr(ta,2)} op_sel:[0,0] op_sel_hi:[1,0]"]
    return o
def dt_code(k):
    l2e_hi=f2u(math.log2(math.e)); l2e_f=struct.unpack("<f",struct.pack("<I",l2e_hi))[0]; l2e_lo=f2u(math.log2(math.e)-l2e_f)
    k(f"""
    s_mov_b32 s14, {l2e_hi}
    s_mov_b32 s15, {l2e_lo}
    v_mul_f32 v51, s14, v50
    v_fma_f32 v52, v50, s14, -v51
    v_fma_f32 v52, v50, s15, v52
    v_exp_f32 v51, v51
    v_mul_f32 v52, {f2u(math.log(2))}, v52
    v_fma_f32 v51, v51, v52, v51
    v_cvt_pk_bf16_f32 v51, v51, v51
    v_and_b32 v54, 0xffff0000, v51
    v_mul_f32 v52, s14, v54
    v_mul_f32 v53, {f2u(1/(2*math.pi))}, v54
    """)


def cmul16(dst,x,m,t):
    return [f"v_pk_mul_f16 v{t}, v{x}, v{m} op_sel:[0,0] op_sel_hi:[0,1]",
            f"v_pk_fma_f16 v{dst}, v{x}, v{m}, v{t} op_sel:[1,1,0] op_sel_hi:[1,0,1] neg_lo:[1,0,0]"]
def wavemax(k,r,t):
    for m in ("quad_perm:[1,0,3,2]","quad_perm:[2,3,0,1]","row_half_mirror","row_mirror"):
        k(f"v_max_f32_dpp v{r}, v{r}, v{r} {m} row_mask:0xf bank_mask:0xf")
    for sw in ("16","32"):
        k(f"v_mov_b32 v{t}, v{r}\nv_permlane{sw}_swap_b32 v{r}, v{t}\nv_max_f32 v{r}, v{r}, v{t}")
def prep(k):
    l2e_hi=f2u(math.log2(math.e)); l2e_f=struct.unpack("<f",struct.pack("<I",l2e_hi))[0]; l2e_lo=f2u(math.log2(math.e)-l2e_f)
    k(f"""
    s_mov_b32 s14, {l2e_hi}
    s_mov_b32 s15, {l2e_lo}
    v_max3_f32 v54, v16, v22, v28
    v_mul_f32 v51, s14, v50
    v_max_f32 v54, 0, v54
    v_fma_f32 v52, v50, s14, -v51
    v_fma_f32 v52, v50, s15, v52
    v_exp_f32 v51, v51
    v_mul_f32 v52, {f2u(math.log(2))}, v52
    v_fma_f32 v51, v51, v52, v51
    v_cvt_pk_bf16_f32 v51, v51, v51
    v_and_b32 v51, 0xffff0000, v51
    v_mul_f32 v52, s14, v51
    v_mul_f32 v53, {f2u(1/(2*math.pi))}, v51
    """)
    wavemax(k,54,55)
    k("v_mul_f32 v54, -v52, v54\nv_mov_b32 v55, 0")

def gen_k1(diag=False, st_sc="", pf_w2=True, kgd=False, early=40, gpos=((10,40),(10,50),(5,25)), prioM=0, prioG=1, ngup=1, later=None, fused=None, fine=False, npost=1, rowwait=True, band=False, stlate=True, dec=True):
    F=fused is not None
    NAME=fused if F else "ssm_kernel"
    k=K(NAME,(256,1,1),(512,1,1),163840 if F else LDS1,vgpr=256,sgpr=102,hazard=True)
    if F: st_sc="sc1"
    T=Stamps(k,diag); T.kg=kgd or fine
    X="s[16:17]"; PTR=["s[18:19]","s[20:21]","s[22:23]","s[24:25]","s[26:27]","s[28:29]"]; LDT="s[30:31]"
    DSK="s[32:33]"; DBG="s[40:41]"; WS="s[42:43]"
    def kgstamp():
        if kgd: k("s_memtime s[66:67]\ns_waitcnt lgkmcnt(0)\ns_mov_b32 s100, s98\ns_mov_b32 s98, s96\ns_mov_b32 s96, s94\ns_mov_b32 s94, s76\ns_mov_b32 s76, s74\ns_mov_b32 s74, s66")
    T()
    CPF=f"""s_getpc_b64 s[70:71]
    v_min_u32 v255, L1_end-.-64, v255
    global_load_dword v255, v255, s[70:71]"""
    gl=lambda i: f"global_load_dwordx2 {vr(34+2*i,2)}, v{4+(i>>2)}, {X} offset:{1280*(i&3)}"
    k(f"""
    {"s_mov_b32 s75, 0" if SAFE else ""}
    s_cmp_lt_u32 s2, 160
    s_cbranch_scc1 L1_e1
    v_lshlrev_b32 v255, 7, v0
    {CPF}
L1_e1:
    v_lshrrev_b32 v2, 6, v0
    s_load_dwordx2 s[16:17], s[0:1], 0
    v_readfirstlane_b32 s3, v2
    s_load_dwordx4 s[40:43], s[0:1], 112
    v_and_b32 v1, 63, v0
    s_lshl3_add_u32 s7, s3, 8
    s_load_dwordx2 s[18:19], s[0:1], s7
    s_cmp_lt_u32 s2, 160
    s_cbranch_scc1 L1_e2
    s_branch L1_e3
L1_e2:
    s_and_b32 s4, s2, 7
    s_mul_i32 s4, s4, 80
    s_lshr_b32 s68, s2, 3
    s_lshl2_add_u32 s4, s68, s4
    s_mul_i32 s6, s3, 1536
    s_add_u32 m0, s6, {XB0}
    s_lshl_b32 s8, s4, 1
    s_cmp_ge_u32 s3, 6
    s_cselect_b32 s6, 2, 0x180
    s_mul_i32 s6, s6, s4
    v_lshl_add_u32 v2, v1, 4, s6
    v_lshl_add_u32 v3, v1, 2, s6
    v_and_b32 v0, 255, v0
    v_mul_u32_u24 v4, 10240, v0
    v_add_u32 v4, s8, v4
    v_add_u32 v5, 5120, v4
    s_waitcnt lgkmcnt(0)
    s_cbranch_scc1 L1_p67
    global_load_lds_dwordx4 v2, s[18:19]
    s_mov_b32 exec_hi, 0
    global_load_lds_dwordx4 v2, s[18:19] offset:1024
    s_branch L1_pj
L1_p67:
    s_mov_b64 exec, 3
    global_load_lds_dword v3, s[18:19]
L1_pj:
    s_mov_b64 exec, -1
    s_cmp_lt_u32 s3, 4
    s_cbranch_scc1 L1_M
    s_bitcmp1_b32 s68, 0
    s_cbranch_scc1 L1_gu1
    """)
    for i in range(ngup): k(gl(i))
    k("s_branch L1_A\nL1_gu1:")
    for i in range(ngup): k(gl(4+i))
    k("s_branch L1_A")
    k(f"""
L1_e3:
    s_cmp_ge_u32 s2, 256
    s_cbranch_scc1 L1_end
    s_lshl3_add_u32 s4, s2, s3
    s_cmp_lg_u32 s4, {255*8+7}
    s_cbranch_scc1 L1_nononce
    s_memrealtime s[46:47]
    v_mul_u32_u24 v8, {CSTR}, v1
    v_add_u32 v8, {WS_CNT}, v8
    v_mov_b32 v6, 0
    s_waitcnt lgkmcnt(0)
    global_store_dword v8, v6, {WS} sc1
    v_lshrrev_b32 v9, 2, v1
    v_mul_u32_u24 v9, {CSTR}, v9
    v_and_b32 v10, 3, v1
    v_lshl_add_u32 v9, v10, 4, v9
    v_add_u32 v9, {WS_CNT+32*CSTR}, v9
    v_mov_b64 v[12:13], 0
    v_mov_b64 v[14:15], 0
    global_store_dwordx4 v9, v[12:15], {WS} sc1
    s_or_b32 s46, s46, 1
    v_mov_b32 v7, s46
    s_mov_b64 exec, 1
    s_waitcnt vmcnt(0)
    global_store_dword v6, v7, {DBG} sc1
    s_mov_b64 exec, -1
L1_nononce:
    {"s_waitcnt vmcnt(0)" if rowwait else ""}
    {"s_barrier" if rowwait else ""}
    s_branch L1_sp0
    """)
    COMMON=f"""
    s_and_b32 s9, s3, 3
    s_add_u32 s5, s4, s9
    s_mul_i32 s6, s9, 384
    s_add_u32 s6, s6, {XB0}
    v_lshl_add_u32 v2, v1, 1, s6
    s_lshl_b32 s7, s9, 1
    s_add_u32 s7, s7, {XB0+6*1536}
    v_mov_b32 v3, s7
    """
    k(f"""
L1_M:
    {COMMON}
    {"s_memrealtime s[72:73]" if fine else ""}
    s_mul_i32 s10, s3, {2*HB}
    s_mul_i32 s62, s3, {LB}
    s_add_u32 s11, s62, {LO0+4*LB}
    s_mul_i32 s12, s3, {US}
    s_add_u32 s12, s12, {UB}
    s_add_u32 s13, s10, {HB}
    s_add_u32 s63, s62, {LO0}
    s_mov_b32 m0, s62
    s_mov_b32 s60, {4*LB}
    v_mov_b32 v6, 0x3c00
    ds_write_addtid_b32 v6 offset:{LO0}
    s_add_u32 m0, m0, s60
    s_nop 0
    ds_write_addtid_b32 v6 offset:{LO0}
    s_mov_b32 m0, s62
    """)
    for r in range(112,128,2): k(f"v_mov_b64 {vr(r,2)}, 0")
    k(f"""
    v_lshl_add_u32 v6, v1, 3, s12
    ds_write_b64 v6, v[112:113]
    v_mov_b32 v232, {SC0+32}
    ds_write_b32 v232, v112
    v_and_b32 v7, 3, v1
    v_lshl_add_u32 v107, v7, 3, s11
    v_and_b32 v9, 31, v1
    v_lshrrev_b32 v10, 5, v1
    v_mul_u32_u24 v8, 272, v9
    v_lshl_add_u32 v8, v10, 4, v8
    v_add_u32 v108, s63, v8
    v_add_u32 v8, s10, v8
    v_lshl_add_u32 v11, v9, 4, s13
    v_lshl_add_u32 v11, v10, 3, v11
    v_sub_u32 v6, 3, v10
    v_lshlrev_b32 v6, v6, v9
    v_lshl_add_u32 v12, v10, 8, v6
    v_add3_u32 v12, v12, s13, 64
    v_add_u32 v12, 448, v12
    v_mul_u32_u24 v13, 124, v10
    v_add3_u32 v13, v13, v12, 4
    v_lshl_add_u32 v14, v9, 1, s13
    v_lshl_add_u32 v14, v10, 8, v14
    v_sub_u32 v6, 4, v10
    v_lshlrev_b32 v6, v6, v9
    v_lshlrev_b32 v15, 9, v10
    v_add3_u32 v15, v15, v6, s13
    v_lshl_add_u32 v102, v1, 2, s13
    v_lshl_add_u32 v103, v1, 1, s13
    v_lshl_add_u32 v104, v1, 4, s11
    v_and_b32 v6, 1, v1
    v_mul_u32_u24 v7, 0x0202, v6
    v_add_u32 v105, 0x03020100, v7
    v_lshlrev_b32 v7, 16, v7
    v_add_u32 v106, 0x01000100, v7
    v_mul_u32_u24 v7, 4158, v6
    v_sub_u32 v224, s11, v7
    v_and_b32 v6, 15, v1
    v_bfe_u32 v7, v1, 4, 1
    v_lshl_add_u32 v224, v6, 1, v224
    v_lshl_add_u32 v224, v10, 5, v224
    v_lshlrev_b32 v9, 4, v7
    v_sub_u32 v224, v224, v9
    v_add_u32 v224, {32-14+4158}, v224
    v_add_u32 v225, 1024, v224
    v_add_u32 v226, 2048, v224
    v_add_u32 v227, 3072, v224
    v_sub_u32 v228, v6, v10
    v_lshl_add_u32 v228, v228, 5, v9
    s_add_u32 s13, s12, {512-64}
    v_add_u32 v228, s13, v228
    v_lshrrev_b32 v9, 4, v1
    v_lshlrev_b32 v230, 5, v6
    v_lshl_add_u32 v230, v9, 3, v230
    s_lshl_b32 s13, s3, 12
    s_add_u32 s13, s13, {XB0}
    v_add_u32 v229, s13, v230
    s_lshl_b32 s13, s5, 12
    s_add_u32 s13, s13, {WS_HT}
    v_add_u32 v230, s13, v230
    s_lshl_b32 s13, s3, 3
    s_add_u32 s13, s13, {SC0}
    v_mov_b32 v231, s13
    s_mov_b32 s48, 0x01000100
    s_mov_b32 s49, 0x03020302
    s_mov_b32 s51, 0x07060100
    v_lshlrev_b32 v7, 3, v9
    v_sub_u32 v48, v7, v6
    v_add_u32 v48, 7, v48
    v_lshl_or_b32 v48, v10, 8, v48
    v_and_b32 v6, 1, v48
    v_lshlrev_b32 v6, 4, v6
    v_lshrrev_b32 v48, 1, v48
    v_cmp_eq_u32 s[52:53], 0, v48
    v_cmp_eq_u32 s[54:55], 1, v48
    v_cmp_eq_u32 s[56:57], 2, v48
    v_cmp_eq_u32 s[58:59], 3, v48
    {"s_memrealtime s[100:101]" if fine else ""}
    v_mov_b32 v240, v6
    """)
    RB=32+2208
    if dec:
        k(f"""
        v_and_b32 v6, 15, v1
        v_lshlrev_b32 v7, 3, v9
        v_sub_u32 v7, v7, v6
        """)
        for i in range(8):
            k(f"v_add_u32 v6, {3-i}, v7\nv_cmp_gt_u32 vcc, 9, v6\nv_add_u32 v6, -1, v6\nv_cmp_gt_u32 s[64:65], 7, v6")
            c="0x3f80" if i%2==0 else "0x3f800000"
            k(f"v_mov_b32 v6, {c}\nv_cndmask_b32 v250, 0, v6, vcc\nv_cndmask_b32 v251, 0, v6, s[64:65]")
            if i%2==0: k(f"v_mov_b32 v{242+i//2}, v250\nv_mov_b32 v{246+i//2}, v251")
            else: k(f"v_or_b32 v{242+i//2}, v{242+i//2}, v250\nv_or_b32 v{246+i//2}, v{246+i//2}, v251")
        k(f"""
        v_and_b32 v6, 31, v1
        v_lshl_add_u32 v6, v10, 7, v6
        v_and_b32 v7, 1, v6
        v_add_u32 v6, v6, v7
        v_mul_u32_u24 v7, 320, v7
        v_sub_u32 v7, v7, v6
        s_add_u32 s13, s11, {RB+128+128-96}
        v_add_u32 v105, s13, v7
        v_and_b32 v6, 15, v1
        v_bfe_u32 v7, v1, 4, 1
        v_mul_u32_u24 v7, 320, v7
        v_lshl_add_u32 v7, v6, 2, v7
        v_mul_u32_u24 v6, 4158, v10
        s_add_u32 s13, s11, {RB+128+128}
        v_add3_u32 v106, v7, v6, s13
        v_and_b32 v6, 15, v1
        v_lshlrev_b32 v7, 2, v9
        v_sub_u32 v7, v7, v6
        v_lshlrev_b32 v7, 1, v7
        v_and_b32 v6, 1, v1
        v_mul_u32_u24 v6, 4158, v6
        v_sub_u32 v7, v7, v6
        s_add_u32 s13, s11, {RB+128+2*(63-48)+4158}
        v_add_u32 v103, s13, v7
        v_and_b32 v6, 15, v1
        v_lshlrev_b32 v6, 5, v6
        v_lshl_add_u32 v6, v9, 4, v6
        s_add_u32 s13, s12, {512-48}
        v_add_u32 v233, s13, v6
        """)
    k(f"""
    s_waitcnt vmcnt(0)
    s_barrier
    {"s_memrealtime s[98:99]" if fine else ""}
    ds_read_u16_d16_hi v50, v3
    """)
    for j in range(2):
        for c in range(3): k(f"ds_read_u16_d16_hi v{16+6*c+j}, v2 offset:{128*c+1536*j}")
    k("ds_read_u16 v241, v3 offset:1536\ns_waitcnt lgkmcnt(0)")
    prep(k)
    k(f"s_mov_b32 s14, 0\ns_mov_b32 s15, {HB}")
    if prioM: k(f"s_setprio {prioM}")
    T(skip=F)
    if kgd: k("s_memtime s[72:73]")
    k("L1_kgM:")
    mf=[f"v_mfma_f32_32x32x16_f16 v[112:127], {vr(128+8*i,4)}, {vr(132+8*i,4)}, v[112:127]" for i in range(8)]
    L=lambda j: 64+j
    ops=["v_pk_fma_f32 v[56:57], v[16:17], v[52:53], v[54:55]"]+cexp(58,8.,60,61)+["v_mov_b64 v[16:17], v[22:23]","v_mov_b64 v[22:23], v[28:29]"]
    z=58
    for b in (1,2,4,8,16):
        ops+=[f"v_cvt_pk_f16_f32 v{L(b)}, v{z}, v{z+1}", f"ds_write_addtid_b32 v{L(b)} offset:{LO0+272*b}"]
        if b<16:
            z2=36+4*(b.bit_length()-1); ops+=cmul(z2,z,z,z2+2); z=z2
    ti=0
    for j in range(1,32):
        if j&(j-1):
            ops+=cmul16(L(j),L(j&(j-1)),L(j&-j),96+(ti%6))+[f"ds_write_addtid_b32 v{L(j)} offset:{LO0+272*j}"]; ti+=1
    ops=sched(ops)
    cut=len(ops)-48
    for x in ops[:cut]: k(x)
    nwr=sum("ds_write" in x for x in ops[:cut])
    k(f"s_cmp_eq_u32 s14, 0\ns_cbranch_scc1 L1_nomf\ns_waitcnt lgkmcnt({min(15,nwr)})")
    tl=ops[cut:]
    for i,x in enumerate(tl):
        if i%6==0: k(mf[i//6])
        k(x)
    k("s_branch L1_mfdone\nL1_nomf:")
    for x in tl: k(x)
    k("L1_mfdone:\ns_waitcnt lgkmcnt(0)")
    kgstamp()
    k("s_barrier")
    kgstamp()
    for i in range(8):
        k(f"ds_read_b128 {vr(128+8*i,4)}, v8 offset:{32*i}\nds_read_b128 {vr(132+8*i,4)}, v108 offset:{32*i}")
    k(f"""
    s_add_u32 s14, s14, 1
    s_add_u32 m0, m0, s60
    v_add_u32 v8, s15, v8
    v_add_u32 v108, s60, v108
    s_sub_u32 s15, 0, s15
    s_sub_u32 s60, 0, s60
    s_cmp_lt_u32 s14, 3
    s_cbranch_scc1 L1_kgM
    """)
    T()
    NA=4 if dec else 8
    AB=[64,80] if dec else [64,128]; BB=[96,160]; ACC=192
    if prioG: k("s_setprio 2")
    k("ds_read_b32 v110, v231")
    k(f"""
    v_mov_b64 v[100:101], 0
    ds_write_b64 v107, v[100:101]
    ds_write_b64 v107, v[100:101] offset:4160
    v_lshlrev_b32 v49, v240, v241
    """)
    for j in range(4): k(f"v_cndmask_b32 v{236+j}, 0, v49, s[{52+2*j}:{53+2*j}]")
    for i,x in enumerate(mf):
        k(f"s_waitcnt lgkmcnt({min(15,3+14-2*i)})")
        k(x)
    k("s_waitcnt lgkmcnt(2)")
    k("v_cmp_neq_f32 vcc, 0, v54")
    for i in range(6): k(f"v_pk_mul_f32 {vr(112+2*i,2)}, {vr(112+2*i,2)}, v[110:111] op_sel:[0,0] op_sel_hi:[1,0]")
    k("s_cbranch_vccnz L1_grow\nL1_grown:")
    for i in range(6): k(f"v_cvt_pk_bf16_f32 v{128+i}, v{112+2*i}, v{113+2*i}")
    k(f"""
    ds_write_b64 v11, v[128:129]
    ds_write_b32 v12, v130
    ds_write_b32 v13, v131
    """)
    if not dec:
        k(f"""
    ds_write_b16 v14, v132 offset:1024
    ds_write_b16_d16_hi v14, v132 offset:1088
    ds_write_b16 v14, v133 offset:1152
    ds_write_b16_d16_hi v14, v133 offset:1216
    ds_read_b64 v[136:137], v15
    ds_read_b64 v[138:139], v15 offset:8
    ds_read_b32 v140, v15 offset:16
    ds_read2_b32 v[142:143], v102 offset0:192 offset1:193
    ds_read_u16 v144, v103 offset:1024
    ds_read_u16 v145, v103 offset:1152
    ds_read_u16_d16_hi v146, v103 offset:1026
    ds_read_u16_d16_hi v147, v103 offset:1154
    s_waitcnt lgkmcnt(5)
    v_mov_b64 v[148:149], v[136:137]
    v_mov_b64 v[150:151], v[138:139]
    v_alignbit_b32 v152, v137, v136, 16
    v_alignbit_b32 v153, v138, v137, 16
    v_alignbit_b32 v154, v139, v138, 16
    v_alignbit_b32 v155, v140, v139, 16
    s_mov_b32 exec_lo, 0
    v_perm_b32 v148, v136, v136, s48
    v_mov_b32 v149, v152
    v_perm_b32 v150, v137, v137, s48
    v_mov_b32 v151, v153
    v_mov_b32 v152, v136
    v_mov_b32 v153, v150
    v_mov_b32 v154, v137
    v_perm_b32 v155, v138, v138, s48
    s_mov_b32 exec_lo, -1
    ds_write_b128 v104, v[148:151] offset:32
    ds_write_b128 v104, v[152:155] offset:{32+4160}
    ds_write_b16 v104, v136 offset:{32+4160-2}
    s_waitcnt lgkmcnt(7)
    v_perm_b32 v156, v142, v142, s48
    v_mov_b32 v157, v142
    v_perm_b32 v158, v142, v142, s49
    v_perm_b32 v159, v143, v143, s48
    v_mov_b32 v160, v156
    v_mov_b32 v161, v158
    v_alignbit_b32 v162, v143, v142, 16
    v_mov_b32 v163, v159
    ds_write_b128 v104, v[156:159] offset:{32+1024}
    ds_write_b128 v104, v[160:163] offset:{32+4160+1024}
    s_waitcnt lgkmcnt(5)
    v_perm_b32 v144, v146, v144, s51
    v_perm_b32 v145, v147, v145, s51
    """)
    for q,src,b in (() if dec else ((2,144,164),(3,145,172))):
        k(f"""
        v_perm_b32 v{b}, v{src}, v{src}, s48
        v_perm_b32 v{b+3}, v{src}, v{src}, s49
        v_perm_b32 v{b+2}, v{src}, v{src}, v105
        v_mov_b32 v{b+1}, v{b}
        v_mov_b32 v{b+4}, v{b}
        v_perm_b32 v{b+5}, v{src}, v{src}, v106
        v_mov_b32 v{b+6}, v{b+3}
        v_mov_b32 v{b+7}, v{b+3}
        ds_write_b128 v104, {vr(b,4)} offset:{32+1024*q}
        ds_write_b128 v104, {vr(b+4,4)} offset:{32+4160+1024*q}
        """)
    if dec:
        k(f"""
    ds_write_b16 v14, v132 offset:1024
    ds_read_b64 v[136:137], v15
    ds_read_b64 v[138:139], v15 offset:8
    ds_read_b32 v140, v15 offset:16
    ds_read2_b32 v[142:143], v102 offset0:192 offset1:193
    ds_write_b16 v105, v132 offset:96
    ds_write_b16_d16_hi v105, v132 offset:64
    ds_write_b16 v105, v133 offset:32
    ds_write_b16_d16_hi v105, v133
    ds_write_b16 v105, v132 offset:{96+4158}
    ds_write_b16_d16_hi v105, v132 offset:{64+4158}
    ds_write_b16 v105, v133 offset:{32+4158}
    ds_write_b16_d16_hi v105, v133 offset:4158
    s_waitcnt lgkmcnt(9)
    v_mov_b64 v[148:149], v[136:137]
    v_mov_b64 v[150:151], v[138:139]
    v_alignbit_b32 v152, v137, v136, 16
    v_alignbit_b32 v153, v138, v137, 16
    v_alignbit_b32 v154, v139, v138, 16
    v_alignbit_b32 v155, v140, v139, 16
    s_mov_b32 exec_lo, 0
    v_perm_b32 v148, v136, v136, s48
    v_mov_b32 v149, v152
    v_perm_b32 v150, v137, v137, s48
    v_mov_b32 v151, v153
    v_mov_b32 v152, v136
    v_mov_b32 v153, v150
    v_mov_b32 v154, v137
    v_perm_b32 v155, v138, v138, s48
    s_mov_b32 exec_lo, -1
    ds_write_b16 v106, v100
    ds_write_b16 v106, v100 offset:2
    ds_write_b128 v104, v[148:151] offset:32
    ds_write_b128 v104, v[152:155] offset:{32+4160}
    ds_write_b16 v104, v136 offset:{32+4160-2}
    s_waitcnt lgkmcnt(13)
    v_perm_b32 v156, v142, v142, s48
    v_mov_b32 v157, v142
    v_perm_b32 v158, v142, v142, s49
    v_perm_b32 v159, v143, v143, s48
    v_mov_b32 v160, v156
    v_mov_b32 v161, v158
    v_alignbit_b32 v162, v143, v142, 16
    v_mov_b32 v163, v159
    v_readlane_b32 s13, v159, 63
    v_mov_b64 v[164:165], 0
    v_mov_b64 v[166:167], 0
    v_mov_b64 v[170:171], 0
    ds_write_b128 v104, v[156:159] offset:{32+1024}
    ds_write_b128 v104, v[160:163] offset:{32+4160+1024}
    s_and_b32 s14, s13, 0xffff
    v_writelane_b32 v164, s13, 0
    v_writelane_b32 v165, s13, 0
    v_writelane_b32 v166, s14, 0
    s_mov_b64 exec, 15
    v_mov_b64 v[168:169], v[164:165]
    ds_write_b128 v104, v[164:167] offset:{32+2048}
    ds_write_b128 v104, v[168:171] offset:{32+4160+2048}
    s_mov_b64 exec, -1
    """)
    def loads(buf,second,which="AB"):
        o=[]
        for a in range(8):
            off=(a&1)*128+(16 if second else 0)
            if "A" in which and a<NA:
                o.append(f"ds_read2_b32 {vr(AB[buf]+4*a,2)}, v{224+(a>>1)} offset0:{off} offset1:{off+1}")
                o.append(f"ds_read2_b32 {vr(AB[buf]+4*a+2,2)}, v{224+(a>>1)} offset0:{off+2} offset1:{off+3}")
            if "B" in which:
                o.append(f"ds_read_b128 {vr(BB[buf]+4*a,4)}, v228 offset:{512*a+(0 if second else 64)}")
        return o
    def mfs(buf):
        return [f"v_mfma_f32_16x16x32_bf16 {vr(ACC+4*c,4)}, {vr(AB[buf]+4*a,4)}, {vr(BB[buf]+4*(c-a),4)}, {vr(ACC+4*c,4)}" for a in range(NA) for c in range(a,8)]
    for x in loads(0,False,"A"): k(x)
    if dec:
        k("ds_read2_b32 v[80:81], v226 offset0:0 offset1:1\nds_read2_b32 v[82:83], v226 offset0:2 offset1:3")
        for par in range(2):
            for f in range(5): k(f"ds_read2_b32 {vr(160+10*par+2*f,2)}, v103 offset0:{80*par+8*f} offset1:{80*par+8*f+1}")
    T(skip=F)
    k("s_barrier")
    T()
    for c,x in enumerate(loads(0,False,"B")): k(f"ds_read_b64 {vr(16+2*c,2)}, v229 offset:{512*c}"); k(x)
    if dec:
        for par in range(2):
            for th in range(4): k(f"ds_read_b128 {vr(128+16*par+4*th,4)}, v233 offset:{512*th+16*par}")
    k("s_mov_b32 s14, 0")
    unp=lambda c: f"v_lshlrev_b32 v{ACC+4*c}, 16, v{16+2*c}\nv_and_b32 v{ACC+4*c+1}, 0xffff0000, v{16+2*c}\nv_lshlrev_b32 v{ACC+4*c+2}, 16, v{17+2*c}\nv_and_b32 v{ACC+4*c+3}, 0xffff0000, v{17+2*c}"
    xo=8 if dec else 0
    k("s_waitcnt lgkmcnt(15)"); k(unp(0))
    for c in range(8): k((f"s_waitcnt lgkmcnt({min(15,13-2*c+xo)})\n{unp(c+1)}\n" if c<7 else f"s_waitcnt lgkmcnt(0)\n")+f"v_mfma_f32_16x16x32_bf16 {vr(ACC+4*c,4)}, v[236:239], {vr(BB[0]+4*c,4)}, {vr(ACC+4*c,4)}")
    if dec:
        for par in range(2):
            for th in range(4): k(f"v_mfma_f32_16x16x32_bf16 {vr(32+16*par+4*th,4)}, {vr(128+16*par+4*th,4)}, {vr(242+4*par,4)}, 0")
        sp=[f"v_mfma_f32_16x16x32_bf16 {vr(ACC+4*c,4)}, v[80:83], {vr(BB[0]+4*(c-4),4)}, {vr(ACC+4*c,4)}" for c in range(4,8)]
        cv=[f"v_cvt_pk_bf16_f32 v{128+8*par+2*th+e}, v{32+16*par+4*th+2*e}, v{33+16*par+4*th+2*e}" for par in range(2) for th in range(4) for e in range(2)]
        for n,x in enumerate(sp):
            k(x)
            for y in cv[2*n:2*n+2]: k(y)
        dm=[f"v_mfma_f32_16x16x32_bf16 {vr(ACC+4*c,4)}, {vr(128+8*par+4*k2,4)}, {vr(160+10*par+2*(3-(c-4-2*k2)),4)}, {vr(ACC+4*c,4)}" for par in range(2) for k2 in range(2) for c in range(4+2*k2,8)]
        for n,x in enumerate(dm):
            k(x)
            if n<4:
                for y in cv[8+2*n:10+2*n]: k(y)
    k("L1_cv:\ns_waitcnt lgkmcnt(0)")
    def inter(m,l,extra=[]):
        o=[];li=0
        l=l+extra
        for i,x in enumerate(m):
            o.append(x)
            if li<len(l): o.append(l[li]); li+=1
        return o
    for x in inter(mfs(0),loads(1,True),[f"v_add_u32 v{224+i}, 128, v{224+i}" for i in range(NA//2)]+["v_subrev_u32 v228, 128, v228"]): k(x)
    k("s_waitcnt lgkmcnt(0)")
    for x in inter(mfs(1),loads(0,False),["s_add_u32 s14, s14, 1","s_cmp_lt_u32 s14, 4"]): k(x)
    k("s_cbranch_scc1 L1_cv")
    T()
    for c in range(8):
        k(f"""
        v_cvt_pk_bf16_f32 v{64+2*c}, v{ACC+4*c}, v{ACC+4*c+1}
        v_cvt_pk_bf16_f32 v{65+2*c}, v{ACC+4*c+2}, v{ACC+4*c+3}
        global_store_dwordx2 v230, {vr(64+2*c,2)}, {WS} offset:{512*c} {st_sc}
        """)
    if F: k("s_branch LF_M")
    else:
        if diag:
            k("s_waitcnt vmcnt(0)"); T(); T.flush(WS,0)
        k("s_endpgm")
    k.T=T
    TA=Stamps(k,diag and not F); TA.n=1; TA.kg=kgd or fine
    k(f"""
L1_A:
    {"s_memrealtime s[72:73]" if fine else ""}
    {COMMON}
    s_mul_i32 s10, s9, {2*HB}
    v_lshlrev_b32 v231, 6, v0
    v_lshlrev_b32 v232, 4, v0
    v_add_u32 v233, {XB0}, v232
    v_add_u32 v232, {UB+512}, v232
    v_mov_b32 v234, 0
    s_lshl_b32 s13, s9, 3
    s_add_u32 s13, s13, {SC0}
    v_mov_b32 v235, s13
    s_mov_b32 m0, s10
    s_mov_b32 s60, {HB}
    s_mov_b32 s52, 0x05040100
    s_mov_b32 s53, 0x07060302
    """)
    TA()
    k(f"s_waitcnt vmcnt({ngup})\ns_barrier")
    if fine: k("s_memrealtime s[100:101]")
    k("ds_read_u16_d16_hi v50, v3")
    for j in range(6):
        for c in range(3): k(f"ds_read_u16_d16_hi v{16+6*c+j}, v2 offset:{128*c+1536*j}")
    if npost:
        k("s_bitcmp1_b32 s68, 0\ns_cbranch_scc1 L1_gp1")
        for i in range(npost): k(gl(ngup+i))
        k("s_branch L1_gp2\nL1_gp1:")
        for i in range(npost): k(gl((4+ngup+i)&7))
        k("L1_gp2:")
    k("s_waitcnt lgkmcnt(12)")
    prep(k)
    if fine: k("s_memrealtime s[98:99]")
    def scale_code():
        k(f"s_waitcnt lgkmcnt(0)")
        for x in merge(*[cmul(18+6*c,20+6*c,18+6*c,100+2*c) for c in range(3)]): k(x)
        k("""
    v_max3_f32 v100, abs(v18), abs(v19), abs(v24)
    v_max3_f32 v101, abs(v25), abs(v30), abs(v31)
    v_max_f32 v100, v100, v101
    """)
        wavemax(k,100,101)
        k("""
    v_frexp_exp_i32_f32 v100, v100
    v_sub_u32 v101, 14, v100
    v_subrev_u32 v100, 14, v100
    v_ldexp_f32 v100, v51, v100
    ds_write_b32 v235, v100
    """)
        for c in range(3): k(f"v_ldexp_f32 v{18+6*c}, v{18+6*c}, v101\nv_ldexp_f32 v{19+6*c}, v{19+6*c}, v101\nv_cvt_pk_f16_f32 v{20+6*c}, v{18+6*c}, -v{19+6*c}")
    if prioG: k(f"s_setprio {prioG}")
    TA()
    if kgd: k("s_memtime s[72:73]")
    def stats_list():
        return [f"global_load_dwordx4 {vr(104+4*j,4)}, v231, {WS} offset:{16*j} sc1" for j in range(4)]+[f"global_load_dword v120, v234, {DBG} sc1"]
    def stats_loads():
        for x in stats_list(): k(x)
    ngat=ngup+npost
    XB=192
    def xwrite():
        o=[f"s_waitcnt vmcnt(5)"]
        for c in range(4):
            for w in range(4): o.append(f"v_perm_b32 v{160+4*c+w}, v{36+4*w+(c>>1)}, v{34+4*w+(c>>1)}, s{52+(c&1)}")
            o.append(f"ds_write_b128 v233, {vr(160+4*c,4)} offset:{4096*c}")
        return o
    for c in range(3):
        H0=20+6*c
        ops=[f"v_pk_fma_f32 v[56:57], {vr(16+6*c,2)}, v[52:53], v[54:55]"]+cexp(58,1,60,61)+cexp(62,256.,64,65)
        E={1:90,2:91,4:92}; Q={1:93,2:94,4:95}
        for z,D,zt in ((58,E,66),(62,Q,74)):
            for b in (1,2,4):
                ops.append(f"v_cvt_pk_f16_f32 v{D[b]}, v{z}, -v{z+1}")
                if b<4: ops+=cmul(zt,z,z,zt+2); z=zt; zt+=4
        if c==0:
            for x in sched(ops): k(x)
            scale_code(); ops=[]
        ops.append(f"ds_write_addtid_b32 v{H0} offset:0")
        R={0:H0}; rows={0:0,1:1,2:2,3:3,4:4,5:5,6:6,7:7,256:8,258:9,260:10,262:11,512:12,516:13,768:14,772:15,1024:16,1280:17,1536:18,1792:19,2048:20}
        ti=0
        for e,a,m in ((1,0,E[1]),(2,0,E[2]),(4,0,E[4]),(256,0,Q[1]),(512,0,Q[2]),(1024,0,Q[4]),(3,2,E[1]),(5,4,E[1]),(6,4,E[2]),(768,512,Q[1]),(1280,1024,Q[1]),(1536,1024,Q[2]),(2048,1024,Q[4]),(258,2,Q[1]),(260,4,Q[1]),(516,4,Q[2]),(7,6,E[1]),(1792,1536,Q[1]),(262,6,Q[1]),(772,516,Q[1])):
            R[e]=128+rows[e]
            ops+=cmul16(R[e],R[a],m,96+(ti%6))+[f"ds_write_addtid_b32 v{R[e]} offset:{272*rows[e]}"]; ti+=1
        ops=sched(ops)
        for i,x in enumerate(ops):
            if i in gpos[c]:
                L=k.label("L1_g")
                k(f"s_bitcmp1_b32 s68, 0\ns_cbranch_scc1 {L}\n{gl(ngat)}\ns_branch {L}b\n{L}:\n{gl((ngat+4)&7)}\n{L}b:"); ngat+=1
            k(x)
        if c<2: k(f"s_add_u32 m0, m0, s60\ns_sub_u32 s60, 0, s60")
        if c==2 and not stlate: stats_loads()
        k("s_waitcnt lgkmcnt(0)")
        kgstamp()
        k("s_barrier")
        kgstamp()
    assert ngat==8
    k("s_setprio 0")
    TA()
    if stlate: stats_loads()
    for x in xwrite(): k(x)
    for c in range(4):
        for i in range(8):
            k(f"v_lshlrev_b32 v{XB+8*c+i}, 16, v{34+2*i+(c>>1)}" if c&1==0 else f"v_and_b32 v{XB+8*c+i}, 0xffff0000, v{34+2*i+(c>>1)}")
    k(f"""
L1_poll:
    s_waitcnt vmcnt(0)
    v_cmp_ne_u32 vcc, v107, v120
    v_cmp_ne_u32 s[60:61], v111, v120
    v_cmp_ne_u32 s[62:63], v115, v120
    v_cmp_ne_u32 s[64:65], v119, v120
    v_cmp_eq_u32 s[66:67], 0, v120
    s_or_b64 vcc, vcc, s[60:61]
    s_or_b64 s[62:63], s[62:63], s[64:65]
    s_or_b64 vcc, vcc, s[66:67]
    s_or_b64 vcc, vcc, s[62:63]
    s_cbranch_vccz L1_go
    s_sleep 1
    {bound("L1_go")}
    """)
    stats_loads()
    k("s_branch L1_poll\nL1_go:")
    TA()
    for j in range(4):
        k(f"""
        v_lshlrev_b32 v{82+2*j}, 16, v{106+4*j}
        v_and_b32 v{83+2*j}, 0xffff0000, v{106+4*j}
        v_pk_mul_f32 {vr(82+2*j,2)}, {vr(82+2*j,2)}, {vr(104+4*j,2)} neg_lo:[1,0] neg_hi:[1,0]
        """)
    UBR=128
    for c in range(4):
        for j in range(4):
            k(f"v_pk_fma_f32 {vr(UBR+8*c+2*j,2)}, {vr(XB+8*c+2*j,2)}, {vr(104+4*j,2)}, {vr(82+2*j,2)}")
        for w in range(4):
            k(f"v_cvt_pk_bf16_f32 v{160+4*c+w}, v{UBR+8*c+7-2*w}, v{UBR+8*c+6-2*w}")
        k(f"ds_write_b128 v232, {vr(160+4*c,4)} offset:{US*c}")
    k("s_waitcnt lgkmcnt(0)\ns_barrier")
    if F: k("s_branch LF_G")
    else:
        if diag:
            TA(); TA.flush(WS,0)
        k("s_endpgm")
    k("L1_grow:\nv_and_b32 v128, 31, v1\nv_lshlrev_b32 v128, 3, v128\nv_cmp_gt_u32 vcc, 32, v1")
    hi=[0,1,2,3,4,5,6,7,256,258,260,262,512,516,768,772,1024,1280,1536,1792,2048,2048,2048,2048]
    for r in range(12):
        q,i=divmod(r,4)
        k(f"""
        v_mov_b32 v129, {hi[8*q+4+i]}
        v_mov_b32 v130, {hi[8*q+i]}
        v_cndmask_b32 v129, v129, v130, vcc
        v_add_u32 v129, v129, v128
        v_cvt_f32_u32 v129, v129
        v_mul_f32 v129, -v54, v129
        v_exp_f32 v129, v129
        v_mul_f32 v{112+r}, v{112+r}, v129
        """)
    k("s_branch L1_grown")
    T2=Stamps(k,diag and not F); T2.n=1
    k(f"""
L1_sp0:
    s_sub_u32 s4, s2, 160
    s_mul_i32 s10, s4, 7
    s_add_u32 s10, s10, s3
    s_mul_i32 s11, s10, 5120
    s_mul_i32 s12, s3, 5120
    s_add_u32 m0, s12, 4096
    v_lshl_add_u32 v4, v1, 4, s11
    s_cmp_eq_u32 s3, 7
    s_cselect_b32 s10, 512, s10
    s_cmp_ge_u32 s10, 512
    s_waitcnt lgkmcnt(0)
    s_cbranch_scc1 L1_spare
    global_load_lds_dwordx4 v4, {X}
    global_load_lds_dwordx4 v4, {X} offset:1024
    global_load_lds_dwordx4 v4, {X} offset:2048
    global_load_lds_dwordx4 v4, {X} offset:3072
    s_add_u32 m0, m0, 4096
    v_add_u32 v4, 4096, v4
    global_load_lds_dwordx4 v4, {X}
L1_spare:
    """)
    if band:
        k(f"""
        s_cmp_ge_u32 s3, 7
        s_cbranch_scc1 L1_noband
        s_lshr_b32 s13, s4, 3
        s_mul_i32 s13, s13, 171
        v_lshrrev_b32 v10, 1, v0
        v_add_u32 v10, s13, v10
        v_min_u32 v10, 2047, v10
        v_mul_u32_u24 v10, 1280, v10
        v_and_b32 v11, 1, v0
        v_mul_u32_u24 v11, 156, v11
        s_and_b32 s13, s2, 7
        s_mul_i32 s13, s13, 160
        v_add3_u32 v10, v10, v11, s13
        global_load_dword v200, v10, {X}
L1_noband:
        """)
    k(f"""
    v_mov_b32 v6, 0
    s_mov_b32 s52, 0x3f803f80
    s_cmp_eq_u32 s3, 7
    s_cbranch_scc1 L1_pollw
    s_cmp_ge_u32 s10, 512
    s_cbranch_scc1 L1_bar
    v_lshrrev_b32 v4, 5, v1
    v_mul_u32_u24 v4, 1280, v4
    v_and_b32 v5, 31, v1
    v_lshl_add_u32 v4, v5, 3, v4
    v_add_u32 v4, s12, v4
    """)
    for r in range(160,164): k(f"v_mov_b32 v{r}, 0")
    k(f"""
    v_and_b32 v8, 1, v1
    v_cmp_eq_u32 vcc, 1, v8
    v_lshlrev_b32 v9, 4, v1
    s_lshl_b32 s11, s3, 5
    v_add_u32 v9, s11, v9
    s_waitcnt vmcnt({1 if band else 0})
    """)
    T2()
    for i in range(5):
        for p in range(2): k(f"ds_read_b64 {vr(16+10*p+2*i,2)}, v4 offset:{4096+2560*p+256*i}")
    for i in range(10):
        if i%2==0: k(f"s_waitcnt lgkmcnt({8-i})")
        for p in range(2):
            k(f"v_dot2_f32_bf16 v{160+p}, v{16+10*p+i}, s52, v{160+p}\nv_dot2_f32_bf16 v{162+p}, v{16+10*p+i}, v{16+10*p+i}, v{162+p}")
    reduce32(k,list(range(160,164)),list(range(168,172)))
    k(f"""
    v_cndmask_b32 v160, v160, v161, vcc
    v_cndmask_b32 v164, v162, v163, vcc
    """)
    ln_finalize(k,160,164,168,170,171)
    k(f"""
    v_rcp_f32 v172, v171
    v_mov_b32 v176, v170
    v_mov_b32 v173, v172
    v_permlane32_swap_b32 v170, v176
    v_permlane32_swap_b32 v172, v173
    v_lshrrev_b32 v170, 16, v170
    v_or_b32 v174, v170, v176
    s_mov_b64 exec, 3
    ds_write_b128 v9, v[172:175]
    s_mov_b64 exec, -1
    s_branch L1_bar
L1_pollw:
    global_load_dword v8, v6, {WS}
    s_mul_i32 s11, s4, 14
    v_add_u32 v9, s11, v1
    v_cmp_gt_u32 s[60:61], 14, v1
    v_cmp_gt_u32 vcc, 0x400, v9
    s_and_b64 s[60:61], s[60:61], vcc
    v_lshlrev_b32 v9, 4, v9
    v_lshlrev_b32 v10, 4, v1
L1_pollw2:
    global_load_dword v7, v6, {DBG} sc1
    s_waitcnt vmcnt(0)
    v_cmp_eq_u32 vcc, 0, v7
    {bound("L1_pollw3")}
    s_cbranch_vccnz L1_pollw2
L1_pollw3:
    s_barrier
    ds_read_b128 v[172:175], v10
    s_mov_b64 exec, s[60:61]
    s_waitcnt lgkmcnt(0)
    s_cbranch_execz L1_pub
    v_mov_b32 v175, v7
    global_store_dwordx4 v9, v[172:175], {WS} sc1
L1_pub:
    s_mov_b64 exec, -1
    s_branch L1_cs
L1_bar:
    s_waitcnt lgkmcnt(0)
    s_barrier
L1_cs0:
    s_branch L1_cs
    """)
    k(f"""
L1_cs:
    """)
    T2()
    SIG=f"v_mov_b32 v10, {WS_CNT+49*CSTR}\nv_mov_b32 v11, 1\ns_mov_b64 exec, 1\ns_waitcnt vmcnt(0)\nglobal_atomic_add v10, v11, {WS} sc1\ns_mov_b64 exec, -1" if F else ""
    k(f"""
    s_load_dwordx4 s[36:39], s[0:1], 80
    s_load_dwordx2 s[56:57], s[0:1], 96
    s_mov_b32 s58, {640*3072}
    s_mov_b32 s59, 0x20000
    v_and_b32 v208, 15, v1
    s_cmp_lt_u32 s3, 4
    s_waitcnt lgkmcnt(0)
    s_cbranch_scc1 L1_w2
    s_and_b32 s5, s2, 7
    s_lshr_b32 s6, s4, 3
    s_cmp_ge_u32 s6, 6
    s_cselect_b32 s7, 1, 0
    s_cselect_b32 s56, s38, s36
    s_cselect_b32 s57, s39, s37
    s_mul_i32 s8, s7, 6
    s_sub_u32 s8, s6, s8
    s_and_b32 s9, s5, 3
    s_mul_i32 s9, s9, 384
    s_lshl_b32 s8, s8, 6
    s_add_u32 s8, s8, s9
    v_bfe_u32 v2, v0, 3, 5
    v_mul_u32_u24 v2, 3072, v2
    v_and_b32 v3, 7, v0
    v_lshl_add_u32 v2, v3, 4, v2
    s_lshl_b32 s9, s8, 1
    v_add_u32 v2, s9, v2
    s_mov_b32 s53, 0x00003f80
    s_mov_b32 s54, 0x3f800000
    s_mov_b32 s12, 0
    """)
    for i in range(20): k(f"buffer_load_dwordx4 {vr(64+4*i,4)}, v2, s[56:59], s12 offen\ns_add_u32 s12, s12, {32*3072}")
    if later:
        k(f"""
        s_getpc_b64 s[70:71]
L1_pc2:
        v_lshlrev_b32 v10, 6, v0
        v_add_u32 v10, L1_end-L1_pc2-16384+64, v10
        v_min_u32 v10, {later}-L1_pc2-64, v10
        global_load_dword v254, v10, s[70:71]
        """)
    for r in range(16,24,2): k(f"v_mov_b64 {vr(r,2)}, 0")
    k("s_mov_b32 s12, 0\nL1_csl:\ns_waitcnt vmcnt(0)")
    for i in range(20):
        for j in range(4):
            k(f"v_dot2_f32_bf16 v{16+2*j}, v{64+4*i+j}, s53, v{16+2*j}\nv_dot2_f32_bf16 v{17+2*j}, v{64+4*i+j}, s54, v{17+2*j}")
    R=list(range(16,24)); Tm=list(range(24,32))
    for r in R: k(f"v_add_f32_dpp v{r}, v{r}, v{r} row_ror:8 row_mask:0xf bank_mask:0xf")
    for sw in ("16","32"):
        for r,t in zip(R,Tm): k(f"v_mov_b32 v{t}, v{r}")
        for r,t in zip(R,Tm): k(f"v_permlane{sw}_swap_b32 v{r}, v{t}")
        for r,t in zip(R,Tm): k(f"v_add_f32 v{r}, v{r}, v{t}")
    k(f"""
    s_lshl_b32 s12, s3, 8
    s_sub_u32 s12, s12, 768
    v_lshl_add_u32 v10, v3, 5, s12
    ds_write_b128 v10, v[16:19]
    ds_write_b128 v10, v[20:23] offset:16
    s_waitcnt lgkmcnt(0)
    s_barrier
    s_cmp_lg_u32 s3, 4
    s_cbranch_scc1 L1_sdone
    s_cmp_ge_u32 s5, 4
    s_cbranch_scc1 L1_sdone
    v_lshlrev_b32 v10, 2, v1
    """)
    for i in range(4): k(f"ds_read_b32 v{16+i}, v10 offset:{256+256*i}")
    k(f"""
    s_mul_i32 s12, s7, 1536
    s_add_u32 s12, s12, s8
    s_lshl_b32 s12, s12, 2
    s_add_u32 s12, s12, {WS_COLSUM}
    v_add_u32 v10, s12, v10
    s_waitcnt lgkmcnt(0)
    v_add_f32 v16, v16, v17
    v_add_f32 v18, v18, v19
    v_add_f32 v16, v16, v18
    global_store_dword v10, v16, {WS} sc1
    {SIG}
    s_branch L1_sdone
L1_w2:
    """)
    k(f"""
    v_lshrrev_b32 v10, 4, v1
    v_bfe_u32 v11, v1, 3, 1
    v_bfe_u32 v12, v1, 1, 2
    v_lshl_add_u32 v11, v11, 3, v12
    v_and_b32 v12, 1, v1
    v_lshlrev_b32 v12, 4, v12
    s_and_b32 s12, s4, 1
    s_lshl_b32 s12, s12, 2
    s_add_u32 s12, s12, s3
    s_lshr_b32 s13, s4, 1
    s_mul_i32 s14, s12, 160
    s_mul_i32 s15, s13, {32*1280}
    s_add_u32 s14, s14, s15
    s_mul_i32 s15, s3, 5120
    s_add_u32 s15, s15, 4096
    s_mov_b32 m0, s15
    """)
    for i in range(5):
        k(f"""
        v_add_u32 v13, {4*i}, v10
        v_mul_u32_u24 v14, 52, v13
        v_lshrrev_b32 v14, 8, v14
        v_mad_i32_i24 v13, v14, -5, v13
        v_and_b32 v15, 1, v14
        v_lshrrev_b32 v14, 1, v14
        v_lshlrev_b32 v14, 4, v14
        v_lshl_add_u32 v14, v15, 2, v14
        v_add_u32 v14, v14, v11
        v_mul_u32_u24 v14, 1280, v14
        v_lshl_add_u32 v14, v13, 5, v14
        v_add_u32 v14, v14, v12
        buffer_load_dwordx4 v14, s[56:59], s14 offen lds
        s_add_u32 m0, m0, 1024
        """)
    k(f"""
    s_mul_i32 s12, s12, 48
    s_add_u32 s12, s12, s13
    s_mul_i32 s12, s12, 5120
    s_add_u32 s12, s12, {WS_W2}
    v_lshl_add_u32 v13, v1, 4, s12
    v_lshrrev_b32 v14, 5, v1
    v_mul_u32_u24 v14, 2560, v14
    v_bfe_u32 v15, v1, 4, 1
    v_lshl_add_u32 v14, v15, 7, v14
    v_lshl_add_u32 v14, v208, 3, v14
    v_add_u32 v14, s15, v14
    s_waitcnt vmcnt(0)
    """)
    for dt in range(5):
        for e in range(2): k(f"ds_read_b64_tr_b16 {vr(96+4*dt+2*e,2)}, v14 offset:{(e*5+dt)*256}")
    for dt in range(5): k(f"s_waitcnt lgkmcnt({8-2*dt})\nglobal_store_dwordx4 v13, {vr(96+4*dt,4)}, {WS} offset:{1024*dt-2048 if False else (1024*dt if dt<4 else 0)} sc1" if dt<4 else f"s_waitcnt lgkmcnt(0)\nv_add_u32 v13, 4096, v13\nglobal_store_dwordx4 v13, {vr(96+4*dt,4)}, {WS} sc1")
    k(f"""
    s_waitcnt vmcnt(0)
    s_barrier
L1_sdone:
    """)
    if F: return k
    if diag:
        k("s_waitcnt vmcnt(0)"); T2(); T2.flush(WS,0)
    k("L1_end:\ns_endpgm")
    return k
if __name__=="__main__":
    open("t1.s","w").write(emit([gen_k1(diag=True)],verbose=True))
```

```python
from ag import *
from common import *
import k1
from k1 import ln_finalize
import math
NAME="sequential_preLN__ssm_conv_s4__glu_gated_swiglu__prompt_kernel"
WSL=12288; NW=9; TSL=8192; NT=6; TR0=NW*WSL; EX0=TR0+NT*TSL
CSL=EX0; PRT=EX0+1024; STA=EX0+2048
W3=20480; NW3=7; NS3=12; RES=NW3*W3
def poll(k,vaddr,target,lab,vt,pre=True,sleep=2):
    k(f"""
{lab}:
    global_load_dword v{vt}, v{vaddr}, s[42:43] sc1
    s_waitcnt vmcnt(0)
    v_cmp_ne_u32 vcc, {target}, v{vt}
    s_cbranch_vccz {lab}d
    s_sleep {sleep}
    {k1.bound(lab+"d")}
    s_branch {lab}
{lab}d:
    """)
def gen(diag=False, span=18, k1a={}, sl1=2, sl2=1, wmode=0, pst=0, b2=True, ev=(8,12,14,18), thr=63, eprio=0, warm=0, dry=False, nbpre=7, bstep=1, var='', h2d=0, psplit=False):
    k=k1.gen_k1(diag=diag,fused=NAME,**k1a); T=k.T
    WS="s[42:43]"
    TL=k1.Stamps(k,diag); TL.n=1
    ids1="""
    s_and_b32 s6, s2, 3
    s_lshl_b32 s6, s6, 2
    s_bfe_u32 s7, s2, 0x20003
    s_add_u32 s6, s6, s7
    s_bfe_u32 s7, s2, 0x10002
    s_lshl_b32 s7, s7, 3
    s_lshr_b32 s5, s2, 5
    s_add_u32 s7, s7, s5
    """
    ids2="""
    s_and_b32 s6, s2, 1
    s_lshl_b32 s6, s6, 2
    s_bfe_u32 s7, s2, 0x20003
    s_add_u32 s6, s6, s7
    s_bfe_u32 s7, s2, 0x20001
    s_lshl_b32 s7, s7, 3
    s_lshr_b32 s5, s2, 5
    s_add_u32 s7, s7, s5
    """
    k(f"""
    {"s_memrealtime s[100:101]" if diag else ""}
    s_mov_b32 s69, 0
    s_cmp_ge_u32 s3, 4
    s_cbranch_scc1 LF_L
    s_cmp_lg_u32 s3, 0
    s_cbranch_scc1 LF_C
    v_mov_b32 v2, {WS_CNT+50*CSTR}
    v_mov_b32 v3, 1
    s_mov_b64 exec, 1
    global_atomic_add v2, v3, {WS} sc1
    s_mov_b64 exec, -1
    s_branch LF_C
LF_G:
    s_setprio 0
    s_mov_b32 s69, 1
LF_L:
    """)
    TL()
    k(ids1)
    k(f"""
    s_sub_u32 s3, s3, 4
    s_load_dwordx4 s[36:39], s[0:1], 80
    v_lshlrev_b32 v10, 4, v1
    v_bfe_u32 v4, v1, 2, 2
    v_and_b32 v5, 3, v1
    v_lshrrev_b32 v3, 4, v1
    s_and_b32 s9, s3, 1
    s_mul_i32 s8, s9, 12
    v_add_u32 v2, s8, v3
    s_mul_i32 s10, s6, 192
    """)
    for i in range(3):
        k(f"""
        v_add_u32 v6, {4*i}, v2
        v_mul_u32_u24 v7, 43, v6
        v_lshrrev_b32 v7, 7, v7
        v_mad_i32_i24 v8, v7, -3, v6
        v_and_b32 v9, 2, v7
        v_xor_b32 v9, v9, v5
        v_lshl_add_u32 v7, v7, 2, v4
        v_mul_u32_u24 v7, 3072, v7
        v_lshl_add_u32 v7, v8, 6, v7
        v_lshl_add_u32 v7, v9, 4, v7
        v_add_u32 v{60+i}, s10, v7
        """)
    k(f"""
    v_subrev_u32 v61, 1024, v61
    v_subrev_u32 v62, 2048, v62
    s_mul_i32 s20, s3, 3072
    s_mov_b32 s26, 0
    s_mov_b32 s48, s42
    s_mov_b32 s49, s43
    s_mov_b32 s50, {WS_W2+8*48*5120}
    s_mov_b32 s51, 0x20000
    s_mov_b32 s54, {640*3072}
    s_mov_b32 s55, 0x20000
    s_mov_b32 s28, s20
    s_cmp_ge_u32 s3, 2
    s_waitcnt lgkmcnt(0)
    s_cselect_b32 s52, s38, s36
    s_cselect_b32 s53, s39, s37
    s_branch LF_go1
LF_dw:
    s_mov_b32 m0, s28
    s_add_u32 s28, s28, {WSL}
    buffer_load_dwordx4 v60, s[52:55], s26 offen lds
    buffer_load_dwordx4 v61, s[52:55], s26 offen offset:1024 lds
    buffer_load_dwordx4 v62, s[52:55], s26 offen offset:2048 lds
    s_add_u32 s26, s26, {32*3072}
    s_cmp_ge_u32 s28, {TR0}
    s_cselect_b32 s28, s20, s28
    s_setpc_b64 s[70:71]
LF_dt:
    s_mov_b32 m0, s29
    s_add_u32 s29, s29, 1024
    buffer_load_dwordx4 v13, s[48:51], s27 offen sc1 lds
    s_mov_b32 m0, s29
    s_add_u32 s29, s29, {TSL-1024}
    buffer_load_dwordx4 v14, s[48:51], s27 offen sc1 lds
    s_add_u32 s27, s27, {32*4096}
    s_cmp_ge_u32 s29, {EX0}
    s_cselect_b32 s29, s23, s29
    s_setpc_b64 s[70:71]
LF_go1:
    """)
    DW="s_call_b64 s[70:71], LF_dw"; DT="s_call_b64 s[70:71], LF_dt"
    TL()
    for i in range(6): k(DW)
    k(f"""
    s_lshl_b32 s8, s3, 3
    v_add_u32 v6, s8, v4
    v_lshlrev_b32 v6, 12, v6
    v_lshl_add_u32 v6, v3, 6, v6
    s_and_b32 s9, s3, 1
    s_lshl_b32 s8, s9, 1
    v_xor_b32 v7, s8, v5
    v_lshl_add_u32 v6, v7, 4, v6
    s_lshl_b32 s8, s7, 8
    v_add_u32 v13, s8, v6
    v_add_u32 v14, 16384, v13
    s_lshl_b32 s23, s3, 11
    s_add_u32 s23, s23, {TR0}
    s_mov_b32 s29, s23
    s_mov_b32 s27, {WS_HT}
    ; LN2 partial: source v15/v16 (rows 40n.., tokens 32L..), destination v17, counter v18
    v_lshrrev_b32 v2, 2, v1
    s_mul_i32 s8, s6, 40
    v_add_u32 v15, s8, v2
    v_lshlrev_b32 v15, 12, v15
    v_lshl_add_u32 v15, v5, 4, v15
    s_lshl_b32 s8, s7, 8
    s_lshl_b32 s9, s3, 6
    s_add_u32 s8, s8, s9
    v_add_u32 v15, s8, v15
    v_lshrrev_b32 v6, 5, v1
    v_lshl_or_b32 v16, v6, 30, v15
    v_lshlrev_b32 v17, 9, v6
    v_lshl_add_u32 v17, v5, 5, v17
    v_bfe_u32 v7, v1, 4, 1
    v_lshl_add_u32 v17, v7, 4, v17
    s_lshl_b32 s8, s7, 4
    s_add_u32 s9, s8, s6
    s_lshl_b32 s9, s9, 10
    s_lshl_b32 s10, s3, 7
    s_add_u32 s9, s9, s10
    s_add_u32 s9, s9, {WS_PART}
    v_add_u32 v17, s9, v17
    s_mul_i32 s9, s7, {CSTR}
    s_add_u32 s9, s9, {WS_CNT}
    v_mov_b32 v18, s9
    v_mov_b32 v19, 1
    v_add_u32 v20, s8, v3
    v_lshlrev_b32 v20, 10, v20
    v_bfe_u32 v6, v1, 3, 1
    v_lshl_add_u32 v20, v6, 9, v20
    v_and_b32 v6, 7, v1
    v_lshl_add_u32 v20, v6, 4, v20
    s_add_u32 s9, s10, {WS_PART}
    v_add_u32 v20, s9, v20
    v_add_u32 v21, 8192, v20
    v_add_u32 v40, 4096, v20
    v_add_u32 v41, 4096, v21
    v_lshl_add_u32 v22, v6, 2, v3
    s_lshl_b32 s9, s3, 5
    v_add_u32 v22, s9, v22
    v_lshlrev_b32 v22, 4, v22
    v_add_u32 v22, {STA}, v22
    ; colsum source v42, LDS v43 ; phase-1 counters v44
    v_cmp_lt_u32 vcc, 23, v1
    v_mov_b32 v6, {6144-384}
    s_mul_i32 s9, s6, 384
    s_add_u32 s9, s9, {WS_COLSUM}
    v_cndmask_b32 v6, 0, v6, vcc
    v_add3_u32 v42, v10, v6, s9
    v_add_u32 v43, {CSL}, v10
    s_and_b32 s9, s2, 1
    s_lshl_b32 s9, s9, 2
    v_and_b32 v44, 3, v1
    v_add_u32 v44, s9, v44
    v_mul_u32_u24 v44, {CSTR}, v44
    v_add_u32 v44, {WS_CNT+56*CSTR}, v44
    s_mov_b32 s11, {WS_HT}
    s_mov_b32 s12, {WS_HT+0x10000}
    s_mov_b32 s13, {WS_HT+0x20000}
    """)
    k(ids2.replace("s6","s56").replace("s7","s57"))
    k(f"""
    s_mul_i32 s58, s3, 5120
    s_mov_b32 s59, s58
    s_mul_i32 s60, s56, {48*5120}
    s_add_u32 s60, s60, s58
    s_add_u32 s60, s60, {WS_W2}
    s_cmp_lt_u32 s3, 2
    s_cselect_b32 s24, 1, 0
    v_lshrrev_b32 v6, 5, v1
    v_bfe_u32 v7, v1, 1, 2
    v_lshl_add_u32 v6, v6, 2, v7
    v_lshlrev_b32 v6, 12, v6
    v_bfe_u32 v7, v1, 3, 2
    v_lshl_add_u32 v6, v7, 5, v6
    v_and_b32 v7, 1, v1
    v_lshl_add_u32 v6, v7, 4, v6
    s_mul_i32 s8, s56, {80*4096}
    s_lshl_b32 s9, s57, 7
    s_add_u32 s8, s8, s9
    s_add_u32 s8, s8, {WS_HT}
    v_add_u32 v63, s8, v6
    """)
    k(f"""
    s_cmp_eq_u32 s69, 0
    s_cbranch_scc1 LF_l2
    s_barrier
LF_l2:
    """)
    TL()
    if wmode==0:
        for i in range(6,NW): k(DW)
    k(f"""
    s_cmp_lg_u32 s3, 0
    s_cbranch_scc1 LF_l4
    """)
    TL()
    poll(k,44,1,"LF_p1",12,sleep=sl1)
    k(f"""
LF_l4:
    s_barrier
    {DT}
    {DT}
    buffer_load_dwordx4 v[48:51], v15, s[48:51], s11 offen sc1
    buffer_load_dwordx4 v[52:55], v15, s[48:51], s12 offen sc1
    buffer_load_dwordx4 v[56:59], v16, s[48:51], s13 offen sc1
    """)
    for i in range(NT-2): k(DT)
    ops=["T0","T0","T1","T1","P","P","P"]+sum([["T%d"%i]*2 for i in range(2,NT)],[])
    def wait(need):
        last=max([i for i,o in enumerate(ops) if o in need]+[-1])
        return min(63,len(ops)-1-last)
    k(f"s_waitcnt vmcnt({wait(['T0'])})\ns_barrier")
    if wmode==1:
        for i in range(6,NW): k(DW); ops+=["W%d"%i]*3
    wnext=6 if wmode==2 else NW
    S1=64; S2=72
    def partial(js=range(3)):
        for j in js:
            for q in range(4):
                k(f"v_lshlrev_b32 v{80+2*q}, 16, v{48+4*j+q}\nv_and_b32 v{81+2*q}, 0xffff0000, v{48+4*j+q}")
            for q in range(8):
                if j==0: k(f"v_mov_b32 v{S1+q}, v{80+q}\nv_mul_f32 v{S2+q}, v{80+q}, v{80+q}")
                else: k(f"v_add_f32 v{S1+q}, v{S1+q}, v{80+q}\nv_fmac_f32 v{S2+q}, v{80+q}, v{80+q}")
    def partial2():
        for i in range(8): k(f"v_permlane32_swap_b32 v{S1+i}, v{S2+i}")
        for i in range(8): k(f"v_add_f32 v{S1+i}, v{S1+i}, v{S2+i}")
        for i in range(4): k(f"v_permlane16_swap_b32 v{S1+i}, v{S1+4+i}")
        for i in range(4): k(f"v_add_f32 v{S1+i}, v{S1+i}, v{S1+4+i}")
        for rr in (8,4):
            for i in range(4): k(f"v_add_f32_dpp v{S1+i}, v{S1+i}, v{S1+i} row_ror:{rr} row_mask:0xf bank_mask:0xf")
        k(f"s_mov_b32 exec_lo, 0x000f000f\ns_mov_b32 exec_hi, 0x000f000f\nglobal_store_dwordx4 v17, {vr(S1,4)}, {WS} sc1\ns_mov_b64 exec, -1")
    tnext=NT
    E=(lambda x: x) if not b2 else (lambda x: x&~1)
    for sg in range(0,20,2 if b2 else 1):
        need=["T%d"%(sg+1),"W%d"%(sg+1)]+(["T%d"%(sg+2),"W%d"%(sg+2)] if b2 else [])
        if sg==pst: need.append("P")
        if sg==ev[0]: need.append("S")
        if sg==ev[2]: need.append("C")
        k(f"s_waitcnt vmcnt({wait(need)})\ns_barrier")
        while tnext<20 and tnext<=sg+NT: k(DT); ops+=["T%d"%tnext]*2; tnext+=1
        c=0
        while wnext<20 and wnext<=sg+NW and c<(2 if b2 else 1): k(DW); ops+=["W%d"%wnext]*3; wnext+=1; c+=1
        if psplit:
            if sg<3: partial([sg])
            if sg==3: partial2(); ops.append("S")
        else:
            if sg==pst: partial()
            if sg==pst+(2 if b2 else 1): partial2(); ops.append("S")
        if sg==ev[0]:
            k(f"s_cmp_lg_u32 s3, 0\ns_cbranch_scc1 LF_nsig\ns_mov_b64 exec, 1\nglobal_atomic_add v18, v19, {WS} sc1\ns_mov_b64 exec, -1\nLF_nsig:")
        if sg==ev[1]: k(f"v_mov_b32 v46, {WS_CNT+50*CSTR}\nv_mov_b32 v47, {WS_CNT+49*CSTR}\nglobal_load_dword v45, v46, {WS} sc1\nglobal_load_dword v12, v47, {WS} sc1\nglobal_load_dword v23, v18, {WS} sc1"); ops+=["C","C","C"]
        if sg==ev[2]:
            k(f"v_cmp_ne_u32 vcc, 16, v23\ns_cbranch_vccz LF_cnt")
            poll(k,18,16,"LF_p2",23,sleep=1)
            k(f"""
LF_cnt:
            v_cmp_ne_u32 vcc, 48, v12
            s_cbranch_vccz LF_p5d
            """)
            poll(k,47,48,"LF_p5",12,sleep=4)
            k(f"""
            global_load_dwordx4 v[48:51], v42, {WS} sc1
            global_load_dwordx4 v[24:27], v20, {WS} sc1
            global_load_dwordx4 v[28:31], v40, {WS} sc1
            global_load_dwordx4 v[32:35], v21, {WS} sc1
            global_load_dwordx4 v[36:39], v41, {WS} sc1
            """)
            ops+=["G"]*5
        if sg==ev[3]:
            k(f"""
            s_waitcnt vmcnt({wait(["G"])})
            ds_write_b128 v43, v[48:51]
            v_add_f32 v24, v24, v28
            v_add_f32 v25, v25, v29
            v_add_f32 v26, v26, v30
            v_add_f32 v27, v27, v31
            v_add_f32 v32, v32, v36
            v_add_f32 v33, v33, v37
            v_add_f32 v34, v34, v38
            v_add_f32 v35, v35, v39
            v_add_f32 v24, v24, v32
            v_add_f32 v25, v25, v33
            v_add_f32 v26, v26, v34
            v_add_f32 v27, v27, v35
            v_permlane32_swap_b32 v24, v26
            v_permlane32_swap_b32 v25, v27
            v_add_f32 v24, v24, v26
            v_add_f32 v25, v25, v27
            v_permlane16_swap_b32 v24, v25
            v_add_f32 v24, v24, v25
            v_mov_b32_dpp v25, v24 row_ror:8 row_mask:0xf bank_mask:0xf
            """)
            ln_finalize(k,24,25,26,28,30)
            k(f"""
            v_rcp_f32 v29, v30
            v_mul_f32 v30, v30, v30
            s_mov_b32 exec_lo, 0x00ff00ff
            s_mov_b32 exec_hi, 0x00ff00ff
            v_mul_f32 v29, {f2u(-math.log2(math.e))}, v29
            ds_write_b128 v22, v[28:31]
            s_mov_b64 exec, -1
            """)
    k(f"""
    s_branch LF_go3
LF_dw3:
    s_mov_b32 m0, s28
    s_add_u32 s31, s20, 4096
    buffer_load_dwordx4 v10, s[48:51], s20 offen sc1 lds
    buffer_load_dwordx4 v10, s[48:51], s20 offen offset:1024 sc1 lds
    buffer_load_dwordx4 v10, s[48:51], s20 offen offset:2048 sc1 lds
    buffer_load_dwordx4 v10, s[48:51], s20 offen offset:3072 sc1 lds
    s_add_u32 m0, s28, 4096
    s_add_u32 s28, s28, {W3}
    buffer_load_dwordx4 v10, s[48:51], s31 offen sc1 lds
    s_add_u32 s20, s20, {W3}
    s_setpc_b64 s[70:71]
LF_go3:
    s_mov_b32 s22, s58
    s_mov_b32 s28, s59
    s_mov_b32 s20, s60
    v_mov_b32 v16, v63
    s_waitcnt lgkmcnt(0)
    s_barrier
    v_cmp_ne_u32 vcc, 0x60, v45
    s_cbranch_vccz LF_p4d
    """)
    poll(k,46,"0x60","LF_p4",45,sleep=4)
    k(f"""
    s_mov_b32 s30, 0
LF_pf3:
    s_call_b64 s[70:71], LF_dw3
    s_waitcnt vmcnt({thr})
    s_add_u32 s30, s30, 1
    s_cmp_lt_u32 s30, {NW3}
    s_cbranch_scc1 LF_pf3
    s_cmp_eq_u32 s24, 1
    s_cbranch_scc1 LF_nores
    s_sub_u32 s27, s3, 2
    s_mul_i32 s27, s27, 5
    s_lshl_b32 s26, s27, 15
    s_lshl_b32 s27, s27, 10
    s_add_u32 s27, s27, {RES}
    """)
    for i in range(5): k(f"s_mov_b32 m0, s27\ns_add_u32 s27, s27, 1024\nbuffer_load_dwordx4 v16, s[48:51], s26 offen sc1 lds\ns_add_u32 s26, s26, 32768")
    k("LF_nores:\nv_add_u32 v11, s22, v10\ns_waitcnt vmcnt(36)")
    for st in range(NW3,NS3):
        k("s_add_u32 s31, s20, 4096")
        for p in range(5): k(f"buffer_load_dwordx4 {vr(64+20*(st-NW3)+4*p,4)}, v10, s[48:51], s{20 if p<4 else 31} offen offset:{1024*(p%4)} sc1")
        k(f"s_add_u32 s20, s20, {W3}")
    TL()
    k(f"s_waitcnt vmcnt({5*(NS3-NW3)})\ns_barrier")
    for grp in ((7,8),(9,10,11)):
        k(f"s_barrier\ns_waitcnt vmcnt({5*(NS3-1-grp[-1])})")
        for r in grp:
            for p in range(5): k(f"ds_write_b128 v11, {vr(64+20*(r-NW3)+4*p,4)} offset:{1024*p}")
            k(f"v_add_u32 v11, {W3}, v11")
        k("s_waitcnt lgkmcnt(0)")
    k("s_barrier\ns_barrier")
    if diag:
        TL.n=11; k("s_add_u32 s3, s3, 4"); TL.flush(WS,0)
    k("s_endpgm")
    k(f"""
LF_M:
    s_bfe_u32 s7, s2, 0x20003
    s_mul_i32 s7, s7, {CSTR}
    s_add_u32 s8, s7, {WS_CNT+52*CSTR}
    v_mov_b32 v2, s8
    v_mov_b32 v3, 1
    v_mul_u32_u24 v5, {4*CSTR}, v1
    s_add_u32 s8, s7, {WS_CNT+56*CSTR}
    v_add_u32 v5, s8, v5
    s_mov_b64 exec, 1
    s_waitcnt vmcnt(0)
    ds_add_rtn_u32 v4, v232, v3
    s_waitcnt lgkmcnt(0)
    v_cmp_eq_u32 vcc, 3, v4
    s_cbranch_vccz LF_m2
    global_atomic_add v4, v2, v3, {WS} sc0 sc1
    s_waitcnt vmcnt(0)
    v_cmp_eq_u32 vcc, 39, v4
    s_cbranch_vccz LF_m2
    s_mov_b64 exec, 3
    global_store_dword v5, v3, {WS} sc1
LF_m2:
    s_mov_b64 exec, -1
    s_barrier
LF_C:
    """)
    if diag: T.n=4
    k(ids1)
    k(f"""
    v_lshrrev_b32 v2, 2, v1
    v_and_b32 v4, 3, v1
    v_lshrrev_b32 v5, 5, v1
    v_bfe_u32 v6, v1, 4, 1
    v_and_b32 v8, 15, v1
    v_lshrrev_b32 v9, 4, v1
    v_lshlrev_b32 v10, 6, v2
    v_and_b32 v10, 0xc0, v10
    v_lshl_add_u32 v10, v4, 3, v10
    v_lshl_add_u32 v10, v6, 5, v10
    v_mul_u32_u24 v11, 1536, v9
    v_add_u32 v11, v11, v10
    s_and_b32 s8, s3, 1
    s_lshr_b32 s9, s3, 1
    s_lshl_b32 s10, s8, 5
    v_xor_b32 v12, s10, v11
    v_xor_b32 v13, 32, v12
    s_lshl_b32 s10, s8, 8
    v_add_u32 v12, s10, v12
    v_add_u32 v14, 256, v12
    s_lshl_b32 s10, s8, 9
    v_add_u32 v13, s10, v13
    v_lshl_add_u32 v15, v9, 11, v10
    s_lshl_b32 s10, s9, 9
    s_add_u32 s10, s10, {TR0}
    v_add_u32 v15, s10, v15
    v_xor_b32 v16, 32, v15
    s_mul_i32 s10, s8, 192
    s_add_u32 s10, s10, {CSL}
    v_lshl_add_u32 v17, v9, 4, s10
    s_lshl_b32 s10, s9, 10
    s_add_u32 s10, s10, {STA}
    v_lshl_add_u32 v19, v8, 4, s10
    s_lshl_b32 s10, s7, 3
    s_lshl_b32 s11, s9, 2
    s_add_u32 s10, s10, s11
    s_mul_i32 s10, s10, {48*1024}
    s_mul_i32 s11, s6, 3072
    s_add_u32 s10, s10, s11
    s_mul_i32 s11, s8, 1536
    s_add_u32 s10, s10, s11
    s_add_u32 s10, s10, {WS_HID}
    v_mul_u32_u24 v18, {48*1024}, v6
    v_lshl_add_u32 v18, v5, 8, v18
    v_lshl_add_u32 v18, v8, 4, v18
    v_add_u32 v18, s10, v18
    v_add_u32 v20, {2*48*1024}, v18
    s_mul_i32 s10, s7, {CSTR}
    s_add_u32 s10, s10, {WS_CNT+16*CSTR}
    v_mov_b32 v21, s10
    s_lshl_b32 s35, s6, 2
    v_mov_b32 v7, {PRT}
    v_mov_b32 v3, 0
    ds_write_b32 v7, v3
    s_load_dwordx2 s[38:39], s[0:1], 104
    """)
    ACC=160
    if dry:
        for i in range(5): k(f"v_mov_b32 v{22+i}, v{12+i}")
        k("s_mov_b32 s33, 0\ns_mov_b32 s34, 0\ns_mov_b32 s30, 100\ns_mov_b64 vcc, -1\ns_branch LF_loop\nLF_dried:\ns_mov_b64 vcc, 0")
    if warm: k("s_mov_b32 s72, 1\ns_mov_b64 exec, 0\ns_branch LF_epi\nLF_epiret:")
    if warm>1: k("s_branch LF_fin\nLF_finret:")
    if warm: k("s_mov_b64 exec, -1")
    for r in range(ACC,ACC+96,2): k(f"v_mov_b64 {vr(r,2)}, 0")
    FA=[32,72]
    def reads(buf,va,vb):
        o=[]
        for j in range(4):
            for e in range(2): o.append(f"ds_read_b64_tr_b16 {vr(FA[buf]+24+4*j+2*e,2)}, v{vb+(j&1)} offset:{e*1024+(j>>1)*256}")
        for t in range(6):
            for e in range(2): o.append(f"ds_read_b64_tr_b16 {vr(FA[buf]+4*t+2*e,2)}, v{va+t%3} offset:{(t//3)*6144+e*768}")
        return o[8:10]+o[0:8]+o[10:]
    def mfs(buf): return [f"v_mfma_f32_16x16x32_bf16 {vr(ACC+16*t+4*j,4)}, {vr(FA[buf]+4*t,4)}, {vr(FA[buf]+24+4*j,4)}, {vr(ACC+16*t+4*j,4)}" for t in range(6) for j in range(4)]
    def adv(b=0):
        return [f"v_add_u32 v{22+5*b+i}, s{33 if i<3 else 34}, v{12+i}" for i in range(5)]+[f"s_add_u32 s33, s33, {WSL}",f"s_cmp_eq_u32 s33, {NW*WSL}","s_cselect_b32 s33, 0, s33",f"s_add_u32 s34, s34, {TSL}",f"s_cmp_eq_u32 s34, {NT*TSL}","s_cselect_b32 s34, 0, s34"]
    k(f"s_mov_b32 s33, {WSL}\ns_mov_b32 s34, {TSL}")
    for x in adv(): k(x)
    k("s_mov_b32 s30, 0\ns_barrier")
    T()
    k("s_barrier")
    T()
    if "prof" in var: k("s_memtime s[66:67]\ns_waitcnt lgkmcnt(0)\nv_writelane_b32 v159, s66, 0")
    for x in reads(0,12,15): k(x)
    k(f"LF_loop:")
    for b in range(2):
        k("s_waitcnt lgkmcnt(0)")
        if b2 and b==1: pass
        elif dry: k(f"s_cbranch_vccnz LF_sk{b}\ns_barrier\nLF_sk{b}:")
        else: k("s_barrier")
        rd=reads(1-b,22+5*b,25+5*b)
        rest=adv(1-b)+(["s_add_u32 s30, s30, 1","s_cmp_lt_u32 s30, 10"] if b else [])
        m=mfs(b); p=0
        va=rest[:5]; sa=rest[5:]
        for i,x in enumerate(m):
            k(x)
            e=min(len(rd),(len(rd)*(i+1)+span-1)//span)
            for y in rd[p:e]: k(y)
            p=e
            if i<5: k(va[i])
            elif sa and i%2==0:
                k(sa.pop(0))
        for y in sa: k(y)
    if "prof" in var:
        k("s_cselect_b32 s68, 1, 0\ns_memtime s[66:67]\ns_waitcnt lgkmcnt(0)\ns_mov_b32 m0, s30\nv_writelane_b32 v159, s66, m0\ns_cmp_eq_u32 s68, 1")
    k(f"s_cbranch_scc1 LF_loop")
    if "prof" in var: k(f"s_lshl_b32 s78, s2, 9\ns_lshl_b32 s79, s3, 6\ns_add_u32 s78, s78, s79\ns_add_u32 s78, s78, {WS_STAMP+131072}\nv_lshl_add_u32 v158, v1, 2, s78\ns_mov_b64 exec, 0xffff\nglobal_store_dword v158, v159, {WS}\ns_mov_b64 exec, -1")
    if dry: k("s_waitcnt lgkmcnt(0)\ns_cbranch_vccnz LF_dried")
    T()
    k("s_barrier")
    if warm: k("s_mov_b32 s72, 0\nLF_epi:")
    ST=112; CS=128
    for j in range(4): k(f"ds_read_b128 {vr(ST+4*j,4)}, v19 offset:{256*j}")
    for t in range(6): k(f"ds_read_b128 {vr(CS+4*t,4)}, v17 offset:{(t//3)*384+(t%3)*64}")
    k("s_waitcnt lgkmcnt(0)")
    for i in range(3):
        E=32
        G=lambda j,p: ACC+16*i+4*j+2*p
        U=lambda j,p: ACC+48+16*i+4*j+2*p
        JP=[(j,p) for j in range(4) for p in range(2)]
        for j,p in JP:
            k(f"v_pk_fma_f32 {vr(G(j,p),2)}, {vr(CS+4*i+2*p,2)}, {vr(ST+4*j,2)}, {vr(G(j,p),2)} op_sel:[0,0,0] op_sel_hi:[1,0,1] neg_lo:[1,0,0] neg_hi:[1,0,0]")
        for j,p in JP: k(f"v_pk_mul_f32 {vr(E+4*j+2*p,2)}, {vr(G(j,p),2)}, {vr(ST+4*j,2)} op_sel:[0,1] op_sel_hi:[1,1]")
        ex=[f"v_exp_f32 v{E+r}, v{E+r}" for r in range(16)]
        uu=[f"v_pk_fma_f32 {vr(U(j,p),2)}, {vr(CS+12+4*i+2*p,2)}, {vr(ST+4*j,2)}, {vr(U(j,p),2)} op_sel:[0,0,0] op_sel_hi:[1,0,1] neg_lo:[1,0,0] neg_hi:[1,0,0]" for j,p in JP]
        for x in merge(ex,uu): k(x)
        for j,p in JP: k(f"v_pk_fma_f32 {vr(E+4*j+2*p,2)}, {vr(E+4*j+2*p,2)}, {vr(ST+4*j+2,2)}, {vr(ST+4*j+2,2)} op_sel:[0,0,0] op_sel_hi:[1,0,0]")
        rc=[f"v_rcp_f32 v{E+r}, v{E+r}" for r in range(16)]
        gu=[f"v_pk_mul_f32 {vr(G(j,p),2)}, {vr(G(j,p),2)}, {vr(U(j,p),2)}" for j,p in JP]
        for x in merge(rc,gu): k(x)
        for j,p in JP: k(f"v_pk_mul_f32 {vr(G(j,p),2)}, {vr(G(j,p),2)}, {vr(E+4*j+2*p,2)}")
        O=48+8*(i&1)
        for j,p in JP: k(f"v_cvt_pk_bf16_f32 v{O+2*j+p}, v{G(j,p)}, v{G(j,p)+1}")
        for jj in (0,2): k(f"v_permlane16_swap_b32 v{O+2*jj}, v{O+2*jj+2}\nv_permlane16_swap_b32 v{O+2*jj+1}, v{O+2*jj+3}")
        if warm: k(f"s_cmp_eq_u32 s72, 1\ns_cbranch_scc1 {'LF_es%d'%i if i<2 else 'LF_epiret'}")
        for jj in (0,2): k(f"global_store_dwordx4 v{18 if jj==0 else 20}, {vr(O+2*jj,4)}, {WS} offset:{512*i} sc1")
        if warm and i<2: k(f"LF_es{i}:")
    T()
    H2SIG=f"global_store_dword v12, v9, {WS} sc1" if h2d==2 else f"global_atomic_add v21, v9, {WS} sc1" if h2d else f"global_atomic_add v13, v21, v9, {WS} sc0 sc1\ns_waitcnt vmcnt(0)\nv_cmp_eq_u32 vcc, 15, v13\ns_cbranch_vccz LF_c3\nglobal_store_dword v12, v9, {WS} sc1"
    k(ids2)
    k(f"""
    v_lshlrev_b32 v10, 4, v1
    s_and_b32 s8, s3, 1
    s_lshr_b32 s9, s3, 1
    s_lshl_b32 s21, s7, 2
    s_lshl_b32 s10, s9, 1
    s_add_u32 s21, s21, s10
    s_mul_i32 s21, s21, 48
    s_add_u32 s21, s21, s8
    s_lshl_b32 s21, s21, 10
    s_add_u32 s21, s21, {WS_HID}
    s_add_u32 s22, s21, {48*1024}
    s_mov_b32 s48, s42
    s_mov_b32 s49, s43
    s_mov_b32 s50, {WS_HID+2048*1536*2}
    s_mov_b32 s51, 0x20000
    s_mul_i32 s10, s3, 5120
    s_add_u32 s10, s10, {6*W3}
    v_add_u32 v14, s10, v10
    s_xor_b32 s10, s3, 1
    s_mul_i32 s10, s10, 5120
    s_add_u32 s10, s10, {6*W3}
    v_add_u32 v15, s10, v10
    s_mul_i32 s10, s8, 5120
    v_add_u32 v4, s10, v10
    v_add_u32 v5, {3*W3}, v4
    v_add_u32 v6, {6*W3}, v4
    v_lshlrev_b32 v22, 9, v9
    v_lshl_add_u32 v22, v8, 3, v22
    s_lshl_b32 s10, s3, 7
    s_add_u32 s10, s10, {RES}
    v_add_u32 v2, s10, v22
    s_lshl_b32 s10, s7, 6
    s_lshl_b32 s11, s3, 4
    s_add_u32 s10, s10, s11
    v_add_u32 v23, s10, v8
    v_mul_u32_u24 v23, 1280, v23
    v_lshl_add_u32 v23, v9, 3, v23
    s_mul_i32 s10, s6, 160
    v_add_u32 v3, s10, v23
    v_mov_b32 v9, 1
    s_lshr_b32 s10, s7, 1
    s_mul_i32 s10, s10, {CSTR}
    s_add_u32 s10, s10, {WS_CNT+(16 if h2d==1 else 32)*CSTR}
    v_mov_b32 v11, s10
    v_add_u32 v12, {16*CSTR}, v21
    {"v_add_u32 v12, s35, v12" if h2d==2 else ""}
    {"v_lshl_add_u32 v11, v8, 2, v11" if h2d==2 else ""}
    s_mov_b64 exec, 1
    s_waitcnt vmcnt(0)
    ds_add_rtn_u32 v13, v7, v9
    s_waitcnt lgkmcnt(0)
    v_cmp_eq_u32 vcc, 3, v13
    s_cbranch_vccz LF_c3
    {H2SIG}
LF_c3:
    s_mov_b64 exec, -1
    s_cmp_lg_u32 s3, 0
    s_cbranch_scc1 LF_p3d
    """)
    poll(k,11,16 if h2d==1 else 1,"LF_p3",13,sleep=sl2)
    k("v_lshrrev_b32 v12, 4, v1\nv_and_b32 v13, 1, v12\nv_mul_u32_u24 v13, 24, v13\nv_add_u32 v13, v13, v3")
    AC3=16; AF=[56,76]; BR=96; NBR=20
    def areads(i):
        st=i//2; slot=st%NW3; off=(slot%3)*W3+(i&1)*10240
        return [f"ds_read_b128 {vr(AF[i&1]+4*dt,4)}, v{4+slot//3} offset:{off+1024*dt}" for dt in range(5)]
    def bload(i):
        o=[f"buffer_load_dwordx4 {vr(BR+8*(i%NBR)+4*j,4)}, v10, s[48:51], s{21+j} offen offset:{2048*(i&1)} {'' if 'nosc' in var else 'sc1 nt' if 'nt' in var else 'sc1'}" for j in range(2)]
        if "nold3" in var: o=[]
        if i&1: o+=["s_add_u32 s21, s21, 4096","s_add_u32 s22, s22, 4096"]
        return o
    k("s_barrier")
    T()
    pre=nbpre
    for i in range(pre):
        for x in bload(i): k(x)
    for x in areads(0): k(x)
    issued=pre
    for i in range(24):
        k(f"s_waitcnt vmcnt({2*(issued-(i+1))}) lgkmcnt(0)")
        if i in (3,9,15): k("s_barrier")
        fill=areads(i+1) if i<23 else []
        if i==22: fill=fill+[f"ds_read_b64_tr_b16 {vr(240+2*dt,2)}, v2 offset:{dt*2048}" for dt in range(5)]
        c=0
        while issued<24 and issued<i+NBR and c<bstep:
            fill=fill+bload(issued); issued+=1; c+=1
        m=[f"v_mfma_f32_16x16x32_bf16 {vr(AC3+20*j+4*dt,4)}, {vr(AF[i&1]+4*dt,4)}, {vr(BR+8*(i%NBR)+4*j,4)}, {vr(AC3+20*j+4*dt,4) if i else '0'}" for dt in range(5) for j in range(2)]
        for n,x in enumerate(m):
            k(x)
            if n<len(fill): k(fill[n])
        for x in fill[len(m):]: k(x)
    T()
    k("LF_fin:\ns_cmp_eq_u32 s8, 0\ns_cbranch_scc1 LF_x0")
    for dt in range(5): k(f"ds_write_b128 v14, {vr(AC3+4*dt,4)} offset:{1024*dt}")
    for r in range(0,20,2): k(f"v_mov_b64 {vr(AC3+r,2)}, {vr(AC3+20+r,2)}")
    k("s_branch LF_x1\nLF_x0:")
    for dt in range(5): k(f"ds_write_b128 v14, {vr(AC3+20+4*dt,4)} offset:{1024*dt}")
    k("LF_x1:")
    for dt in range(5):
        b=AC3+4*dt; t=112+4*dt
        k(f"""
        v_lshlrev_b32 v{t}, 16, v{240+2*dt}
        v_and_b32 v{t+1}, 0xffff0000, v{240+2*dt}
        v_lshlrev_b32 v{t+2}, 16, v{241+2*dt}
        v_and_b32 v{t+3}, 0xffff0000, v{241+2*dt}
        v_pk_add_f32 {vr(b,2)}, {vr(b,2)}, {vr(t,2)}
        v_pk_add_f32 {vr(b+2,2)}, {vr(b+2,2)}, {vr(t+2,2)}
        """)
    k("s_waitcnt lgkmcnt(0)")
    if warm>1: k("s_cmp_eq_u32 s72, 1\ns_cbranch_scc1 LF_fb")
    k("s_barrier\nLF_fb:")
    for dt in range(5): k(f"ds_read_b128 {vr(64+4*dt,4)}, v15 offset:{1024*dt}")
    for dt in range(5):
        b=AC3+4*dt; t=64+4*dt; o=96+2*dt
        k(f"""
        s_waitcnt lgkmcnt({4-dt})
        v_pk_add_f32 {vr(b,2)}, {vr(b,2)}, {vr(t,2)}
        v_pk_add_f32 {vr(b+2,2)}, {vr(b+2,2)}, {vr(t+2,2)}
        v_cvt_pk_bf16_f32 v{o}, v{b}, v{b+1}
        v_cvt_pk_bf16_f32 v{o+1}, v{b+2}, v{b+3}
        """)
        if dt in (1,3): k(f"v_permlane16_swap_b32 v{o-2}, v{o}\nv_permlane16_swap_b32 v{o-1}, v{o+1}")
    if warm>1: k("s_cbranch_scc1 LF_finret")
    k("global_store_dwordx4 v13, v[96:99], s[38:39]\nglobal_store_dwordx4 v13, v[100:103], s[38:39] offset:64\nglobal_store_dwordx2 v3, v[104:105], s[38:39] offset:128")
    if diag:
        k("s_waitcnt vmcnt(0)"); T(); T.flush(WS,0)
        if "dbgout" in var:
            k("s_or_b32 s78, s2, s3\ns_cmp_lg_u32 s78, 0\ns_cbranch_scc1 L1_end\ns_mov_b64 exec, 1\nv_mov_b32 v2, 0")
            for i in range(1,11): k(f"s_sub_u32 s78, s{80+2*i}, s80\nv_mov_b32 v3, s78\nglobal_store_dword v2, v3, s[40:41] offset:{4*i}")
    k("L1_end:\ns_endpgm")
    return k
def single(k, comment=""):
    g=k.grid; b=k.block
    s=comment+"; @launch grid=(%d,%d,%d) block=(%d,%d,%d) lds=%d\n"%(g[0],g[1],g[2],b[0],b[1],b[2],k.lds)
    return s+HEADER+k.text()+'.section .rodata,"a"\n.p2align 6\n'+k.desc()
if __name__=="__main__":
    from gate import *
    import build, sys
    k1.SAFE=True
    open("f_diag.s","w").write(emit([gate(),scrub(),gen(diag=True)],verbose=True))
    for n,a in enumerate(sys.argv[1:]):
        open("f_%s.s"%"bcdefgh"[n],"w").write(emit([gate(),scrub(),gen(diag=True,**eval("dict(%s)"%a))]))
    k1.SAFE=False
    open("v_fused.s","w").write(single(gen(),build.HDR))
    open("v_dbg.s","w").write(single(gen(diag=True,var="dbgout"),build.HDR))
```

```python
from ag import *
from common import *
import math, struct
HB=5712; LB=8704; LO0=8*HB; UB=LO0+8*LB; US=4608; XB0=UB+4*US; SC0=XB0+16384; LDS1=SC0+64

SAFE=False
def bound(lab):
    if not SAFE: return ""
    return f"s_add_u32 s75, s75, 1\ns_cmp_gt_u32 s75, 100000\ns_cbranch_scc1 {lab}"
def cmul(dst,x,m,t):
    return [f"v_pk_mul_f32 {vr(t,2)}, {vr(x,2)}, {vr(m,2)} op_sel:[0,0] op_sel_hi:[0,1]",
            f"v_pk_fma_f32 {vr(dst,2)}, {vr(x,2)}, {vr(m,2)}, {vr(t,2)} op_sel:[1,1,0] op_sel_hi:[1,0,1] neg_lo:[1,0,0]"]
def put(row,x,c,neg,base=0):
    n="-" if neg else ""
    return [f"v_cvt_pk_bf16_f32 v{c}, v{x}, {n}v{x+1}", f"ds_write_addtid_b32 v{c} offset:{base+row*272}"]

class Stamps:
    def __init__(s,k,on,base=80): s.k=k;s.on=on;s.n=0;s.base=base;s.kg=False
    def __call__(s,cyc=False,skip=False):
        if s.on and not skip:
            s.k(f"{'s_memtime' if cyc else 's_memrealtime'} s[{s.base+2*s.n}:{s.base+2*s.n+1}]"); s.n+=1
    def flush(s,ws,slot,wreg="s3"):
        if not s.on: return
        k=s.k
        k("s_waitcnt lgkmcnt(0)")
        k(f"s_lshl_b32 s78, s2, 9\ns_lshl_b32 s79, {wreg}, 6\ns_add_u32 s78, s78, s79\ns_add_u32 s78, s78, {WS_STAMP+slot*131072}\nv_mov_b32 v2, s78\ns_mov_b64 exec, 1")
        for i in range(s.n): k(f"v_mov_b32 v3, s{s.base+2*i}\nglobal_store_dword v2, v3, {ws} offset:{4*i}")
        for i,r in enumerate((72,100,98,96,94,76,74) if s.kg else ()): k(f"v_mov_b32 v3, s{r}\nglobal_store_dword v2, v3, {ws} offset:{36+4*i}")
        k("s_mov_b64 exec, -1")

def reduce32(k, regs, tmp):
    for m in ("quad_perm:[1,0,3,2]","quad_perm:[2,3,0,1]","row_half_mirror","row_mirror"):
        for r in regs: k(f"v_add_f32_dpp v{r}, v{r}, v{r} {m} row_mask:0xf bank_mask:0xf")
    for r,t in zip(regs,tmp): k(f"v_mov_b32 v{t}, v{r}")
    for r,t in zip(regs,tmp): k(f"v_permlane16_swap_b32 v{r}, v{t}")
    for r,t in zip(regs,tmp): k(f"v_add_f32 v{r}, v{r}, v{t}")

def ln_finalize(k, s1, s2, t, mean_out, sd_out):
    k(f"""
    v_mul_f32 v{s1}, {f2u(1/640.)}, v{s1}
    v_mul_f32 v{s2}, {f2u(1/640.)}, v{s2}
    v_fma_f32 v{s2}, -v{s1}, v{s1}, v{s2}
    v_max_f32 v{s2}, 0, v{s2}
    v_cvt_pk_bf16_f32 v{t}, v{s1}, v{s2}
    v_lshlrev_b32 v{mean_out}, 16, v{t}
    v_and_b32 v{t}, 0xffff0000, v{t}
    v_add_f32 v{t}, {f2u(1e-5)}, v{t}
    v_cvt_pk_bf16_f32 v{t}, v{t}, v{t}
    v_and_b32 v{t}, 0xffff0000, v{t}
    v_sqrt_f32 v{t}, v{t}
    v_cvt_pk_bf16_f32 v{t}, v{t}, v{t}
    v_and_b32 v{sd_out}, 0xffff0000, v{t}
    """)
def cexp(dst,scale,ta,tb):
    o=[]
    if scale!=1:
        o+=[f"v_mul_f32 v{ta}, {f2u(scale)}, v56", f"v_mul_f32 v{tb}, {f2u(scale)}, v57"]
        a,b=ta,tb
    else: a,b=56,57
    o+=[f"v_fract_f32 v{tb}, v{b}", f"v_exp_f32 v{ta}, v{a}", f"v_cos_f32 v{dst}, v{tb}", f"v_sin_f32 v{dst+1}, v{tb}",
        f"v_pk_mul_f32 {vr(dst,2)}, {vr(dst,2)}, {vr(ta,2)} op_sel:[0,0] op_sel_hi:[1,0]"]
    return o
def dt_code(k):
    l2e_hi=f2u(math.log2(math.e)); l2e_f=struct.unpack("<f",struct.pack("<I",l2e_hi))[0]; l2e_lo=f2u(math.log2(math.e)-l2e_f)
    k(f"""
    s_mov_b32 s14, {l2e_hi}
    s_mov_b32 s15, {l2e_lo}
    v_mul_f32 v51, s14, v50
    v_fma_f32 v52, v50, s14, -v51
    v_fma_f32 v52, v50, s15, v52
    v_exp_f32 v51, v51
    v_mul_f32 v52, {f2u(math.log(2))}, v52
    v_fma_f32 v51, v51, v52, v51
    v_cvt_pk_bf16_f32 v51, v51, v51
    v_and_b32 v54, 0xffff0000, v51
    v_mul_f32 v52, s14, v54
    v_mul_f32 v53, {f2u(1/(2*math.pi))}, v54
    """)


def cmul16(dst,x,m,t):
    return [f"v_pk_mul_f16 v{t}, v{x}, v{m} op_sel:[0,0] op_sel_hi:[0,1]",
            f"v_pk_fma_f16 v{dst}, v{x}, v{m}, v{t} op_sel:[1,1,0] op_sel_hi:[1,0,1] neg_lo:[1,0,0]"]
def wavemax(k,r,t):
    for m in ("quad_perm:[1,0,3,2]","quad_perm:[2,3,0,1]","row_half_mirror","row_mirror"):
        k(f"v_max_f32_dpp v{r}, v{r}, v{r} {m} row_mask:0xf bank_mask:0xf")
    for sw in ("16","32"):
        k(f"v_mov_b32 v{t}, v{r}\nv_permlane{sw}_swap_b32 v{r}, v{t}\nv_max_f32 v{r}, v{r}, v{t}")
def prep(k):
    l2e_hi=f2u(math.log2(math.e)); l2e_f=struct.unpack("<f",struct.pack("<I",l2e_hi))[0]; l2e_lo=f2u(math.log2(math.e)-l2e_f)
    k(f"""
    s_mov_b32 s14, {l2e_hi}
    s_mov_b32 s15, {l2e_lo}
    v_max3_f32 v54, v16, v22, v28
    v_mul_f32 v51, s14, v50
    v_max_f32 v54, 0, v54
    v_fma_f32 v52, v50, s14, -v51
    v_fma_f32 v52, v50, s15, v52
    v_exp_f32 v51, v51
    v_mul_f32 v52, {f2u(math.log(2))}, v52
    v_fma_f32 v51, v51, v52, v51
    v_cvt_pk_bf16_f32 v51, v51, v51
    v_and_b32 v51, 0xffff0000, v51
    v_mul_f32 v52, s14, v51
    v_mul_f32 v53, {f2u(1/(2*math.pi))}, v51
    """)
    wavemax(k,54,55)
    k("v_mul_f32 v54, -v52, v54\nv_mov_b32 v55, 0")

def gen_k1(diag=False, st_sc="", pf_w2=True, kgd=False, early=40, gpos=((10,40),(10,50),(5,25)), prioM=0, prioG=1, ngup=1, later=None, fused=None, fine=False, npost=1, rowwait=True, band=False, stlate=True, dec=True, mP=0, gP=0):
    F=fused is not None
    NAME=fused if F else "ssm_kernel"
    k=K(NAME,(256,1,1),(512,1,1),163840 if F else LDS1,vgpr=256,sgpr=102,hazard=True)
    if F: st_sc="sc1"
    T=Stamps(k,diag); T.kg=kgd or fine
    X="s[16:17]"; PTR=["s[18:19]","s[20:21]","s[22:23]","s[24:25]","s[26:27]","s[28:29]"]; LDT="s[30:31]"
    DSK="s[32:33]"; DBG="s[40:41]"; WS="s[42:43]"
    def kgstamp():
        if kgd: k("s_memtime s[66:67]\ns_waitcnt lgkmcnt(0)\ns_mov_b32 s100, s98\ns_mov_b32 s98, s96\ns_mov_b32 s96, s94\ns_mov_b32 s94, s76\ns_mov_b32 s76, s74\ns_mov_b32 s74, s66")
    T()
    CPF=f"""s_getpc_b64 s[70:71]
    v_min_u32 v255, L1_end-.-64, v255
    global_load_dword v255, v255, s[70:71]"""
    gl=lambda i: f"global_load_dwordx2 {vr(34+2*i,2)}, v{4+(i>>2)}, {X} offset:{1280*(i&3)}"
    k(f"""
    {"s_mov_b32 s75, 0" if SAFE else ""}
    s_cmp_lt_u32 s2, 160
    s_cbranch_scc1 L1_e1
    v_lshlrev_b32 v255, 7, v0
    {CPF}
L1_e1:
    v_lshrrev_b32 v2, 6, v0
    s_load_dwordx2 s[16:17], s[0:1], 0
    v_readfirstlane_b32 s3, v2
    s_load_dwordx4 s[40:43], s[0:1], 112
    v_and_b32 v1, 63, v0
    s_lshl3_add_u32 s7, s3, 8
    s_load_dwordx2 s[18:19], s[0:1], s7
    s_cmp_lt_u32 s2, 160
    s_cbranch_scc1 L1_e2
    s_branch L1_e3
L1_e2:
    s_and_b32 s4, s2, 7
    s_mul_i32 s4, s4, 80
    s_lshr_b32 s68, s2, 3
    s_lshl2_add_u32 s4, s68, s4
    s_mul_i32 s6, s3, 1536
    s_add_u32 m0, s6, {XB0}
    s_lshl_b32 s8, s4, 1
    s_cmp_ge_u32 s3, 6
    s_cselect_b32 s6, 2, 0x180
    s_mul_i32 s6, s6, s4
    v_lshl_add_u32 v2, v1, 4, s6
    v_lshl_add_u32 v3, v1, 2, s6
    v_and_b32 v0, 255, v0
    v_mul_u32_u24 v4, 10240, v0
    v_add_u32 v4, s8, v4
    v_add_u32 v5, 5120, v4
    s_waitcnt lgkmcnt(0)
    s_cbranch_scc1 L1_p67
    global_load_lds_dwordx4 v2, s[18:19]
    s_mov_b32 exec_hi, 0
    global_load_lds_dwordx4 v2, s[18:19] offset:1024
    s_branch L1_pj
L1_p67:
    s_mov_b64 exec, 3
    global_load_lds_dword v3, s[18:19]
L1_pj:
    s_mov_b64 exec, -1
    s_cmp_lt_u32 s3, 4
    s_cbranch_scc1 L1_M
    s_bitcmp1_b32 s68, 0
    s_cbranch_scc1 L1_gu1
    """)
    for i in range(ngup): k(gl(i))
    k("s_branch L1_A\nL1_gu1:")
    for i in range(ngup): k(gl(4+i))
    k("s_branch L1_A")
    k(f"""
L1_e3:
    s_cmp_ge_u32 s2, 256
    s_cbranch_scc1 L1_end
    s_lshl3_add_u32 s4, s2, s3
    s_cmp_lg_u32 s4, {255*8+7}
    s_cbranch_scc1 L1_nononce
    s_memrealtime s[46:47]
    v_mul_u32_u24 v8, {CSTR}, v1
    v_add_u32 v8, {WS_CNT}, v8
    v_mov_b32 v6, 0
    s_waitcnt lgkmcnt(0)
    global_store_dword v8, v6, {WS} sc1
    v_add_u32 v9, {64*CSTR}, v8
    global_store_dword v9, v6, {WS} sc1
    s_or_b32 s46, s46, 1
    v_mov_b32 v7, s46
    s_mov_b64 exec, 1
    s_waitcnt vmcnt(0)
    global_store_dword v6, v7, {DBG} sc1
    s_mov_b64 exec, -1
L1_nononce:
    {"s_waitcnt vmcnt(0)" if rowwait else ""}
    {"s_barrier" if rowwait else ""}
    s_branch L1_sp0
    """)
    COMMON=f"""
    s_and_b32 s9, s3, 3
    s_add_u32 s5, s4, s9
    s_mul_i32 s6, s9, 384
    s_add_u32 s6, s6, {XB0}
    v_lshl_add_u32 v2, v1, 1, s6
    s_lshl_b32 s7, s9, 1
    s_add_u32 s7, s7, {XB0+6*1536}
    v_mov_b32 v3, s7
    """
    k(f"""
L1_M:
    {COMMON}
    {"s_memrealtime s[72:73]" if fine else ""}
    s_mul_i32 s10, s3, {2*HB}
    s_mul_i32 s62, s3, {LB}
    s_add_u32 s11, s62, {LO0+4*LB}
    s_mul_i32 s12, s3, {US}
    s_add_u32 s12, s12, {UB}
    s_add_u32 s13, s10, {HB}
    s_add_u32 s63, s62, {LO0}
    s_mov_b32 m0, s62
    s_mov_b32 s60, {4*LB}
    v_mov_b32 v6, 0x3c00
    ds_write_addtid_b32 v6 offset:{LO0}
    s_add_u32 m0, m0, s60
    s_nop 0
    ds_write_addtid_b32 v6 offset:{LO0}
    s_mov_b32 m0, s62
    """)
    for r in range(112,128,2): k(f"v_mov_b64 {vr(r,2)}, 0")
    k(f"""
    v_lshl_add_u32 v6, v1, 3, s12
    ds_write_b64 v6, v[112:113]
    v_mov_b32 v232, {SC0+32}
    ds_write_b32 v232, v112
    v_and_b32 v7, 3, v1
    v_lshl_add_u32 v107, v7, 3, s11
    v_and_b32 v9, 31, v1
    v_lshrrev_b32 v10, 5, v1
    v_mul_u32_u24 v8, 272, v9
    v_lshl_add_u32 v8, v10, 4, v8
    v_add_u32 v108, s63, v8
    v_add_u32 v8, s10, v8
    v_lshl_add_u32 v11, v9, 4, s13
    v_lshl_add_u32 v11, v10, 3, v11
    v_sub_u32 v6, 3, v10
    v_lshlrev_b32 v6, v6, v9
    v_lshl_add_u32 v12, v10, 8, v6
    v_add3_u32 v12, v12, s13, 64
    v_add_u32 v12, 448, v12
    v_mul_u32_u24 v13, 124, v10
    v_add3_u32 v13, v13, v12, 4
    v_lshl_add_u32 v14, v9, 1, s13
    v_lshl_add_u32 v14, v10, 8, v14
    v_sub_u32 v6, 4, v10
    v_lshlrev_b32 v6, v6, v9
    v_lshlrev_b32 v15, 9, v10
    v_add3_u32 v15, v15, v6, s13
    v_lshl_add_u32 v102, v1, 2, s13
    v_lshl_add_u32 v103, v1, 1, s13
    v_lshl_add_u32 v104, v1, 4, s11
    v_and_b32 v6, 1, v1
    v_mul_u32_u24 v7, 0x0202, v6
    v_add_u32 v105, 0x03020100, v7
    v_lshlrev_b32 v7, 16, v7
    v_add_u32 v106, 0x01000100, v7
    v_mul_u32_u24 v7, 4158, v6
    v_sub_u32 v224, s11, v7
    v_and_b32 v6, 15, v1
    v_bfe_u32 v7, v1, 4, 1
    v_lshl_add_u32 v224, v6, 1, v224
    v_lshl_add_u32 v224, v10, 5, v224
    v_lshlrev_b32 v9, 4, v7
    v_sub_u32 v224, v224, v9
    v_add_u32 v224, {32-14+4158}, v224
    v_add_u32 v225, 1024, v224
    v_add_u32 v226, 2048, v224
    v_add_u32 v227, 3072, v224
    v_sub_u32 v228, v6, v10
    v_lshl_add_u32 v228, v228, 5, v9
    s_add_u32 s13, s12, {512-64}
    v_add_u32 v228, s13, v228
    v_lshrrev_b32 v9, 4, v1
    v_lshlrev_b32 v230, 5, v6
    v_lshl_add_u32 v230, v9, 3, v230
    s_lshl_b32 s13, s3, 12
    s_add_u32 s13, s13, {XB0}
    v_add_u32 v229, s13, v230
    s_lshl_b32 s13, s5, 12
    s_add_u32 s13, s13, {WS_HT}
    v_add_u32 v230, s13, v230
    s_lshl_b32 s13, s3, 3
    s_add_u32 s13, s13, {SC0}
    v_mov_b32 v231, s13
    s_mov_b32 s48, 0x01000100
    s_mov_b32 s49, 0x03020302
    s_mov_b32 s51, 0x07060100
    v_lshlrev_b32 v7, 3, v9
    v_sub_u32 v48, v7, v6
    v_add_u32 v48, 7, v48
    v_lshl_or_b32 v48, v10, 8, v48
    v_and_b32 v6, 1, v48
    v_lshlrev_b32 v6, 4, v6
    v_lshrrev_b32 v48, 1, v48
    v_cmp_eq_u32 s[52:53], 0, v48
    v_cmp_eq_u32 s[54:55], 1, v48
    v_cmp_eq_u32 s[56:57], 2, v48
    v_cmp_eq_u32 s[58:59], 3, v48
    {"s_memrealtime s[100:101]" if fine else ""}
    v_mov_b32 v240, v6
    """)
    RB=32+2208
    if dec:
        k(f"""
        v_and_b32 v6, 15, v1
        v_lshlrev_b32 v7, 3, v9
        v_sub_u32 v7, v7, v6
        """)
        for i in range(8):
            k(f"v_add_u32 v6, {3-i}, v7\nv_cmp_gt_u32 vcc, 9, v6\nv_add_u32 v6, -1, v6\nv_cmp_gt_u32 s[64:65], 7, v6")
            c="0x3f80" if i%2==0 else "0x3f800000"
            k(f"v_mov_b32 v6, {c}\nv_cndmask_b32 v250, 0, v6, vcc\nv_cndmask_b32 v251, 0, v6, s[64:65]")
            if i%2==0: k(f"v_mov_b32 v{242+i//2}, v250\nv_mov_b32 v{246+i//2}, v251")
            else: k(f"v_or_b32 v{242+i//2}, v{242+i//2}, v250\nv_or_b32 v{246+i//2}, v{246+i//2}, v251")
        k(f"""
        v_and_b32 v6, 31, v1
        v_lshl_add_u32 v6, v10, 7, v6
        v_and_b32 v7, 1, v6
        v_add_u32 v6, v6, v7
        v_mul_u32_u24 v7, 320, v7
        v_sub_u32 v7, v7, v6
        s_add_u32 s13, s11, {RB+128+128-96}
        v_add_u32 v105, s13, v7
        v_and_b32 v6, 15, v1
        v_bfe_u32 v7, v1, 4, 1
        v_mul_u32_u24 v7, 320, v7
        v_lshl_add_u32 v7, v6, 2, v7
        v_mul_u32_u24 v6, 4158, v10
        s_add_u32 s13, s11, {RB+128+128}
        v_add3_u32 v106, v7, v6, s13
        v_and_b32 v6, 15, v1
        v_lshlrev_b32 v7, 2, v9
        v_sub_u32 v7, v7, v6
        v_lshlrev_b32 v7, 1, v7
        v_and_b32 v6, 1, v1
        v_mul_u32_u24 v6, 4158, v6
        v_sub_u32 v7, v7, v6
        s_add_u32 s13, s11, {RB+128+2*(63-48)+4158}
        v_add_u32 v103, s13, v7
        v_and_b32 v6, 15, v1
        v_lshlrev_b32 v6, 5, v6
        v_lshl_add_u32 v6, v9, 4, v6
        s_add_u32 s13, s12, {512-48}
        v_add_u32 v233, s13, v6
        """)
    k(f"""
    s_waitcnt vmcnt(0)
    s_barrier
    {"s_memrealtime s[98:99]" if fine else ""}
    ds_read_u16_d16_hi v50, v3
    """)
    for j in range(2):
        for c in range(3): k(f"ds_read_u16_d16_hi v{16+6*c+j}, v2 offset:{128*c+1536*j}")
    k("ds_read_u16 v241, v3 offset:1536\ns_waitcnt lgkmcnt(0)")
    prep(k)
    k(f"s_mov_b32 s14, 0\ns_mov_b32 s15, {HB}")
    if prioM: k(f"s_setprio {prioM}")
    T(skip=F)
    if kgd: k("s_memtime s[72:73]")
    k("L1_kgM:")
    mf=[f"v_mfma_f32_32x32x16_f16 v[112:127], {vr(128+8*i,4)}, {vr(132+8*i,4)}, v[112:127]" for i in range(8)]
    L=lambda j: 64+j
    ops=["v_pk_fma_f32 v[56:57], v[16:17], v[52:53], v[54:55]"]+cexp(58,8.,60,61)+["v_mov_b64 v[16:17], v[22:23]","v_mov_b64 v[22:23], v[28:29]"]
    z=58
    for b in (1,2,4,8,16):
        ops+=[f"v_cvt_pk_f16_f32 v{L(b)}, v{z}, v{z+1}", f"ds_write_addtid_b32 v{L(b)} offset:{LO0+272*b}"]
        if b<16:
            z2=36+4*(b.bit_length()-1); ops+=cmul(z2,z,z,z2+2); z=z2
    ti=0
    for j in range(1,32):
        if j&(j-1):
            ops+=cmul16(L(j),L(j&(j-1)),L(j&-j),96+(ti%6))+[f"ds_write_addtid_b32 v{L(j)} offset:{LO0+272*j}"]; ti+=1
    ops=sched(ops)
    cut=len(ops)-48
    for x in ops[:cut]: k(x)
    nwr=sum("ds_write" in x for x in ops[:cut])
    k(f"s_cmp_eq_u32 s14, 0\ns_cbranch_scc1 L1_nomf\ns_waitcnt lgkmcnt({min(15,nwr)})")
    tl=ops[cut:]
    for i,x in enumerate(tl):
        if i%6==0: k(mf[i//6])
        k(x)
    k("s_branch L1_mfdone\nL1_nomf:")
    for x in tl: k(x)
    k("L1_mfdone:\ns_waitcnt lgkmcnt(0)")
    kgstamp()
    k("s_barrier")
    kgstamp()
    for i in range(8):
        k(f"ds_read_b128 {vr(128+8*i,4)}, v8 offset:{32*i}\nds_read_b128 {vr(132+8*i,4)}, v108 offset:{32*i}")
    k(f"""
    s_add_u32 s14, s14, 1
    s_add_u32 m0, m0, s60
    v_add_u32 v8, s15, v8
    v_add_u32 v108, s60, v108
    s_sub_u32 s15, 0, s15
    s_sub_u32 s60, 0, s60
    s_cmp_lt_u32 s14, 3
    s_cbranch_scc1 L1_kgM
    """)
    T()
    NA=4 if dec else 8
    AB=[64,80] if dec else [64,128]; BB=[96,160]; ACC=192
    k(f"s_setprio {mP}")
    k("ds_read_b32 v110, v231")
    k(f"""
    v_mov_b64 v[100:101], 0
    ds_write_b64 v107, v[100:101]
    ds_write_b64 v107, v[100:101] offset:4160
    v_lshlrev_b32 v49, v240, v241
    """)
    for j in range(4): k(f"v_cndmask_b32 v{236+j}, 0, v49, s[{52+2*j}:{53+2*j}]")
    for i,x in enumerate(mf):
        k(f"s_waitcnt lgkmcnt({min(15,3+14-2*i)})")
        k(x)
    k("s_waitcnt lgkmcnt(2)")
    k("v_cmp_neq_f32 vcc, 0, v54")
    for i in range(6): k(f"v_pk_mul_f32 {vr(112+2*i,2)}, {vr(112+2*i,2)}, v[110:111] op_sel:[0,0] op_sel_hi:[1,0]")
    k("s_cbranch_vccnz L1_grow\nL1_grown:")
    for i in range(6): k(f"v_cvt_pk_bf16_f32 v{128+i}, v{112+2*i}, v{113+2*i}")
    k(f"""
    ds_write_b64 v11, v[128:129]
    ds_write_b32 v12, v130
    ds_write_b32 v13, v131
    """)
    if not dec:
        k(f"""
    ds_write_b16 v14, v132 offset:1024
    ds_write_b16_d16_hi v14, v132 offset:1088
    ds_write_b16 v14, v133 offset:1152
    ds_write_b16_d16_hi v14, v133 offset:1216
    ds_read_b64 v[136:137], v15
    ds_read_b64 v[138:139], v15 offset:8
    ds_read_b32 v140, v15 offset:16
    ds_read2_b32 v[142:143], v102 offset0:192 offset1:193
    ds_read_u16 v144, v103 offset:1024
    ds_read_u16 v145, v103 offset:1152
    ds_read_u16_d16_hi v146, v103 offset:1026
    ds_read_u16_d16_hi v147, v103 offset:1154
    s_waitcnt lgkmcnt(5)
    v_mov_b64 v[148:149], v[136:137]
    v_mov_b64 v[150:151], v[138:139]
    v_alignbit_b32 v152, v137, v136, 16
    v_alignbit_b32 v153, v138, v137, 16
    v_alignbit_b32 v154, v139, v138, 16
    v_alignbit_b32 v155, v140, v139, 16
    s_mov_b32 exec_lo, 0
    v_perm_b32 v148, v136, v136, s48
    v_mov_b32 v149, v152
    v_perm_b32 v150, v137, v137, s48
    v_mov_b32 v151, v153
    v_mov_b32 v152, v136
    v_mov_b32 v153, v150
    v_mov_b32 v154, v137
    v_perm_b32 v155, v138, v138, s48
    s_mov_b32 exec_lo, -1
    ds_write_b128 v104, v[148:151] offset:32
    ds_write_b128 v104, v[152:155] offset:{32+4160}
    ds_write_b16 v104, v136 offset:{32+4160-2}
    s_waitcnt lgkmcnt(7)
    v_perm_b32 v156, v142, v142, s48
    v_mov_b32 v157, v142
    v_perm_b32 v158, v142, v142, s49
    v_perm_b32 v159, v143, v143, s48
    v_mov_b32 v160, v156
    v_mov_b32 v161, v158
    v_alignbit_b32 v162, v143, v142, 16
    v_mov_b32 v163, v159
    ds_write_b128 v104, v[156:159] offset:{32+1024}
    ds_write_b128 v104, v[160:163] offset:{32+4160+1024}
    s_waitcnt lgkmcnt(5)
    v_perm_b32 v144, v146, v144, s51
    v_perm_b32 v145, v147, v145, s51
    """)
    for q,src,b in (() if dec else ((2,144,164),(3,145,172))):
        k(f"""
        v_perm_b32 v{b}, v{src}, v{src}, s48
        v_perm_b32 v{b+3}, v{src}, v{src}, s49
        v_perm_b32 v{b+2}, v{src}, v{src}, v105
        v_mov_b32 v{b+1}, v{b}
        v_mov_b32 v{b+4}, v{b}
        v_perm_b32 v{b+5}, v{src}, v{src}, v106
        v_mov_b32 v{b+6}, v{b+3}
        v_mov_b32 v{b+7}, v{b+3}
        ds_write_b128 v104, {vr(b,4)} offset:{32+1024*q}
        ds_write_b128 v104, {vr(b+4,4)} offset:{32+4160+1024*q}
        """)
    if dec:
        k(f"""
    ds_write_b16 v14, v132 offset:1024
    ds_read_b64 v[136:137], v15
    ds_read_b64 v[138:139], v15 offset:8
    ds_read_b32 v140, v15 offset:16
    ds_read2_b32 v[142:143], v102 offset0:192 offset1:193
    ds_write_b16 v105, v132 offset:96
    ds_write_b16_d16_hi v105, v132 offset:64
    ds_write_b16 v105, v133 offset:32
    ds_write_b16_d16_hi v105, v133
    ds_write_b16 v105, v132 offset:{96+4158}
    ds_write_b16_d16_hi v105, v132 offset:{64+4158}
    ds_write_b16 v105, v133 offset:{32+4158}
    ds_write_b16_d16_hi v105, v133 offset:4158
    s_waitcnt lgkmcnt(9)
    v_mov_b64 v[148:149], v[136:137]
    v_mov_b64 v[150:151], v[138:139]
    v_alignbit_b32 v152, v137, v136, 16
    v_alignbit_b32 v153, v138, v137, 16
    v_alignbit_b32 v154, v139, v138, 16
    v_alignbit_b32 v155, v140, v139, 16
    s_mov_b32 exec_lo, 0
    v_perm_b32 v148, v136, v136, s48
    v_mov_b32 v149, v152
    v_perm_b32 v150, v137, v137, s48
    v_mov_b32 v151, v153
    v_mov_b32 v152, v136
    v_mov_b32 v153, v150
    v_mov_b32 v154, v137
    v_perm_b32 v155, v138, v138, s48
    s_mov_b32 exec_lo, -1
    ds_write_b16 v106, v100
    ds_write_b16 v106, v100 offset:2
    ds_write_b128 v104, v[148:151] offset:32
    ds_write_b128 v104, v[152:155] offset:{32+4160}
    ds_write_b16 v104, v136 offset:{32+4160-2}
    s_waitcnt lgkmcnt(13)
    v_perm_b32 v156, v142, v142, s48
    v_mov_b32 v157, v142
    v_perm_b32 v158, v142, v142, s49
    v_perm_b32 v159, v143, v143, s48
    v_mov_b32 v160, v156
    v_mov_b32 v161, v158
    v_alignbit_b32 v162, v143, v142, 16
    v_mov_b32 v163, v159
    v_readlane_b32 s13, v159, 63
    v_mov_b64 v[164:165], 0
    v_mov_b64 v[166:167], 0
    v_mov_b64 v[170:171], 0
    ds_write_b128 v104, v[156:159] offset:{32+1024}
    ds_write_b128 v104, v[160:163] offset:{32+4160+1024}
    s_and_b32 s14, s13, 0xffff
    v_writelane_b32 v164, s13, 0
    v_writelane_b32 v165, s13, 0
    v_writelane_b32 v166, s14, 0
    s_mov_b64 exec, 15
    v_mov_b64 v[168:169], v[164:165]
    ds_write_b128 v104, v[164:167] offset:{32+2048}
    ds_write_b128 v104, v[168:171] offset:{32+4160+2048}
    s_mov_b64 exec, -1
    """)
    def loads(buf,second,which="AB"):
        o=[]
        for a in range(8):
            off=(a&1)*128+(16 if second else 0)
            if "A" in which and a<NA:
                o.append(f"ds_read2_b32 {vr(AB[buf]+4*a,2)}, v{224+(a>>1)} offset0:{off} offset1:{off+1}")
                o.append(f"ds_read2_b32 {vr(AB[buf]+4*a+2,2)}, v{224+(a>>1)} offset0:{off+2} offset1:{off+3}")
            if "B" in which:
                o.append(f"ds_read_b128 {vr(BB[buf]+4*a,4)}, v228 offset:{512*a+(0 if second else 64)}")
        return o
    def mfs(buf):
        return [f"v_mfma_f32_16x16x32_bf16 {vr(ACC+4*c,4)}, {vr(AB[buf]+4*a,4)}, {vr(BB[buf]+4*(c-a),4)}, {vr(ACC+4*c,4)}" for a in range(NA) for c in range(a,8)]
    for x in loads(0,False,"A"): k(x)
    if dec:
        k("ds_read2_b32 v[80:81], v226 offset0:0 offset1:1\nds_read2_b32 v[82:83], v226 offset0:2 offset1:3")
        for par in range(2):
            for f in range(5): k(f"ds_read2_b32 {vr(160+10*par+2*f,2)}, v103 offset0:{80*par+8*f} offset1:{80*par+8*f+1}")
    T(skip=F)
    k("s_barrier")
    T()
    for c,x in enumerate(loads(0,False,"B")): k(f"ds_read_b64 {vr(16+2*c,2)}, v229 offset:{512*c}"); k(x)
    if dec:
        for par in range(2):
            for th in range(4): k(f"ds_read_b128 {vr(128+16*par+4*th,4)}, v233 offset:{512*th+16*par}")
    k("s_mov_b32 s14, 0")
    unp=lambda c: f"v_lshlrev_b32 v{ACC+4*c}, 16, v{16+2*c}\nv_and_b32 v{ACC+4*c+1}, 0xffff0000, v{16+2*c}\nv_lshlrev_b32 v{ACC+4*c+2}, 16, v{17+2*c}\nv_and_b32 v{ACC+4*c+3}, 0xffff0000, v{17+2*c}"
    xo=8 if dec else 0
    k("s_waitcnt lgkmcnt(15)"); k(unp(0))
    for c in range(8): k((f"s_waitcnt lgkmcnt({min(15,13-2*c+xo)})\n{unp(c+1)}\n" if c<7 else f"s_waitcnt lgkmcnt(0)\n")+f"v_mfma_f32_16x16x32_bf16 {vr(ACC+4*c,4)}, v[236:239], {vr(BB[0]+4*c,4)}, {vr(ACC+4*c,4)}")
    if dec:
        for par in range(2):
            for th in range(4): k(f"v_mfma_f32_16x16x32_bf16 {vr(32+16*par+4*th,4)}, {vr(128+16*par+4*th,4)}, {vr(242+4*par,4)}, 0")
        sp=[f"v_mfma_f32_16x16x32_bf16 {vr(ACC+4*c,4)}, v[80:83], {vr(BB[0]+4*(c-4),4)}, {vr(ACC+4*c,4)}" for c in range(4,8)]
        cv=[f"v_cvt_pk_bf16_f32 v{128+8*par+2*th+e}, v{32+16*par+4*th+2*e}, v{33+16*par+4*th+2*e}" for par in range(2) for th in range(4) for e in range(2)]
        for n,x in enumerate(sp):
            k(x)
            for y in cv[2*n:2*n+2]: k(y)
        dm=[f"v_mfma_f32_16x16x32_bf16 {vr(ACC+4*c,4)}, {vr(128+8*par+4*k2,4)}, {vr(160+10*par+2*(3-(c-4-2*k2)),4)}, {vr(ACC+4*c,4)}" for par in range(2) for k2 in range(2) for c in range(4+2*k2,8)]
        for n,x in enumerate(dm):
            k(x)
            if n<4:
                for y in cv[8+2*n:10+2*n]: k(y)
    k("L1_cv:\ns_waitcnt lgkmcnt(0)")
    def inter(m,l,extra=[]):
        o=[];li=0
        l=l+extra
        for i,x in enumerate(m):
            o.append(x)
            if li<len(l): o.append(l[li]); li+=1
        return o
    for x in inter(mfs(0),loads(1,True),[f"v_add_u32 v{224+i}, 128, v{224+i}" for i in range(NA//2)]+["v_subrev_u32 v228, 128, v228"]): k(x)
    k("s_waitcnt lgkmcnt(0)")
    for x in inter(mfs(1),loads(0,False),["s_add_u32 s14, s14, 1","s_cmp_lt_u32 s14, 4"]): k(x)
    k("s_cbranch_scc1 L1_cv")
    T()
    for c in range(8):
        k(f"""
        v_cvt_pk_bf16_f32 v{64+2*c}, v{ACC+4*c}, v{ACC+4*c+1}
        v_cvt_pk_bf16_f32 v{65+2*c}, v{ACC+4*c+2}, v{ACC+4*c+3}
        global_store_dwordx2 v230, {vr(64+2*c,2)}, {WS} offset:{512*c} {st_sc}
        """)
    if F: k("s_branch LF_M")
    else:
        if diag:
            k("s_waitcnt vmcnt(0)"); T(); T.flush(WS,0)
        k("s_endpgm")
    k.T=T
    TA=Stamps(k,diag and not F); TA.n=1; TA.kg=kgd or fine
    k(f"""
L1_A:
    {"s_memrealtime s[72:73]" if fine else ""}
    {COMMON}
    s_mul_i32 s10, s9, {2*HB}
    v_lshlrev_b32 v231, 6, v0
    v_lshlrev_b32 v232, 4, v0
    v_add_u32 v233, {XB0}, v232
    v_add_u32 v232, {UB+512}, v232
    v_mov_b32 v234, 0
    s_lshl_b32 s13, s9, 3
    s_add_u32 s13, s13, {SC0}
    v_mov_b32 v235, s13
    s_mov_b32 m0, s10
    s_mov_b32 s60, {HB}
    s_mov_b32 s52, 0x05040100
    s_mov_b32 s53, 0x07060302
    """)
    TA()
    k(f"s_waitcnt vmcnt({ngup})\ns_barrier")
    if fine: k("s_memrealtime s[100:101]")
    k("ds_read_u16_d16_hi v50, v3")
    for j in range(6):
        for c in range(3): k(f"ds_read_u16_d16_hi v{16+6*c+j}, v2 offset:{128*c+1536*j}")
    if npost:
        k("s_bitcmp1_b32 s68, 0\ns_cbranch_scc1 L1_gp1")
        for i in range(npost): k(gl(ngup+i))
        k("s_branch L1_gp2\nL1_gp1:")
        for i in range(npost): k(gl((4+ngup+i)&7))
        k("L1_gp2:")
    k("s_waitcnt lgkmcnt(12)")
    prep(k)
    if fine: k("s_memrealtime s[98:99]")
    def scale_code():
        k(f"s_waitcnt lgkmcnt(0)")
        for x in merge(*[cmul(18+6*c,20+6*c,18+6*c,100+2*c) for c in range(3)]): k(x)
        k("""
    v_max3_f32 v100, abs(v18), abs(v19), abs(v24)
    v_max3_f32 v101, abs(v25), abs(v30), abs(v31)
    v_max_f32 v100, v100, v101
    """)
        wavemax(k,100,101)
        k("""
    v_frexp_exp_i32_f32 v100, v100
    v_sub_u32 v101, 14, v100
    v_subrev_u32 v100, 14, v100
    v_ldexp_f32 v100, v51, v100
    ds_write_b32 v235, v100
    """)
        for c in range(3): k(f"v_ldexp_f32 v{18+6*c}, v{18+6*c}, v101\nv_ldexp_f32 v{19+6*c}, v{19+6*c}, v101\nv_cvt_pk_f16_f32 v{20+6*c}, v{18+6*c}, -v{19+6*c}")
    if prioG: k(f"s_setprio {prioG}")
    TA()
    if kgd: k("s_memtime s[72:73]")
    def stats_list():
        return [f"global_load_dwordx4 {vr(104+4*j,4)}, v231, {WS} offset:{16*j} sc1" for j in range(4)]+[f"global_load_dword v120, v234, {DBG} sc1"]
    def stats_loads():
        for x in stats_list(): k(x)
    ngat=ngup+npost
    XB=192
    def xwrite():
        o=[f"s_waitcnt vmcnt(5)"]
        for c in range(4):
            for w in range(4): o.append(f"v_perm_b32 v{160+4*c+w}, v{36+4*w+(c>>1)}, v{34+4*w+(c>>1)}, s{52+(c&1)}")
            o.append(f"ds_write_b128 v233, {vr(160+4*c,4)} offset:{4096*c}")
        return o
    for c in range(3):
        H0=20+6*c
        ops=[f"v_pk_fma_f32 v[56:57], {vr(16+6*c,2)}, v[52:53], v[54:55]"]+cexp(58,1,60,61)+cexp(62,256.,64,65)
        E={1:90,2:91,4:92}; Q={1:93,2:94,4:95}
        for z,D,zt in ((58,E,66),(62,Q,74)):
            for b in (1,2,4):
                ops.append(f"v_cvt_pk_f16_f32 v{D[b]}, v{z}, -v{z+1}")
                if b<4: ops+=cmul(zt,z,z,zt+2); z=zt; zt+=4
        if c==0:
            for x in sched(ops): k(x)
            scale_code(); ops=[]
        ops.append(f"ds_write_addtid_b32 v{H0} offset:0")
        R={0:H0}; rows={0:0,1:1,2:2,3:3,4:4,5:5,6:6,7:7,256:8,258:9,260:10,262:11,512:12,516:13,768:14,772:15,1024:16,1280:17,1536:18,1792:19,2048:20}
        ti=0
        for e,a,m in ((1,0,E[1]),(2,0,E[2]),(4,0,E[4]),(256,0,Q[1]),(512,0,Q[2]),(1024,0,Q[4]),(3,2,E[1]),(5,4,E[1]),(6,4,E[2]),(768,512,Q[1]),(1280,1024,Q[1]),(1536,1024,Q[2]),(2048,1024,Q[4]),(258,2,Q[1]),(260,4,Q[1]),(516,4,Q[2]),(7,6,E[1]),(1792,1536,Q[1]),(262,6,Q[1]),(772,516,Q[1])):
            R[e]=128+rows[e]
            ops+=cmul16(R[e],R[a],m,96+(ti%6))+[f"ds_write_addtid_b32 v{R[e]} offset:{272*rows[e]}"]; ti+=1
        ops=sched(ops)
        for i,x in enumerate(ops):
            if i in gpos[c]:
                L=k.label("L1_g")
                k(f"s_bitcmp1_b32 s68, 0\ns_cbranch_scc1 {L}\n{gl(ngat)}\ns_branch {L}b\n{L}:\n{gl((ngat+4)&7)}\n{L}b:"); ngat+=1
            k(x)
        if c<2: k(f"s_add_u32 m0, m0, s60\ns_sub_u32 s60, 0, s60")
        if c==2 and not stlate: stats_loads()
        k("s_waitcnt lgkmcnt(0)")
        kgstamp()
        k("s_barrier")
        kgstamp()
    assert ngat==8
    k(f"s_setprio {gP}")
    TA()
    if stlate: stats_loads()
    for x in xwrite(): k(x)
    for c in range(4):
        for i in range(8):
            k(f"v_lshlrev_b32 v{XB+8*c+i}, 16, v{34+2*i+(c>>1)}" if c&1==0 else f"v_and_b32 v{XB+8*c+i}, 0xffff0000, v{34+2*i+(c>>1)}")
    k(f"""
L1_poll:
    s_waitcnt vmcnt(0)
    v_cmp_ne_u32 vcc, v107, v120
    v_cmp_ne_u32 s[60:61], v111, v120
    v_cmp_ne_u32 s[62:63], v115, v120
    v_cmp_ne_u32 s[64:65], v119, v120
    v_cmp_eq_u32 s[66:67], 0, v120
    s_or_b64 vcc, vcc, s[60:61]
    s_or_b64 s[62:63], s[62:63], s[64:65]
    s_or_b64 vcc, vcc, s[66:67]
    s_or_b64 vcc, vcc, s[62:63]
    s_cbranch_vccz L1_go
    s_sleep 1
    {bound("L1_go")}
    """)
    stats_loads()
    k("s_branch L1_poll\nL1_go:")
    TA()
    for j in range(4):
        k(f"""
        v_lshlrev_b32 v{82+2*j}, 16, v{106+4*j}
        v_and_b32 v{83+2*j}, 0xffff0000, v{106+4*j}
        v_pk_mul_f32 {vr(82+2*j,2)}, {vr(82+2*j,2)}, {vr(104+4*j,2)} neg_lo:[1,0] neg_hi:[1,0]
        """)
    UBR=128
    for c in range(4):
        for j in range(4):
            k(f"v_pk_fma_f32 {vr(UBR+8*c+2*j,2)}, {vr(XB+8*c+2*j,2)}, {vr(104+4*j,2)}, {vr(82+2*j,2)}")
        for w in range(4):
            k(f"v_cvt_pk_bf16_f32 v{160+4*c+w}, v{UBR+8*c+7-2*w}, v{UBR+8*c+6-2*w}")
        k(f"ds_write_b128 v232, {vr(160+4*c,4)} offset:{US*c}")
    k("s_waitcnt lgkmcnt(0)\ns_barrier")
    if F: k("s_branch LF_G")
    else:
        if diag:
            TA(); TA.flush(WS,0)
        k("s_endpgm")
    k("L1_grow:\nv_and_b32 v128, 31, v1\nv_lshlrev_b32 v128, 3, v128\nv_cmp_gt_u32 vcc, 32, v1")
    hi=[0,1,2,3,4,5,6,7,256,258,260,262,512,516,768,772,1024,1280,1536,1792,2048,2048,2048,2048]
    for r in range(12):
        q,i=divmod(r,4)
        k(f"""
        v_mov_b32 v129, {hi[8*q+4+i]}
        v_mov_b32 v130, {hi[8*q+i]}
        v_cndmask_b32 v129, v129, v130, vcc
        v_add_u32 v129, v129, v128
        v_cvt_f32_u32 v129, v129
        v_mul_f32 v129, -v54, v129
        v_exp_f32 v129, v129
        v_mul_f32 v{112+r}, v{112+r}, v129
        """)
    k("s_branch L1_grown")
    T2=Stamps(k,diag and not F); T2.n=1
    k(f"""
L1_sp0:
    s_sub_u32 s4, s2, 160
    s_mul_i32 s10, s4, 7
    s_add_u32 s10, s10, s3
    s_mul_i32 s11, s10, 5120
    s_mul_i32 s12, s3, 5120
    s_add_u32 m0, s12, 4096
    v_lshl_add_u32 v4, v1, 4, s11
    s_cmp_eq_u32 s3, 7
    s_cselect_b32 s10, 512, s10
    s_cmp_ge_u32 s10, 512
    s_waitcnt lgkmcnt(0)
    s_cbranch_scc1 L1_spare
    global_load_lds_dwordx4 v4, {X}
    global_load_lds_dwordx4 v4, {X} offset:1024
    global_load_lds_dwordx4 v4, {X} offset:2048
    global_load_lds_dwordx4 v4, {X} offset:3072
    s_add_u32 m0, m0, 4096
    v_add_u32 v4, 4096, v4
    global_load_lds_dwordx4 v4, {X}
L1_spare:
    """)
    if band:
        k(f"""
        s_cmp_ge_u32 s3, 7
        s_cbranch_scc1 L1_noband
        s_lshr_b32 s13, s4, 3
        s_mul_i32 s13, s13, 171
        v_lshrrev_b32 v10, 1, v0
        v_add_u32 v10, s13, v10
        v_min_u32 v10, 2047, v10
        v_mul_u32_u24 v10, 1280, v10
        v_and_b32 v11, 1, v0
        v_mul_u32_u24 v11, 156, v11
        s_and_b32 s13, s2, 7
        s_mul_i32 s13, s13, 160
        v_add3_u32 v10, v10, v11, s13
        global_load_dword v200, v10, {X}
L1_noband:
        """)
    k(f"""
    v_mov_b32 v6, 0
    s_mov_b32 s52, 0x3f803f80
    s_cmp_eq_u32 s3, 7
    s_cbranch_scc1 L1_pollw
    s_cmp_ge_u32 s10, 512
    s_cbranch_scc1 L1_bar
    v_lshrrev_b32 v4, 5, v1
    v_mul_u32_u24 v4, 1280, v4
    v_and_b32 v5, 31, v1
    v_lshl_add_u32 v4, v5, 3, v4
    v_add_u32 v4, s12, v4
    """)
    for r in range(160,164): k(f"v_mov_b32 v{r}, 0")
    k(f"""
    v_and_b32 v8, 1, v1
    v_cmp_eq_u32 vcc, 1, v8
    v_lshlrev_b32 v9, 4, v1
    s_lshl_b32 s11, s3, 5
    v_add_u32 v9, s11, v9
    s_waitcnt vmcnt({1 if band else 0})
    """)
    T2()
    for i in range(5):
        for p in range(2): k(f"ds_read_b64 {vr(16+10*p+2*i,2)}, v4 offset:{4096+2560*p+256*i}")
    for i in range(10):
        if i%2==0: k(f"s_waitcnt lgkmcnt({8-i})")
        for p in range(2):
            k(f"v_dot2_f32_bf16 v{160+p}, v{16+10*p+i}, s52, v{160+p}\nv_dot2_f32_bf16 v{162+p}, v{16+10*p+i}, v{16+10*p+i}, v{162+p}")
    reduce32(k,list(range(160,164)),list(range(168,172)))
    k(f"""
    v_cndmask_b32 v160, v160, v161, vcc
    v_cndmask_b32 v164, v162, v163, vcc
    """)
    ln_finalize(k,160,164,168,170,171)
    k(f"""
    v_rcp_f32 v172, v171
    v_mov_b32 v176, v170
    v_mov_b32 v173, v172
    v_permlane32_swap_b32 v170, v176
    v_permlane32_swap_b32 v172, v173
    v_lshrrev_b32 v170, 16, v170
    v_or_b32 v174, v170, v176
    s_mov_b64 exec, 3
    ds_write_b128 v9, v[172:175]
    s_mov_b64 exec, -1
    s_branch L1_bar
L1_pollw:
    global_load_dword v8, v6, {WS}
    s_mul_i32 s11, s4, 14
    v_add_u32 v9, s11, v1
    v_cmp_gt_u32 s[60:61], 14, v1
    v_cmp_gt_u32 vcc, 0x400, v9
    s_and_b64 s[60:61], s[60:61], vcc
    v_lshlrev_b32 v9, 4, v9
    v_lshlrev_b32 v10, 4, v1
L1_pollw2:
    global_load_dword v7, v6, {DBG} sc1
    s_waitcnt vmcnt(0)
    v_cmp_eq_u32 vcc, 0, v7
    {bound("L1_pollw3")}
    s_cbranch_vccnz L1_pollw2
L1_pollw3:
    s_barrier
    ds_read_b128 v[172:175], v10
    s_mov_b64 exec, s[60:61]
    s_waitcnt lgkmcnt(0)
    s_cbranch_execz L1_pub
    v_mov_b32 v175, v7
    global_store_dwordx4 v9, v[172:175], {WS} sc1
L1_pub:
    s_mov_b64 exec, -1
    s_branch L1_cs
L1_bar:
    s_waitcnt lgkmcnt(0)
    s_barrier
L1_cs0:
    s_branch L1_cs
    """)
    k(f"""
L1_cs:
    """)
    T2()
    SIG=f"v_mov_b32 v10, {WS_CNT+49*CSTR}\nv_mov_b32 v11, 1\ns_mov_b64 exec, 1\ns_waitcnt vmcnt(0)\nglobal_atomic_add v10, v11, {WS} sc1\ns_mov_b64 exec, -1" if F else ""
    k(f"""
    s_load_dwordx4 s[36:39], s[0:1], 80
    s_load_dwordx2 s[56:57], s[0:1], 96
    s_mov_b32 s58, {640*3072}
    s_mov_b32 s59, 0x20000
    v_and_b32 v208, 15, v1
    s_cmp_lt_u32 s3, 4
    s_waitcnt lgkmcnt(0)
    s_cbranch_scc1 L1_w2
    s_and_b32 s5, s2, 7
    s_lshr_b32 s6, s4, 3
    s_cmp_ge_u32 s6, 6
    s_cselect_b32 s7, 1, 0
    s_cselect_b32 s56, s38, s36
    s_cselect_b32 s57, s39, s37
    s_mul_i32 s8, s7, 6
    s_sub_u32 s8, s6, s8
    s_and_b32 s9, s5, 3
    s_mul_i32 s9, s9, 384
    s_lshl_b32 s8, s8, 6
    s_add_u32 s8, s8, s9
    v_bfe_u32 v2, v0, 3, 5
    v_mul_u32_u24 v2, 3072, v2
    v_and_b32 v3, 7, v0
    v_lshl_add_u32 v2, v3, 4, v2
    s_lshl_b32 s9, s8, 1
    v_add_u32 v2, s9, v2
    s_mov_b32 s53, 0x00003f80
    s_mov_b32 s54, 0x3f800000
    s_mov_b32 s12, 0
    """)
    for i in range(20): k(f"buffer_load_dwordx4 {vr(64+4*i,4)}, v2, s[56:59], s12 offen\ns_add_u32 s12, s12, {32*3072}")
    if later:
        k(f"""
        s_getpc_b64 s[70:71]
L1_pc2:
        v_lshlrev_b32 v10, 6, v0
        v_add_u32 v10, L1_end-L1_pc2-16384+64, v10
        v_min_u32 v10, {later}-L1_pc2-64, v10
        global_load_dword v254, v10, s[70:71]
        """)
    for r in range(16,24,2): k(f"v_mov_b64 {vr(r,2)}, 0")
    k("s_mov_b32 s12, 0\nL1_csl:\ns_waitcnt vmcnt(0)")
    for i in range(20):
        for j in range(4):
            k(f"v_dot2_f32_bf16 v{16+2*j}, v{64+4*i+j}, s53, v{16+2*j}\nv_dot2_f32_bf16 v{17+2*j}, v{64+4*i+j}, s54, v{17+2*j}")
    R=list(range(16,24)); Tm=list(range(24,32))
    for r in R: k(f"v_add_f32_dpp v{r}, v{r}, v{r} row_ror:8 row_mask:0xf bank_mask:0xf")
    for sw in ("16","32"):
        for r,t in zip(R,Tm): k(f"v_mov_b32 v{t}, v{r}")
        for r,t in zip(R,Tm): k(f"v_permlane{sw}_swap_b32 v{r}, v{t}")
        for r,t in zip(R,Tm): k(f"v_add_f32 v{r}, v{r}, v{t}")
    k(f"""
    s_lshl_b32 s12, s3, 8
    s_sub_u32 s12, s12, 768
    v_lshl_add_u32 v10, v3, 5, s12
    ds_write_b128 v10, v[16:19]
    ds_write_b128 v10, v[20:23] offset:16
    s_waitcnt lgkmcnt(0)
    s_barrier
    s_cmp_lg_u32 s3, 4
    s_cbranch_scc1 L1_sdone
    s_cmp_ge_u32 s5, 4
    s_cbranch_scc1 L1_sdone
    v_lshlrev_b32 v10, 2, v1
    """)
    for i in range(4): k(f"ds_read_b32 v{16+i}, v10 offset:{256+256*i}")
    k(f"""
    s_mul_i32 s12, s7, 1536
    s_add_u32 s12, s12, s8
    s_lshl_b32 s12, s12, 2
    s_add_u32 s12, s12, {WS_COLSUM}
    v_add_u32 v10, s12, v10
    s_waitcnt lgkmcnt(0)
    v_add_f32 v16, v16, v17
    v_add_f32 v18, v18, v19
    v_add_f32 v16, v16, v18
    global_store_dword v10, v16, {WS} sc1
    {SIG}
    s_branch L1_sdone
L1_w2:
    """)
    k(f"""
    v_lshrrev_b32 v10, 4, v1
    v_bfe_u32 v11, v1, 3, 1
    v_bfe_u32 v12, v1, 1, 2
    v_lshl_add_u32 v11, v11, 3, v12
    v_and_b32 v12, 1, v1
    v_lshlrev_b32 v12, 4, v12
    s_and_b32 s12, s4, 1
    s_lshl_b32 s12, s12, 2
    s_add_u32 s12, s12, s3
    s_lshr_b32 s13, s4, 1
    s_mul_i32 s14, s12, 160
    s_mul_i32 s15, s13, {32*1280}
    s_add_u32 s14, s14, s15
    s_mul_i32 s15, s3, 5120
    s_add_u32 s15, s15, 4096
    s_mov_b32 m0, s15
    """)
    for i in range(5):
        k(f"""
        v_add_u32 v13, {4*i}, v10
        v_mul_u32_u24 v14, 52, v13
        v_lshrrev_b32 v14, 8, v14
        v_mad_i32_i24 v13, v14, -5, v13
        v_and_b32 v15, 1, v14
        v_lshrrev_b32 v14, 1, v14
        v_lshlrev_b32 v14, 4, v14
        v_lshl_add_u32 v14, v15, 2, v14
        v_add_u32 v14, v14, v11
        v_mul_u32_u24 v14, 1280, v14
        v_lshl_add_u32 v14, v13, 5, v14
        v_add_u32 v14, v14, v12
        buffer_load_dwordx4 v14, s[56:59], s14 offen lds
        s_add_u32 m0, m0, 1024
        """)
    k(f"""
    s_mul_i32 s64, s13, 43
    s_lshr_b32 s64, s64, 7
    s_mul_i32 s65, s64, 3
    s_sub_u32 s65, s13, s65
    s_lshl1_add_u32 s66, s64, s65
    s_add_u32 s66, s66, 15
    s_cmp_eq_u32 s65, 0
    s_cselect_b32 s13, s64, s66
    s_mul_i32 s12, s12, 48
    s_add_u32 s12, s12, s13
    s_mul_i32 s12, s12, 5120
    s_add_u32 s12, s12, {WS_W2}
    v_lshl_add_u32 v13, v1, 4, s12
    v_lshrrev_b32 v14, 5, v1
    v_mul_u32_u24 v14, 2560, v14
    v_bfe_u32 v15, v1, 4, 1
    v_lshl_add_u32 v14, v15, 7, v14
    v_lshl_add_u32 v14, v208, 3, v14
    v_add_u32 v14, s15, v14
    s_waitcnt vmcnt(0)
    """)
    for dt in range(5):
        for e in range(2): k(f"ds_read_b64_tr_b16 {vr(96+4*dt+2*e,2)}, v14 offset:{(e*5+dt)*256}")
    for dt in range(5): k(f"s_waitcnt lgkmcnt({8-2*dt})\nglobal_store_dwordx4 v13, {vr(96+4*dt,4)}, {WS} offset:{1024*dt-2048 if False else (1024*dt if dt<4 else 0)} sc1" if dt<4 else f"s_waitcnt lgkmcnt(0)\nv_add_u32 v13, 4096, v13\nglobal_store_dwordx4 v13, {vr(96+4*dt,4)}, {WS} sc1")
    k(f"""
    s_waitcnt vmcnt(0)
    s_barrier
L1_sdone:
    """)
    if F: return k
    if diag:
        k("s_waitcnt vmcnt(0)"); T2(); T2.flush(WS,0)
    k("L1_end:\ns_endpgm")
    return k
if __name__=="__main__":
    open("t1.s","w").write(emit([gen_k1(diag=True)],verbose=True))
```

```python
from ag import *
from common import *
import k1
from k1 import ln_finalize
import math
NAME="sequential_preLN__ssm_conv_s4__glu_gated_swiglu__prompt_kernel"
WSL=12288; NW=9; TSL=8192; NT=6; TR0=NW*WSL; EX0=TR0+NT*TSL
CSL=EX0; PRT=EX0+1024; STA=EX0+2048
W3=20480; NW3=7; NS3=12; RES=NW3*W3
def poll(k,vaddr,target,lab,vt,pre=True,sleep=2):
    k(f"""
{lab}:
    global_load_dword v{vt}, v{vaddr}, s[42:43] sc1
    s_waitcnt vmcnt(0)
    v_cmp_ne_u32 vcc, {target}, v{vt}
    s_cbranch_vccz {lab}d
    s_sleep {sleep}
    {k1.bound(lab+"d")}
    s_branch {lab}
{lab}d:
    """)
def gen(diag=False, span=18, k1a={}, sl1=2, sl2=1, wmode=0, pst=0, b2=True, ev=(6,12,14,18), thr=55, eprio=0, warm=0, hst='sc1', gst='sc1', allpoll=False, gld=1, gchk=4, pk={12:2,14:1,16:2}, bgw=25, dry=False, nbpre=7, bstep=1, var='', h2d=0, psplit=False):
    k=k1.gen_k1(diag=diag,fused=NAME,**k1a); T=k.T
    WS="s[42:43]"
    TL=k1.Stamps(k,diag); TL.n=1
    ids1="""
    s_and_b32 s6, s2, 3
    s_lshl_b32 s6, s6, 2
    s_bfe_u32 s7, s2, 0x20003
    s_add_u32 s6, s6, s7
    s_bfe_u32 s7, s2, 0x10002
    s_lshl_b32 s7, s7, 3
    s_lshr_b32 s5, s2, 5
    s_add_u32 s7, s7, s5
    """
    ids2="""
    s_and_b32 s6, s2, 1
    s_lshl_b32 s6, s6, 2
    s_bfe_u32 s7, s2, 0x20003
    s_add_u32 s6, s6, s7
    s_bfe_u32 s7, s2, 0x20001
    s_lshl_b32 s7, s7, 3
    s_lshr_b32 s5, s2, 5
    s_add_u32 s7, s7, s5
    """
    k(f"""
    {"s_memrealtime s[100:101]" if diag else ""}
    s_mov_b32 s69, 0
    s_cmp_ge_u32 s3, 4
    s_cbranch_scc1 LF_L
    s_cmp_lg_u32 s3, 0
    s_cbranch_scc1 LF_C
    v_mov_b32 v2, {WS_CNT+50*CSTR}
    v_mov_b32 v3, 1
    s_mov_b64 exec, 1
    global_atomic_add v2, v3, {WS} sc1
    s_mov_b64 exec, -1
    s_branch LF_C
LF_G:
    s_setprio 0
    s_mov_b32 s69, 1
LF_L:
    """)
    TL()
    k(ids1)
    k(f"""
    s_sub_u32 s3, s3, 4
    s_load_dwordx4 s[36:39], s[0:1], 80
    v_lshlrev_b32 v10, 4, v1
    v_bfe_u32 v4, v1, 2, 2
    v_and_b32 v5, 3, v1
    v_lshrrev_b32 v3, 4, v1
    s_and_b32 s9, s3, 1
    s_mul_i32 s8, s9, 12
    v_add_u32 v2, s8, v3
    s_mul_i32 s10, s6, 192
    """)
    for i in range(3):
        k(f"""
        v_add_u32 v6, {4*i}, v2
        v_mul_u32_u24 v7, 43, v6
        v_lshrrev_b32 v7, 7, v7
        v_mad_i32_i24 v8, v7, -3, v6
        v_and_b32 v9, 2, v7
        v_xor_b32 v9, v9, v5
        v_lshl_add_u32 v7, v7, 2, v4
        v_mul_u32_u24 v7, 3072, v7
        v_lshl_add_u32 v7, v8, 6, v7
        v_lshl_add_u32 v7, v9, 4, v7
        v_add_u32 v{60+i}, s10, v7
        """)
    k(f"""
    v_subrev_u32 v61, 1024, v61
    v_subrev_u32 v62, 2048, v62
    s_mul_i32 s20, s3, 3072
    s_mov_b32 s26, 0
    s_mov_b32 s48, s42
    s_mov_b32 s49, s43
    s_mov_b32 s50, {WS_W2+8*48*5120}
    s_mov_b32 s51, 0x20000
    s_mov_b32 s54, {640*3072}
    s_mov_b32 s55, 0x20000
    s_mov_b32 s28, s20
    s_cmp_ge_u32 s3, 2
    s_waitcnt lgkmcnt(0)
    s_cselect_b32 s52, s38, s36
    s_cselect_b32 s53, s39, s37
    s_branch LF_go1
LF_dw:
    s_mov_b32 m0, s28
    s_add_u32 s28, s28, {WSL}
    buffer_load_dwordx4 v60, s[52:55], s26 offen lds
    buffer_load_dwordx4 v61, s[52:55], s26 offen offset:1024 lds
    buffer_load_dwordx4 v62, s[52:55], s26 offen offset:2048 lds
    s_add_u32 s26, s26, {32*3072}
    s_cmp_ge_u32 s28, {TR0}
    s_cselect_b32 s28, s20, s28
    s_setpc_b64 s[70:71]
LF_dt:
    s_mov_b32 m0, s29
    s_add_u32 s29, s29, 1024
    buffer_load_dwordx4 v13, s[48:51], s27 offen sc1 lds
    s_mov_b32 m0, s29
    s_add_u32 s29, s29, {TSL-1024}
    buffer_load_dwordx4 v14, s[48:51], s27 offen sc1 lds
    s_add_u32 s27, s27, {32*4096}
    s_cmp_ge_u32 s29, {EX0}
    s_cselect_b32 s29, s23, s29
    s_setpc_b64 s[70:71]
LF_go1:
    """)
    DW="s_call_b64 s[70:71], LF_dw"; DT="s_call_b64 s[70:71], LF_dt"
    TL()
    for i in range(6): k(DW)
    k(f"""
    s_lshl_b32 s8, s3, 3
    v_add_u32 v6, s8, v4
    v_lshlrev_b32 v6, 12, v6
    v_lshl_add_u32 v6, v3, 6, v6
    s_and_b32 s9, s3, 1
    s_lshl_b32 s8, s9, 1
    v_xor_b32 v7, s8, v5
    v_lshl_add_u32 v6, v7, 4, v6
    s_lshl_b32 s8, s7, 8
    v_add_u32 v13, s8, v6
    v_add_u32 v14, 16384, v13
    s_lshl_b32 s23, s3, 11
    s_add_u32 s23, s23, {TR0}
    s_mov_b32 s29, s23
    s_mov_b32 s27, {WS_HT}
    v_lshrrev_b32 v2, 2, v1
    s_mul_i32 s8, s6, 40
    v_add_u32 v15, s8, v2
    v_lshlrev_b32 v15, 12, v15
    v_lshl_add_u32 v15, v5, 4, v15
    s_lshl_b32 s8, s7, 8
    s_lshl_b32 s9, s3, 6
    s_add_u32 s8, s8, s9
    v_add_u32 v15, s8, v15
    v_lshrrev_b32 v6, 5, v1
    v_lshl_or_b32 v16, v6, 30, v15
    v_lshlrev_b32 v17, 9, v6
    v_lshl_add_u32 v17, v5, 5, v17
    v_bfe_u32 v7, v1, 4, 1
    v_lshl_add_u32 v17, v7, 4, v17
    s_lshl_b32 s8, s7, 4
    s_add_u32 s9, s8, s6
    s_lshl_b32 s9, s9, 10
    s_lshl_b32 s10, s3, 7
    s_add_u32 s9, s9, s10
    s_add_u32 s9, s9, {WS_PART}
    v_add_u32 v17, s9, v17
    s_mul_i32 s9, s7, {CSTR}
    s_add_u32 s9, s9, {WS_CNT}
    v_mov_b32 v18, s9
    v_mov_b32 v19, 1
    v_add_u32 v20, s8, v3
    v_lshlrev_b32 v20, 10, v20
    v_bfe_u32 v6, v1, 3, 1
    v_lshl_add_u32 v20, v6, 9, v20
    v_and_b32 v6, 7, v1
    v_lshl_add_u32 v20, v6, 4, v20
    s_add_u32 s9, s10, {WS_PART}
    v_add_u32 v20, s9, v20
    v_add_u32 v21, 8192, v20
    v_add_u32 v40, 4096, v20
    v_add_u32 v41, 4096, v21
    v_lshl_add_u32 v22, v6, 2, v3
    s_lshl_b32 s9, s3, 5
    v_add_u32 v22, s9, v22
    v_lshlrev_b32 v22, 4, v22
    v_add_u32 v22, {STA}, v22
    v_cmp_lt_u32 vcc, 23, v1
    v_mov_b32 v6, {6144-384}
    s_mul_i32 s9, s6, 384
    s_add_u32 s9, s9, {WS_COLSUM}
    v_cndmask_b32 v6, 0, v6, vcc
    v_add3_u32 v42, v10, v6, s9
    v_add_u32 v43, {CSL}, v10
    s_and_b32 s9, s2, 1
    s_lshl_b32 s9, s9, 2
    v_and_b32 v44, 3, v1
    v_add_u32 v44, s9, v44
    v_mul_u32_u24 v44, {CSTR}, v44
    v_add_u32 v44, {WS_CNT+56*CSTR}, v44
    s_mov_b32 s11, {WS_HT}
    s_mov_b32 s12, {WS_HT+0x10000}
    s_mov_b32 s13, {WS_HT+0x20000}
    """)
    k(ids2.replace("s6","s56").replace("s7","s57"))
    k(f"""
    s_mul_i32 s58, s3, 5120
    s_mov_b32 s59, s58
    s_mul_i32 s60, s56, {48*5120}
    s_add_u32 s60, s60, s58
    s_add_u32 s60, s60, {WS_W2}
    s_cmp_lt_u32 s3, 2
    s_cselect_b32 s24, 1, 0
    v_lshrrev_b32 v6, 5, v1
    v_bfe_u32 v7, v1, 1, 2
    v_lshl_add_u32 v6, v6, 2, v7
    v_lshlrev_b32 v6, 12, v6
    v_bfe_u32 v7, v1, 3, 2
    v_lshl_add_u32 v6, v7, 5, v6
    v_and_b32 v7, 1, v1
    v_lshl_add_u32 v6, v7, 4, v6
    s_mul_i32 s8, s56, {80*4096}
    s_lshl_b32 s9, s57, 7
    s_add_u32 s8, s8, s9
    s_add_u32 s8, s8, {WS_HT}
    v_add_u32 v63, s8, v6
    """)
    k(f"""
    s_cmp_eq_u32 s69, 0
    s_cbranch_scc1 LF_l2
    s_barrier
LF_l2:
    """)
    TL()
    if wmode==0:
        for i in range(6,NW): k(DW)
    k(f"""
    s_cmp_lg_u32 s3, 0
    s_cbranch_scc1 LF_l4
    """)
    TL()
    poll(k,44,1,"LF_p1",12,sleep=sl1)
    k(f"""
LF_l4:
    s_barrier
    {DT}
    {DT}
    buffer_load_dwordx4 v[48:51], v15, s[48:51], s11 offen sc1
    buffer_load_dwordx4 v[52:55], v15, s[48:51], s12 offen sc1
    buffer_load_dwordx4 v[56:59], v16, s[48:51], s13 offen sc1
    """)
    for i in range(NT-2): k(DT)
    ops=["T0","T0","T1","T1","P","P","P"]+sum([["T%d"%i]*2 for i in range(2,NT)],[])
    def wait(need):
        last=max([i for i,o in enumerate(ops) if o in need]+[-1])
        return min(63,len(ops)-1-last)
    k(f"s_waitcnt vmcnt({wait(['T0'])})\ns_barrier")
    if wmode==1:
        for i in range(6,NW): k(DW); ops+=["W%d"%i]*3
    wnext=6 if wmode==2 else NW
    S1=64; S2=72
    def partial(js=range(3)):
        for j in js:
            for q in range(4):
                k(f"v_lshlrev_b32 v{80+2*q}, 16, v{48+4*j+q}\nv_and_b32 v{81+2*q}, 0xffff0000, v{48+4*j+q}")
            for q in range(8):
                if j==0: k(f"v_mov_b32 v{S1+q}, v{80+q}\nv_mul_f32 v{S2+q}, v{80+q}, v{80+q}")
                else: k(f"v_add_f32 v{S1+q}, v{S1+q}, v{80+q}\nv_fmac_f32 v{S2+q}, v{80+q}, v{80+q}")
    def partial2():
        for i in range(8): k(f"v_permlane32_swap_b32 v{S1+i}, v{S2+i}")
        for i in range(8): k(f"v_add_f32 v{S1+i}, v{S1+i}, v{S2+i}")
        for i in range(4): k(f"v_permlane16_swap_b32 v{S1+i}, v{S1+4+i}")
        for i in range(4): k(f"v_add_f32 v{S1+i}, v{S1+i}, v{S1+4+i}")
        for rr in (8,4):
            for i in range(4): k(f"v_add_f32_dpp v{S1+i}, v{S1+i}, v{S1+i} row_ror:{rr} row_mask:0xf bank_mask:0xf")
        k(f"s_mov_b32 exec_lo, 0x000f000f\ns_mov_b32 exec_hi, 0x000f000f\nglobal_store_dwordx4 v17, {vr(S1,4)}, {WS} sc1\ns_mov_b64 exec, -1")
    tnext=NT
    E=(lambda x: x) if not b2 else (lambda x: x&~1)
    for sg in range(0,20,2 if b2 else 1):
        need=["T%d"%(sg+1),"W%d"%(sg+1)]+(["T%d"%(sg+2),"W%d"%(sg+2)] if b2 else [])
        if sg==pst: need.append("P")
        if sg==ev[0]: need.append("S")
        if sg==ev[2]: need.append("C")
        k(f"s_waitcnt vmcnt({wait(need)})\ns_barrier")
        while tnext<20 and tnext<=sg+NT: k(DT); ops+=["T%d"%tnext]*2; tnext+=1
        c=0
        while wnext<20 and wnext<=sg+NW and c<(2 if b2 else 1): k(DW); ops+=["W%d"%wnext]*3; wnext+=1; c+=1
        if psplit:
            if sg<3: partial([sg])
            if sg==3: partial2(); ops.append("S")
        else:
            if sg==pst: partial()
            if sg==pst+(2 if b2 else 1): partial2(); ops.append("S")
        if sg==ev[0]:
            k(f"s_cmp_lg_u32 s3, 0\ns_cbranch_scc1 LF_nsig\ns_mov_b64 exec, 1\nglobal_atomic_add v18, v19, {WS} sc1\ns_mov_b64 exec, -1\nLF_nsig:")
        if sg==ev[1]: k(f"v_mov_b32 v47, {WS_CNT+49*CSTR}\nglobal_load_dword v12, v47, {WS} sc1\nglobal_load_dword v23, v18, {WS} sc1"); ops+=["C","C"]
        if sg==ev[2]:
            k(f"v_cmp_ne_u32 vcc, 16, v23\ns_cbranch_vccz LF_cnt")
            poll(k,18,16,"LF_p2",23,sleep=1)
            k(f"""
LF_cnt:
            v_cmp_ne_u32 vcc, 48, v12
            s_cbranch_vccz LF_p5d
            """)
            poll(k,47,48,"LF_p5",12,sleep=4)
            k(f"""
            global_load_dwordx4 v[48:51], v42, {WS} sc1
            global_load_dwordx4 v[24:27], v20, {WS} sc1
            global_load_dwordx4 v[28:31], v40, {WS} sc1
            global_load_dwordx4 v[32:35], v21, {WS} sc1
            global_load_dwordx4 v[36:39], v41, {WS} sc1
            """)
            ops+=["G"]*5
        if sg==2: k(f"v_mov_b32 v46, {WS_CNT+50*CSTR}\nglobal_load_dword v45, v46, {WS} sc1"); ops.append("X")
        if sg==min(pk):
            k(f"s_waitcnt vmcnt({wait(['X'])})\nv_cmp_ne_u32 vcc, 0x60, v45\ns_cbranch_vccz LF_p4d")
            poll(k,46,"0x60","LF_p4",45,sleep=4)
            k(f"s_add_u32 s61, s60, {NW3*W3}"); pkn=NW3
        if sg in pk:
            for st in range(pkn,pkn+pk[sg]):
                pkn+=1
                k("s_add_u32 s31, s61, 4096")
                for p in range(5): k(f"buffer_load_dwordx4 {vr(100+20*(st-NW3)+4*p,4)}, v10, s[48:51], s{61 if p<4 else 31} offen offset:{1024*(p%4)} sc1")
                k(f"s_add_u32 s61, s61, {W3}"); ops+=["K"]*5
        if sg==ev[3]:
            k(f"""
            s_waitcnt vmcnt({wait(["G"])})
            ds_write_b128 v43, v[48:51]
            v_add_f32 v24, v24, v28
            v_add_f32 v25, v25, v29
            v_add_f32 v26, v26, v30
            v_add_f32 v27, v27, v31
            v_add_f32 v32, v32, v36
            v_add_f32 v33, v33, v37
            v_add_f32 v34, v34, v38
            v_add_f32 v35, v35, v39
            v_add_f32 v24, v24, v32
            v_add_f32 v25, v25, v33
            v_add_f32 v26, v26, v34
            v_add_f32 v27, v27, v35
            v_permlane32_swap_b32 v24, v26
            v_permlane32_swap_b32 v25, v27
            v_add_f32 v24, v24, v26
            v_add_f32 v25, v25, v27
            v_permlane16_swap_b32 v24, v25
            v_add_f32 v24, v24, v25
            v_mov_b32_dpp v25, v24 row_ror:8 row_mask:0xf bank_mask:0xf
            """)
            ln_finalize(k,24,25,26,28,30)
            k(f"""
            v_rcp_f32 v29, v30
            v_mul_f32 v30, v30, v30
            s_mov_b32 exec_lo, 0x00ff00ff
            s_mov_b32 exec_hi, 0x00ff00ff
            v_mul_f32 v29, {f2u(-math.log2(math.e))}, v29
            ds_write_b128 v22, v[28:31]
            s_mov_b64 exec, -1
            """)
    k(f"""
    s_branch LF_go3
LF_dw3:
    s_mov_b32 m0, s28
    s_add_u32 s31, s20, 4096
    buffer_load_dwordx4 v10, s[48:51], s20 offen sc1 lds
    buffer_load_dwordx4 v10, s[48:51], s20 offen offset:1024 sc1 lds
    buffer_load_dwordx4 v10, s[48:51], s20 offen offset:2048 sc1 lds
    buffer_load_dwordx4 v10, s[48:51], s20 offen offset:3072 sc1 lds
    s_add_u32 m0, s28, 4096
    s_add_u32 s28, s28, {W3}
    buffer_load_dwordx4 v10, s[48:51], s31 offen sc1 lds
    s_add_u32 s20, s20, {W3}
    s_setpc_b64 s[70:71]
LF_go3:
    s_mov_b32 s22, s58
    s_mov_b32 s28, s59
    s_mov_b32 s20, s60
    v_mov_b32 v16, v63
    s_waitcnt lgkmcnt(0)
    s_barrier
    s_mov_b32 s30, 0
LF_pf3:
    s_call_b64 s[70:71], LF_dw3
    s_waitcnt vmcnt({thr})
    s_add_u32 s30, s30, 1
    s_cmp_lt_u32 s30, {NW3}
    s_cbranch_scc1 LF_pf3
    s_cmp_eq_u32 s24, 1
    s_cbranch_scc1 LF_nores
    s_sub_u32 s27, s3, 2
    s_mul_i32 s27, s27, 5
    s_lshl_b32 s26, s27, 15
    s_lshl_b32 s27, s27, 10
    s_add_u32 s27, s27, {RES}
    """)
    for i in range(5): k(f"s_mov_b32 m0, s27\ns_add_u32 s27, s27, 1024\nbuffer_load_dwordx4 v16, s[48:51], s26 offen sc1 lds\ns_add_u32 s26, s26, 32768")
    k("LF_nores:\nv_add_u32 v11, s22, v10")
    TL()
    k(f"s_waitcnt vmcnt({bgw})\ns_barrier")
    for n,grp in enumerate(((7,8),(9,10,11))):
        k(f"s_waitcnt vmcnt({(10 if bgw else 0) if n==0 else 0})\ns_barrier")
        for r in grp:
            for p in range(5): k(f"ds_write_b128 v11, {vr(100+20*(r-NW3)+4*p,4)} offset:{1024*p}")
            k(f"v_add_u32 v11, {W3}, v11")
        k("s_waitcnt lgkmcnt(0)")
    k("s_barrier\ns_barrier")
    if diag:
        TL.n=11; k("s_add_u32 s3, s3, 4"); TL.flush(WS,0)
    k("s_endpgm")
    k(f"""
LF_M:
    s_bfe_u32 s7, s2, 0x20003
    s_mul_i32 s7, s7, {CSTR}
    s_add_u32 s8, s7, {WS_CNT+52*CSTR}
    v_mov_b32 v2, s8
    v_mov_b32 v3, 1
    v_mul_u32_u24 v5, {4*CSTR}, v1
    s_add_u32 s8, s7, {WS_CNT+56*CSTR}
    v_add_u32 v5, s8, v5
    s_mov_b64 exec, 1
    s_waitcnt vmcnt(0)
    ds_add_rtn_u32 v4, v232, v3
    s_waitcnt lgkmcnt(0)
    v_cmp_eq_u32 vcc, 3, v4
    s_cbranch_vccz LF_m2
    global_atomic_add v4, v2, v3, {WS} sc0 sc1
    s_waitcnt vmcnt(0)
    v_cmp_eq_u32 vcc, 39, v4
    s_cbranch_vccz LF_m2
    s_mov_b64 exec, 3
    global_store_dword v5, v3, {WS} sc1
LF_m2:
    s_mov_b64 exec, -1
    s_barrier
LF_C:
    """)
    if diag: T.n=4
    k(ids1)
    k(f"""
    v_lshrrev_b32 v2, 2, v1
    v_and_b32 v4, 3, v1
    v_lshrrev_b32 v5, 5, v1
    v_bfe_u32 v6, v1, 4, 1
    v_and_b32 v8, 15, v1
    v_lshrrev_b32 v9, 4, v1
    v_lshlrev_b32 v10, 6, v2
    v_and_b32 v10, 0xc0, v10
    v_lshl_add_u32 v10, v4, 3, v10
    v_lshl_add_u32 v10, v6, 5, v10
    v_mul_u32_u24 v11, 1536, v9
    v_add_u32 v11, v11, v10
    s_and_b32 s8, s3, 1
    s_lshr_b32 s9, s3, 1
    s_lshl_b32 s10, s8, 5
    v_xor_b32 v12, s10, v11
    v_lshl_add_u32 v13, v9, 11, v10
    s_lshl_b32 s10, s9, 9
    s_add_u32 s10, s10, {TR0}
    v_add_u32 v13, s10, v13
    v_xor_b32 v14, 32, v13
    s_lshl_b32 s10, s8, 6
    s_add_u32 s10, s10, {CSL}
    v_lshl_add_u32 v17, v9, 4, s10
    s_lshl_b32 s10, s9, 10
    s_add_u32 s10, s10, {STA}
    v_lshl_add_u32 v19, v8, 4, s10
    s_lshl_b32 s10, s7, 3
    s_lshl_b32 s11, s9, 2
    s_add_u32 s10, s10, s11
    s_mul_i32 s10, s10, {48*1024}
    s_mul_i32 s11, s6, 3072
    s_add_u32 s10, s10, s11
    s_lshl_b32 s11, s8, 9
    s_add_u32 s10, s10, s11
    s_add_u32 s10, s10, {WS_HID}
    v_mul_u32_u24 v18, {48*1024}, v6
    v_lshl_add_u32 v18, v5, 8, v18
    v_lshl_add_u32 v18, v8, 4, v18
    v_add_u32 v18, s10, v18
    v_add_u32 v20, {2*48*1024}, v18
    s_mul_i32 s10, s7, {CSTR}
    s_add_u32 s10, s10, {WS_CNT+16*CSTR}
    v_mov_b32 v21, s10
    s_lshl_b32 s35, s6, 2
    v_mov_b32 v7, {PRT}
    v_mov_b64 v[2:3], 0
    ds_write_b64 v7, v[2:3]
    s_load_dwordx2 s[38:39], s[0:1], 104
    """)
    ACC=160
    if dry:
        for i in range(3): k(f"v_mov_b32 v{22+i}, v{12+i}")
        k("s_mov_b32 s33, 0\ns_mov_b32 s34, 0\ns_mov_b32 s30, 100\ns_mov_b64 vcc, -1\ns_branch LF_loop\nLF_dried:\ns_mov_b64 vcc, 0")
    if warm: k("s_mov_b32 s72, 1\ns_mov_b64 exec, 0\ns_branch LF_epi\nLF_epiret:")
    if warm>1: k("s_branch LF_fin\nLF_finret:")
    if warm: k("s_mov_b64 exec, -1")
    for r in range(ACC,ACC+96,2): k(f"v_mov_b64 {vr(r,2)}, 0")
    FA=[32,72]
    def reads(buf,va,vb):
        o=[]
        for j in range(4):
            for e in range(2): o.append(f"ds_read_b64_tr_b16 {vr(FA[buf]+24+4*j+2*e,2)}, v{vb+(j&1)} offset:{e*1024+(j>>1)*256}")
        for t in range(6):
            for e in range(2): o.append(f"ds_read_b64_tr_b16 {vr(FA[buf]+4*t+2*e,2)}, v{va} offset:{(t//3)*6144+e*768+(t%3)*256}")
        return o[8:10]+o[0:8]+o[10:]
    def mfs(buf): return [f"v_mfma_f32_16x16x32_bf16 {vr(ACC+16*t+4*j,4)}, {vr(FA[buf]+4*t,4)}, {vr(FA[buf]+24+4*j,4)}, {vr(ACC+16*t+4*j,4)}" for t in range(6) for j in range(4)]
    def adv(b=0):
        return [f"v_add_u32 v{22+5*b+i}, s{33 if i<1 else 34}, v{12+i}" for i in range(3)]+[f"s_add_u32 s33, s33, {WSL}",f"s_cmp_eq_u32 s33, {NW*WSL}","s_cselect_b32 s33, 0, s33",f"s_add_u32 s34, s34, {TSL}",f"s_cmp_eq_u32 s34, {NT*TSL}","s_cselect_b32 s34, 0, s34"]
    k(f"s_mov_b32 s33, {WSL}\ns_mov_b32 s34, {TSL}")
    for x in adv()[:3]: k(x)
    k("s_mov_b32 s30, 0\ns_barrier")
    T()
    k("s_barrier")
    T()
    if "prof" in var: k("s_memtime s[66:67]\ns_waitcnt lgkmcnt(0)\nv_writelane_b32 v159, s66, 0")
    for x in reads(0,12,13): k(x)
    k(f"LF_loop:")
    for b in range(2):
        k("s_waitcnt lgkmcnt(0)")
        if b2 and b==1: pass
        elif dry: k(f"s_cbranch_vccnz LF_sk{b}\ns_barrier\nLF_sk{b}:")
        else: k("s_barrier")
        rd=reads(1-b,22+5*b,23+5*b)
        a=adv(1-b); va=a[:3]; sa=a[3:]; lc=(["s_add_u32 s30, s30, 1","s_cmp_lt_u32 s30, 10"] if b else [])
        m=mfs(b); p=0
        for i,x in enumerate(m):
            k(x)
            e=min(len(rd),(len(rd)*(i+1)+span-1)//span)
            for y in rd[p:e]: k(y)
            p=e
            if 2<=i<14 and i%2==0: k(sa.pop(0))
            if i>=min(span,19):
                if va: k(va.pop(0))
                elif lc: k(lc.pop(0))
        assert not (sa or va or lc)
    if "prof" in var:
        k("s_cselect_b32 s68, 1, 0\ns_memtime s[66:67]\ns_waitcnt lgkmcnt(0)\ns_mov_b32 m0, s30\nv_writelane_b32 v159, s66, m0\ns_cmp_eq_u32 s68, 1")
    k(f"s_cbranch_scc1 LF_loop")
    if "prof" in var: k(f"s_lshl_b32 s78, s2, 9\ns_lshl_b32 s79, s3, 6\ns_add_u32 s78, s78, s79\ns_add_u32 s78, s78, {WS_STAMP+131072}\nv_lshl_add_u32 v158, v1, 2, s78\ns_mov_b64 exec, 0xffff\nglobal_store_dword v158, v159, {WS}\ns_mov_b64 exec, -1")
    if dry: k("s_waitcnt lgkmcnt(0)\ns_cbranch_vccnz LF_dried")
    T()
    k("s_barrier")
    if warm: k("s_mov_b32 s72, 0\nLF_epi:")
    ST=112; CS=128
    for j in range(4): k(f"ds_read_b128 {vr(ST+4*j,4)}, v19 offset:{256*j}")
    for t in range(6): k(f"ds_read_b128 {vr(CS+4*t,4)}, v17 offset:{(t//3)*384+(t%3)*128}")
    k("s_waitcnt lgkmcnt(0)")
    for i in range(3):
        E=32
        G=lambda j,p: ACC+16*i+4*j+2*p
        U=lambda j,p: ACC+48+16*i+4*j+2*p
        JP=[(j,p) for j in range(4) for p in range(2)]
        for j,p in JP:
            k(f"v_pk_fma_f32 {vr(G(j,p),2)}, {vr(CS+4*i+2*p,2)}, {vr(ST+4*j,2)}, {vr(G(j,p),2)} op_sel:[0,0,0] op_sel_hi:[1,0,1] neg_lo:[1,0,0] neg_hi:[1,0,0]")
        for j,p in JP: k(f"v_pk_mul_f32 {vr(E+4*j+2*p,2)}, {vr(G(j,p),2)}, {vr(ST+4*j,2)} op_sel:[0,1] op_sel_hi:[1,1]")
        ex=[f"v_exp_f32 v{E+r}, v{E+r}" for r in range(16)]
        uu=[f"v_pk_fma_f32 {vr(U(j,p),2)}, {vr(CS+12+4*i+2*p,2)}, {vr(ST+4*j,2)}, {vr(U(j,p),2)} op_sel:[0,0,0] op_sel_hi:[1,0,1] neg_lo:[1,0,0] neg_hi:[1,0,0]" for j,p in JP]
        for x in merge(ex,uu): k(x)
        for j,p in JP: k(f"v_pk_fma_f32 {vr(E+4*j+2*p,2)}, {vr(E+4*j+2*p,2)}, {vr(ST+4*j+2,2)}, {vr(ST+4*j+2,2)} op_sel:[0,0,0] op_sel_hi:[1,0,0]")
        rc=[f"v_rcp_f32 v{E+r}, v{E+r}" for r in range(16)]
        gu=[f"v_pk_mul_f32 {vr(G(j,p),2)}, {vr(G(j,p),2)}, {vr(U(j,p),2)}" for j,p in JP]
        for x in merge(rc,gu): k(x)
        for j,p in JP: k(f"v_pk_mul_f32 {vr(G(j,p),2)}, {vr(G(j,p),2)}, {vr(E+4*j+2*p,2)}")
        O=48+8*(i&1)
        for j,p in JP: k(f"v_cvt_pk_bf16_f32 v{O+2*j+p}, v{G(j,p)}, v{G(j,p)+1}")
        for jj in (0,2): k(f"v_permlane16_swap_b32 v{O+2*jj}, v{O+2*jj+2}\nv_permlane16_swap_b32 v{O+2*jj+1}, v{O+2*jj+3}")
        if warm: k(f"s_cmp_eq_u32 s72, 1\ns_cbranch_scc1 {'LF_es%d'%i if i<2 else 'LF_epiret'}")
        for jj in (0,2): k(f"global_store_dwordx4 v{18 if jj==0 else 20}, {vr(O+2*jj,4)}, {WS} offset:{1024*i} {hst}")
        if warm and i<2: k(f"LF_es{i}:")
    T()
    H2SIG=f"global_store_dword v12, v9, {WS} sc1" if h2d==2 else f"global_atomic_add v21, v9, {WS} sc1" if h2d else f"global_atomic_add v13, v21, v9, {WS} sc0 sc1\ns_waitcnt vmcnt(0)\nv_cmp_eq_u32 vcc, 15, v13\ns_cbranch_vccz LF_c3\nglobal_store_dword v12, v9, {WS} {gst}"
    k(ids2)
    k(f"""
    v_lshlrev_b32 v10, 4, v1
    s_and_b32 s8, s3, 1
    s_lshr_b32 s9, s3, 1
    s_lshl_b32 s21, s7, 2
    s_lshl_b32 s10, s9, 1
    s_add_u32 s21, s21, s10
    s_mul_i32 s21, s21, 48
    s_add_u32 s23, s21, s8
    s_mul_i32 s10, s8, 3
    s_add_u32 s21, s21, s10
    s_lshl_b32 s21, s21, 10
    s_add_u32 s21, s21, {WS_HID}
    s_add_u32 s22, s21, {48*1024}
    s_lshl_b32 s23, s23, 10
    s_add_u32 s23, s23, {WS_HID+1024}
    s_add_u32 s24, s23, {48*1024}
    s_mov_b32 s48, s42
    s_mov_b32 s49, s43
    s_mov_b32 s50, {WS_HID+2048*1536*2}
    s_mov_b32 s51, 0x20000
    s_mul_i32 s10, s3, 5120
    s_add_u32 s10, s10, {6*W3}
    v_add_u32 v14, s10, v10
    s_xor_b32 s10, s3, 1
    s_mul_i32 s10, s10, 5120
    s_add_u32 s10, s10, {6*W3}
    v_add_u32 v15, s10, v10
    s_mul_i32 s10, s8, 5120
    v_add_u32 v4, s10, v10
    v_add_u32 v5, {3*W3}, v4
    v_add_u32 v6, {6*W3}, v4
    v_lshlrev_b32 v22, 9, v9
    v_lshl_add_u32 v22, v8, 3, v22
    s_lshl_b32 s10, s3, 7
    s_add_u32 s10, s10, {RES}
    v_add_u32 v2, s10, v22
    s_lshl_b32 s10, s7, 6
    s_lshl_b32 s11, s3, 4
    s_add_u32 s10, s10, s11
    v_add_u32 v23, s10, v8
    v_mul_u32_u24 v23, 1280, v23
    v_lshl_add_u32 v23, v9, 3, v23
    s_mul_i32 s10, s6, 160
    v_add_u32 v3, s10, v23
    v_mov_b32 v9, 1
    s_lshr_b32 s10, s7, 1
    s_mul_i32 s10, s10, {CSTR}
    s_add_u32 s10, s10, {WS_CNT+32*CSTR}
    v_mov_b32 v11, s10
    v_add_u32 v8, {48*CSTR}, v11
    v_add_u32 v12, {16*CSTR}, v21
    v_add_u32 v22, {48*CSTR}, v21
    v_add_u32 v23, {64*CSTR}, v21
    v_mov_b32 v24, 0
    s_mov_b64 exec, 1
    s_waitcnt vmcnt(4)
    ds_add_rtn_u32 v13, v7, v9
    s_waitcnt lgkmcnt(0)
    v_cmp_eq_u32 vcc, 3, v13
    s_cbranch_vccz LF_c1
    global_atomic_add v24, v21, v9, {WS} sc0 sc1
LF_c1:
    s_waitcnt vmcnt(0)
    ds_add_rtn_u32 v13, v7, v9 offset:4
    v_cmp_eq_u32 vcc, 15, v24
    s_cbranch_vccz LF_c2
    global_store_dword v12, v9, {WS} sc1
LF_c2:
    s_waitcnt lgkmcnt(0)
    v_cmp_eq_u32 vcc, 3, v13
    s_cbranch_vccz LF_c3
    global_atomic_add v13, v22, v9, {WS} sc0 sc1
    s_waitcnt vmcnt(0)
    v_cmp_eq_u32 vcc, 15, v13
    s_cbranch_vccz LF_c3
    global_store_dword v23, v9, {WS} sc1
LF_c3:
    s_mov_b64 exec, -1
    s_cmp_lg_u32 s3, 0
    s_cbranch_scc1 LF_p3d
    """)
    poll(k,11,1,"LF_p3",13,sleep=sl2)
    k("v_lshrrev_b32 v12, 4, v1\nv_and_b32 v13, 1, v12\nv_mul_u32_u24 v13, 24, v13\nv_add_u32 v13, v13, v3")
    AC3=16; AF=[56,76]; BR=96; NBR=20
    def areads(i):
        st=i//2; slot=st%NW3; off=(slot%3)*W3+(i&1)*10240
        return [f"ds_read_b128 {vr(AF[i&1]+4*dt,4)}, v{4+slot//3} offset:{off+1024*dt}" for dt in range(5)]
    def bload(i):
        a=21 if i<8 else 23; st=6144 if i<8 else 3072
        return [f"buffer_load_dwordx4 {vr(BR+8*(i%NBR)+4*j,4)}, v10, s[48:51], s{a+j} offen sc1" for j in range(2)]+[f"s_add_u32 s{a}, s{a}, {st}",f"s_add_u32 s{a+1}, s{a+1}, {st}"]
    k("s_barrier")
    T()
    for i in range(8):
        for x in bload(i): k(x)
    for x in areads(0): k(x)
    ops=sum([["B%d"%i]*2 for i in range(8)],[]); issued=8
    for i in range(24):
        need=["B%d"%i]+(["GO"] if i==gchk else [])
        k(f"s_waitcnt vmcnt({wait(need)}) lgkmcnt(0)")
        if i==gchk:
            k("v_cmp_ne_u32 vcc, 1, v12\ns_cbranch_vccz LF_p6d")
            poll(k,8,1,"LF_p6",12,sleep=1)
        if i in (3,9,15): k("s_barrier")
        fill=areads(i+1) if i<23 else []
        if i==22: fill=fill+[f"ds_read_b64_tr_b16 {vr(240+2*dt,2)}, v2 offset:{dt*2048}" for dt in range(5)]
        if i==gld: fill=[f"global_load_dword v12, v8, {WS} sc1"]+fill; ops.append("GO")
        c=0
        while i>=gchk and issued<24 and issued<i+NBR and c<(2 if issued<i+nbpre else 1):
            fill=fill+bload(issued); ops+=["B%d"%issued]*2; issued+=1; c+=1
        m=[f"v_mfma_f32_16x16x32_bf16 {vr(AC3+20*j+4*dt,4)}, {vr(AF[i&1]+4*dt,4)}, {vr(BR+8*(i%NBR)+4*j,4)}, {vr(AC3+20*j+4*dt,4) if i else '0'}" for dt in range(5) for j in range(2)]
        p=0
        for n,x in enumerate(m):
            k(x)
            e=max(min(n+1,len(fill)),(len(fill)*(n+1))//len(m))
            for y in fill[p:e]: k(y)
            p=e
    T()
    k("LF_fin:\ns_cmp_eq_u32 s8, 0\ns_cbranch_scc1 LF_x0")
    for dt in range(5): k(f"ds_write_b128 v14, {vr(AC3+4*dt,4)} offset:{1024*dt}")
    for r in range(0,20,2): k(f"v_mov_b64 {vr(AC3+r,2)}, {vr(AC3+20+r,2)}")
    k("s_branch LF_x1\nLF_x0:")
    for dt in range(5): k(f"ds_write_b128 v14, {vr(AC3+20+4*dt,4)} offset:{1024*dt}")
    k("LF_x1:")
    for dt in range(5):
        b=AC3+4*dt; t=112+4*dt
        k(f"""
        v_lshlrev_b32 v{t}, 16, v{240+2*dt}
        v_and_b32 v{t+1}, 0xffff0000, v{240+2*dt}
        v_lshlrev_b32 v{t+2}, 16, v{241+2*dt}
        v_and_b32 v{t+3}, 0xffff0000, v{241+2*dt}
        v_pk_add_f32 {vr(b,2)}, {vr(b,2)}, {vr(t,2)}
        v_pk_add_f32 {vr(b+2,2)}, {vr(b+2,2)}, {vr(t+2,2)}
        """)
    k("s_waitcnt lgkmcnt(0)")
    if warm>1: k("s_cmp_eq_u32 s72, 1\ns_cbranch_scc1 LF_fb")
    k("s_barrier\nLF_fb:")
    for dt in range(5): k(f"ds_read_b128 {vr(64+4*dt,4)}, v15 offset:{1024*dt}")
    for dt in range(5):
        b=AC3+4*dt; t=64+4*dt; o=96+2*dt
        k(f"""
        s_waitcnt lgkmcnt({4-dt})
        v_pk_add_f32 {vr(b,2)}, {vr(b,2)}, {vr(t,2)}
        v_pk_add_f32 {vr(b+2,2)}, {vr(b+2,2)}, {vr(t+2,2)}
        v_cvt_pk_bf16_f32 v{o}, v{b}, v{b+1}
        v_cvt_pk_bf16_f32 v{o+1}, v{b+2}, v{b+3}
        """)
        if dt in (1,3): k(f"v_permlane16_swap_b32 v{o-2}, v{o}\nv_permlane16_swap_b32 v{o-1}, v{o+1}")
    if warm>1: k("s_cbranch_scc1 LF_finret")
    k("global_store_dwordx4 v13, v[96:99], s[38:39]\nglobal_store_dwordx4 v13, v[100:103], s[38:39] offset:64\nglobal_store_dwordx2 v3, v[104:105], s[38:39] offset:128")
    if diag:
        k("s_waitcnt vmcnt(0)"); T(); T.flush(WS,0)
        if "dbgout" in var:
            k("s_or_b32 s78, s2, s3\ns_cmp_lg_u32 s78, 0\ns_cbranch_scc1 L1_end\ns_mov_b64 exec, 1\nv_mov_b32 v2, 0")
            for i in range(1,11): k(f"s_sub_u32 s78, s{80+2*i}, s80\nv_mov_b32 v3, s78\nglobal_store_dword v2, v3, s[40:41] offset:{4*i}")
    k("L1_end:\ns_endpgm")
    return k
def single(k, comment=""):
    g=k.grid; b=k.block
    s=comment+"; @launch grid=(%d,%d,%d) block=(%d,%d,%d) lds=%d\n"%(g[0],g[1],g[2],b[0],b[1],b[2],k.lds)
    return s+HEADER+k.text()+'.section .rodata,"a"\n.p2align 6\n'+k.desc()
if __name__=="__main__":
    from gate import *
    import build, sys
    k1.SAFE=True
    open("f_diag.s","w").write(emit([gate(),scrub(),gen(diag=True)],verbose=True))
    for n,a in enumerate(sys.argv[1:]):
        open("f_%s.s"%"bcdefgh"[n],"w").write(emit([gate(),scrub(),gen(diag=True,**eval("dict(%s)"%a))]))
    k1.SAFE=False
    open("v_fused.s","w").write(single(gen(),build.HDR))
    open("v_dbg.s","w").write(single(gen(diag=True,var="dbgout"),build.HDR))
```

```python
from ag import *
def gate():
    g=K("gate_kernel",(1,1,1),(64,1,1),0,vgpr=32,sgpr=32)
    g("""
    s_memrealtime s[8:9]
    s_waitcnt lgkmcnt(0)
Lg:
    s_memrealtime s[10:11]
    s_waitcnt lgkmcnt(0)
    s_sub_u32 s12, s10, s8
    s_cmp_lt_u32 s12, 20000
    s_cbranch_scc1 Lg
    s_endpgm
""")
    return g
def scrub():
    k=K("scrub_kernel",(512,1,1),(256,1,1),0,vgpr=32,sgpr=32)
    k(".rept 20000\nv_add_u32 v1, 0x12345, v1\n.endr\ns_endpgm")
    return k

def tail():
    k=K("tail_kernel",(8,1,1),(64,1,1),0,vgpr=32,sgpr=32)
    k("""
    s_memrealtime s[8:9]
    s_load_dwordx2 s[4:5], s[0:1], 120
    s_lshl_b32 s3, s2, 2
    s_add_u32 s3, s3, 0x1f00000
    v_mov_b32 v1, s3
    s_waitcnt lgkmcnt(0)
    v_mov_b32 v2, s8
    s_mov_b64 exec, 1
    global_store_dword v1, v2, s[4:5]
    s_endpgm
""")
    return k
def head():
    k=tail(); k.name="head_kernel"; k.lines=[l.replace("0x1f00000","0x1f00100") for l in k.lines]
    return k
```

```python
from ag import *
from common import *
import k1
from k1 import ln_finalize
import math
NAME="sequential_preLN__ssm_conv_s4__glu_gated_swiglu__prompt_kernel"
WSL=12288; NW=9; TSL=8192; NT=6; TR0=NW*WSL; EX0=TR0+NT*TSL
CSL=EX0; PRT=EX0+1024; STA=EX0+2048
W3=20480; NW3=7; NS3=12; RES=NW3*W3
def poll(k,vaddr,target,lab,vt,pre=True,sleep=2):
    k(f"""
{lab}:
    global_load_dword v{vt}, v{vaddr}, s[42:43] sc1
    s_waitcnt vmcnt(0)
    v_cmp_ne_u32 vcc, {target}, v{vt}
    s_cbranch_vccz {lab}d
    s_sleep {sleep}
    {k1.bound(lab+"d")}
    s_branch {lab}
{lab}d:
    """)
def gen(diag=False, span=18, k1a={}, sl1=2, sl2=1, wmode=0, pst=0, b2=True, ev=(6,12,14,18), thr=55, eprio=0, warm=0, hst='sc1', gst='sc1', allpoll=False, gld=1, gchk=4, pk={12:2,14:1,16:2}, bgw=25, ost='nt', apre=True, wb=False, dry=False, nbpre=7, bstep=1, var='', h2d=0, psplit=False):
    k=k1.gen_k1(diag=diag,fused=NAME,**k1a); T=k.T
    WS="s[42:43]"
    TL=k1.Stamps(k,diag); TL.n=1
    ids1="""
    s_and_b32 s6, s2, 3
    s_lshl_b32 s6, s6, 2
    s_bfe_u32 s7, s2, 0x20003
    s_add_u32 s6, s6, s7
    s_bfe_u32 s7, s2, 0x10002
    s_lshl_b32 s7, s7, 3
    s_lshr_b32 s5, s2, 5
    s_add_u32 s7, s7, s5
    """
    ids2="""
    s_and_b32 s6, s2, 1
    s_lshl_b32 s6, s6, 2
    s_bfe_u32 s7, s2, 0x20003
    s_add_u32 s6, s6, s7
    s_bfe_u32 s7, s2, 0x20001
    s_lshl_b32 s7, s7, 3
    s_lshr_b32 s5, s2, 5
    s_add_u32 s7, s7, s5
    """
    k(f"""
    {"s_memrealtime s[100:101]" if diag else ""}
    s_mov_b32 s69, 0
    s_cmp_ge_u32 s3, 4
    s_cbranch_scc1 LF_L
    s_cmp_lg_u32 s3, 0
    s_cbranch_scc1 LF_C
    v_mov_b32 v2, {WS_CNT+50*CSTR}
    v_mov_b32 v3, 1
    s_mov_b64 exec, 1
    global_atomic_add v2, v3, {WS} sc1
    s_mov_b64 exec, -1
    s_branch LF_C
LF_G:
    s_setprio 0
    s_mov_b32 s69, 1
LF_L:
    """)
    TL()
    k(ids1)
    k(f"""
    s_sub_u32 s3, s3, 4
    s_load_dwordx4 s[36:39], s[0:1], 80
    v_lshlrev_b32 v10, 4, v1
    v_bfe_u32 v4, v1, 2, 2
    v_and_b32 v5, 3, v1
    v_lshrrev_b32 v3, 4, v1
    s_and_b32 s9, s3, 1
    s_mul_i32 s8, s9, 12
    v_add_u32 v2, s8, v3
    s_mul_i32 s10, s6, 192
    """)
    for i in range(3):
        k(f"""
        v_add_u32 v6, {4*i}, v2
        v_mul_u32_u24 v7, 43, v6
        v_lshrrev_b32 v7, 7, v7
        v_mad_i32_i24 v8, v7, -3, v6
        v_and_b32 v9, 2, v7
        v_xor_b32 v9, v9, v5
        v_lshl_add_u32 v7, v7, 2, v4
        v_mul_u32_u24 v7, 3072, v7
        v_lshl_add_u32 v7, v8, 6, v7
        v_lshl_add_u32 v7, v9, 4, v7
        v_add_u32 v{60+i}, s10, v7
        """)
    k(f"""
    v_subrev_u32 v61, 1024, v61
    v_subrev_u32 v62, 2048, v62
    s_mul_i32 s20, s3, 3072
    s_mov_b32 s26, 0
    s_mov_b32 s48, s42
    s_mov_b32 s49, s43
    s_mov_b32 s50, {WS_W2+8*48*5120}
    s_mov_b32 s51, 0x20000
    s_mov_b32 s54, {640*3072}
    s_mov_b32 s55, 0x20000
    s_mov_b32 s28, s20
    s_cmp_ge_u32 s3, 2
    s_waitcnt lgkmcnt(0)
    s_cselect_b32 s52, s38, s36
    s_cselect_b32 s53, s39, s37
    s_branch LF_go1
LF_dw:
    s_mov_b32 m0, s28
    s_add_u32 s28, s28, {WSL}
    buffer_load_dwordx4 v60, s[52:55], s26 offen lds
    buffer_load_dwordx4 v61, s[52:55], s26 offen offset:1024 lds
    buffer_load_dwordx4 v62, s[52:55], s26 offen offset:2048 lds
    s_add_u32 s26, s26, {32*3072}
    s_cmp_ge_u32 s28, {TR0}
    s_cselect_b32 s28, s20, s28
    s_setpc_b64 s[70:71]
LF_dt:
    s_mov_b32 m0, s29
    s_add_u32 s29, s29, 1024
    buffer_load_dwordx4 v13, s[48:51], s27 offen sc1 lds
    s_mov_b32 m0, s29
    s_add_u32 s29, s29, {TSL-1024}
    buffer_load_dwordx4 v14, s[48:51], s27 offen sc1 lds
    s_add_u32 s27, s27, {32*4096}
    s_cmp_ge_u32 s29, {EX0}
    s_cselect_b32 s29, s23, s29
    s_setpc_b64 s[70:71]
LF_go1:
    """)
    DW="s_call_b64 s[70:71], LF_dw"; DT="s_call_b64 s[70:71], LF_dt"
    TL()
    for i in range(6): k(DW)
    k(f"""
    s_lshl_b32 s8, s3, 3
    v_add_u32 v6, s8, v4
    v_lshlrev_b32 v6, 12, v6
    v_lshl_add_u32 v6, v3, 6, v6
    s_and_b32 s9, s3, 1
    s_lshl_b32 s8, s9, 1
    v_xor_b32 v7, s8, v5
    v_lshl_add_u32 v6, v7, 4, v6
    s_lshl_b32 s8, s7, 8
    v_add_u32 v13, s8, v6
    v_add_u32 v14, 16384, v13
    s_lshl_b32 s23, s3, 11
    s_add_u32 s23, s23, {TR0}
    s_mov_b32 s29, s23
    s_mov_b32 s27, {WS_HT}
    v_lshrrev_b32 v2, 2, v1
    s_mul_i32 s8, s6, 40
    v_add_u32 v15, s8, v2
    v_lshlrev_b32 v15, 12, v15
    v_lshl_add_u32 v15, v5, 4, v15
    s_lshl_b32 s8, s7, 8
    s_lshl_b32 s9, s3, 6
    s_add_u32 s8, s8, s9
    v_add_u32 v15, s8, v15
    v_lshrrev_b32 v6, 5, v1
    v_lshl_or_b32 v16, v6, 30, v15
    v_lshlrev_b32 v17, 9, v6
    v_lshl_add_u32 v17, v5, 5, v17
    v_bfe_u32 v7, v1, 4, 1
    v_lshl_add_u32 v17, v7, 4, v17
    s_lshl_b32 s8, s7, 4
    s_add_u32 s9, s8, s6
    s_lshl_b32 s9, s9, 10
    s_lshl_b32 s10, s3, 7
    s_add_u32 s9, s9, s10
    s_add_u32 s9, s9, {WS_PART}
    v_add_u32 v17, s9, v17
    s_mul_i32 s9, s7, {CSTR}
    s_add_u32 s9, s9, {WS_CNT}
    v_mov_b32 v18, s9
    v_mov_b32 v19, 1
    v_add_u32 v20, s8, v3
    v_lshlrev_b32 v20, 10, v20
    v_bfe_u32 v6, v1, 3, 1
    v_lshl_add_u32 v20, v6, 9, v20
    v_and_b32 v6, 7, v1
    v_lshl_add_u32 v20, v6, 4, v20
    s_add_u32 s9, s10, {WS_PART}
    v_add_u32 v20, s9, v20
    v_add_u32 v21, 8192, v20
    v_add_u32 v40, 4096, v20
    v_add_u32 v41, 4096, v21
    v_lshl_add_u32 v22, v6, 2, v3
    s_lshl_b32 s9, s3, 5
    v_add_u32 v22, s9, v22
    v_lshlrev_b32 v22, 4, v22
    v_add_u32 v22, {STA}, v22
    v_cmp_lt_u32 vcc, 23, v1
    v_mov_b32 v6, {6144-384}
    s_mul_i32 s9, s6, 384
    s_add_u32 s9, s9, {WS_COLSUM}
    v_cndmask_b32 v6, 0, v6, vcc
    v_add3_u32 v42, v10, v6, s9
    v_add_u32 v43, {CSL}, v10
    s_and_b32 s9, s2, 1
    s_lshl_b32 s9, s9, 2
    v_and_b32 v44, 3, v1
    v_add_u32 v44, s9, v44
    v_mul_u32_u24 v44, {CSTR}, v44
    v_add_u32 v44, {WS_CNT+56*CSTR}, v44
    s_mov_b32 s11, {WS_HT}
    s_mov_b32 s12, {WS_HT+0x10000}
    s_mov_b32 s13, {WS_HT+0x20000}
    """)
    k(ids2.replace("s6","s56").replace("s7","s57"))
    k(f"""
    s_mul_i32 s58, s3, 5120
    s_mov_b32 s59, s58
    s_mul_i32 s60, s56, {48*5120}
    s_add_u32 s60, s60, s58
    s_add_u32 s60, s60, {WS_W2}
    s_cmp_lt_u32 s3, 2
    s_cselect_b32 s24, 1, 0
    v_lshrrev_b32 v6, 5, v1
    v_bfe_u32 v7, v1, 1, 2
    v_lshl_add_u32 v6, v6, 2, v7
    v_lshlrev_b32 v6, 12, v6
    v_bfe_u32 v7, v1, 3, 2
    v_lshl_add_u32 v6, v7, 5, v6
    v_and_b32 v7, 1, v1
    v_lshl_add_u32 v6, v7, 4, v6
    s_mul_i32 s8, s56, {80*4096}
    s_lshl_b32 s9, s57, 7
    s_add_u32 s8, s8, s9
    s_add_u32 s8, s8, {WS_HT}
    v_add_u32 v63, s8, v6
    """)
    if warm:
        k(f"s_cmp_lg_u32 s3, {warm-1}\ns_cbranch_scc1 LF_nw\ns_mov_b32 s72, 1\ns_mov_b64 exec, 0\ns_branch LF_epi\nLF_epiret:\ns_mov_b64 exec, -1\nLF_nw:")
    k(f"""
    s_cmp_eq_u32 s69, 0
    s_cbranch_scc1 LF_l2
    s_barrier
LF_l2:
    """)
    TL()
    if wmode==0:
        for i in range(6,NW): k(DW)
    k(f"""
    s_cmp_lg_u32 s3, 0
    s_cbranch_scc1 LF_l4
    """)
    TL()
    poll(k,44,1,"LF_p1",12,sleep=sl1)
    k(f"""
LF_l4:
    s_waitcnt vmcnt(24)
    s_barrier
    {DT}
    {DT}
    buffer_load_dwordx4 v[48:51], v15, s[48:51], s11 offen sc1
    buffer_load_dwordx4 v[52:55], v15, s[48:51], s12 offen sc1
    buffer_load_dwordx4 v[56:59], v16, s[48:51], s13 offen sc1
    """)
    for i in range(NT-2): k(DT)
    ops=["T0","T0","T1","T1","P","P","P"]+sum([["T%d"%i]*2 for i in range(2,NT)],[])
    def wait(need):
        last=max([i for i,o in enumerate(ops) if o in need]+[-1])
        return min(63,len(ops)-1-last)
    k(f"s_waitcnt vmcnt({wait(['T0'])})\ns_barrier")
    if wmode==1:
        for i in range(6,NW): k(DW); ops+=["W%d"%i]*3
    wnext=6 if wmode==2 else NW
    S1=64; S2=72
    def partial(js=range(3)):
        for j in js:
            for q in range(4):
                k(f"v_lshlrev_b32 v{80+2*q}, 16, v{48+4*j+q}\nv_and_b32 v{81+2*q}, 0xffff0000, v{48+4*j+q}")
            for q in range(8):
                if j==0: k(f"v_mov_b32 v{S1+q}, v{80+q}\nv_mul_f32 v{S2+q}, v{80+q}, v{80+q}")
                else: k(f"v_add_f32 v{S1+q}, v{S1+q}, v{80+q}\nv_fmac_f32 v{S2+q}, v{80+q}, v{80+q}")
    def partial2():
        for i in range(8): k(f"v_permlane32_swap_b32 v{S1+i}, v{S2+i}")
        for i in range(8): k(f"v_add_f32 v{S1+i}, v{S1+i}, v{S2+i}")
        for i in range(4): k(f"v_permlane16_swap_b32 v{S1+i}, v{S1+4+i}")
        for i in range(4): k(f"v_add_f32 v{S1+i}, v{S1+i}, v{S1+4+i}")
        for rr in (8,4):
            for i in range(4): k(f"v_add_f32_dpp v{S1+i}, v{S1+i}, v{S1+i} row_ror:{rr} row_mask:0xf bank_mask:0xf")
        k(f"s_mov_b32 exec_lo, 0x000f000f\ns_mov_b32 exec_hi, 0x000f000f\nglobal_store_dwordx4 v17, {vr(S1,4)}, {WS} sc1\ns_mov_b64 exec, -1")
    tnext=NT
    E=(lambda x: x) if not b2 else (lambda x: x&~1)
    for sg in range(0,20,2 if b2 else 1):
        need=["T%d"%(sg+1),"W%d"%(sg+1)]+(["T%d"%(sg+2),"W%d"%(sg+2)] if b2 else [])
        if sg==pst: need.append("P")
        if sg==ev[0]: need.append("S")
        if sg==ev[2]: need.append("C")
        k(f"s_waitcnt vmcnt({wait(need)})\ns_barrier")
        while tnext<20 and tnext<=sg+NT: k(DT); ops+=["T%d"%tnext]*2; tnext+=1
        c=0
        while wnext<20 and wnext<=sg+NW and c<(2 if b2 else 1): k(DW); ops+=["W%d"%wnext]*3; wnext+=1; c+=1
        if psplit:
            if sg<3: partial([sg])
            if sg==3: partial2(); ops.append("S")
        else:
            if sg==pst: partial()
            if sg==pst+(2 if b2 else 1): partial2(); ops.append("S")
        if sg==ev[0]:
            k(f"s_cmp_lg_u32 s3, 0\ns_cbranch_scc1 LF_nsig\ns_mov_b64 exec, 1\nglobal_atomic_add v18, v19, {WS} sc1\ns_mov_b64 exec, -1\nLF_nsig:")
        if sg==ev[1]: k(f"v_mov_b32 v47, {WS_CNT+49*CSTR}\nglobal_load_dword v12, v47, {WS} sc1\nglobal_load_dword v23, v18, {WS} sc1"); ops+=["C","C"]
        if sg==ev[2]:
            k(f"v_cmp_ne_u32 vcc, 16, v23\ns_cbranch_vccz LF_cnt")
            poll(k,18,16,"LF_p2",23,sleep=1)
            k(f"""
LF_cnt:
            v_cmp_ne_u32 vcc, 48, v12
            s_cbranch_vccz LF_p5d
            """)
            poll(k,47,48,"LF_p5",12,sleep=4)
            k(f"""
            global_load_dwordx4 v[48:51], v42, {WS} sc1
            global_load_dwordx4 v[24:27], v20, {WS} sc1
            global_load_dwordx4 v[28:31], v40, {WS} sc1
            global_load_dwordx4 v[32:35], v21, {WS} sc1
            global_load_dwordx4 v[36:39], v41, {WS} sc1
            """)
            ops+=["G"]*5
        if sg==2: k(f"v_mov_b32 v46, {WS_CNT+50*CSTR}\nglobal_load_dword v45, v46, {WS} sc1"); ops.append("X")
        if sg==min(pk):
            k(f"s_waitcnt vmcnt({wait(['X'])})\nv_cmp_ne_u32 vcc, 0x60, v45\ns_cbranch_vccz LF_p4d")
            poll(k,46,"0x60","LF_p4",45,sleep=4)
            k(f"s_add_u32 s61, s60, {NW3*W3}"); pkn=NW3
        if sg in pk:
            for st in range(pkn,pkn+pk[sg]):
                pkn+=1
                k("s_add_u32 s31, s61, 4096")
                for p in range(5): k(f"buffer_load_dwordx4 {vr(100+20*(st-NW3)+4*p,4)}, v10, s[48:51], s{61 if p<4 else 31} offen offset:{1024*(p%4)} sc1")
                k(f"s_add_u32 s61, s61, {W3}"); ops+=["K"]*5
        if sg==ev[3]:
            k(f"""
            s_waitcnt vmcnt({wait(["G"])})
            ds_write_b128 v43, v[48:51]
            v_add_f32 v24, v24, v28
            v_add_f32 v25, v25, v29
            v_add_f32 v26, v26, v30
            v_add_f32 v27, v27, v31
            v_add_f32 v32, v32, v36
            v_add_f32 v33, v33, v37
            v_add_f32 v34, v34, v38
            v_add_f32 v35, v35, v39
            v_add_f32 v24, v24, v32
            v_add_f32 v25, v25, v33
            v_add_f32 v26, v26, v34
            v_add_f32 v27, v27, v35
            v_permlane32_swap_b32 v24, v26
            v_permlane32_swap_b32 v25, v27
            v_add_f32 v24, v24, v26
            v_add_f32 v25, v25, v27
            v_permlane16_swap_b32 v24, v25
            v_add_f32 v24, v24, v25
            v_mov_b32_dpp v25, v24 row_ror:8 row_mask:0xf bank_mask:0xf
            """)
            ln_finalize(k,24,25,26,28,30)
            k(f"""
            v_rcp_f32 v29, v30
            v_mul_f32 v30, v30, v30
            s_mov_b32 exec_lo, 0x00ff00ff
            s_mov_b32 exec_hi, 0x00ff00ff
            v_mul_f32 v29, {f2u(-math.log2(math.e))}, v29
            ds_write_b128 v22, v[28:31]
            s_mov_b64 exec, -1
            """)
    k(f"""
    s_branch LF_go3
LF_dw3:
    s_mov_b32 m0, s28
    s_add_u32 s31, s20, 4096
    buffer_load_dwordx4 v10, s[48:51], s20 offen sc1 lds
    buffer_load_dwordx4 v10, s[48:51], s20 offen offset:1024 sc1 lds
    buffer_load_dwordx4 v10, s[48:51], s20 offen offset:2048 sc1 lds
    buffer_load_dwordx4 v10, s[48:51], s20 offen offset:3072 sc1 lds
    s_add_u32 m0, s28, 4096
    s_add_u32 s28, s28, {W3}
    buffer_load_dwordx4 v10, s[48:51], s31 offen sc1 lds
    s_add_u32 s20, s20, {W3}
    s_setpc_b64 s[70:71]
LF_go3:
    s_mov_b32 s22, s58
    s_mov_b32 s28, s59
    s_mov_b32 s20, s60
    v_mov_b32 v16, v63
    s_waitcnt lgkmcnt(0)
    s_barrier
    s_mov_b32 s30, 0
LF_pf3:
    s_call_b64 s[70:71], LF_dw3
    s_waitcnt vmcnt({thr})
    s_add_u32 s30, s30, 1
    s_cmp_lt_u32 s30, {NW3}
    s_cbranch_scc1 LF_pf3
    s_cmp_eq_u32 s24, 1
    s_cbranch_scc1 LF_nores
    s_sub_u32 s27, s3, 2
    s_mul_i32 s27, s27, 5
    s_lshl_b32 s26, s27, 15
    s_lshl_b32 s27, s27, 10
    s_add_u32 s27, s27, {RES}
    """)
    for i in range(5): k(f"s_mov_b32 m0, s27\ns_add_u32 s27, s27, 1024\nbuffer_load_dwordx4 v16, s[48:51], s26 offen sc1 lds\ns_add_u32 s26, s26, 32768")
    k("LF_nores:\nv_add_u32 v11, s22, v10")
    TL()
    k(f"s_waitcnt vmcnt({bgw})\ns_barrier")
    for n,grp in enumerate(((7,8),(9,10,11))):
        k(f"s_waitcnt vmcnt({(10 if bgw else 0) if n==0 else 0})\ns_barrier")
        for r in grp:
            for p in range(5): k(f"ds_write_b128 v11, {vr(100+20*(r-NW3)+4*p,4)} offset:{1024*p}")
            k(f"v_add_u32 v11, {W3}, v11")
        k("s_waitcnt lgkmcnt(0)")
    k("s_barrier\ns_barrier")
    if diag:
        TL.n=11; k("s_add_u32 s3, s3, 4"); TL.flush(WS,0)
    k("s_endpgm")
    k(f"""
LF_M:
    s_bfe_u32 s7, s2, 0x20003
    s_mul_i32 s7, s7, {CSTR}
    s_add_u32 s8, s7, {WS_CNT+52*CSTR}
    v_mov_b32 v2, s8
    v_mov_b32 v3, 1
    v_mul_u32_u24 v5, {4*CSTR}, v1
    s_add_u32 s8, s7, {WS_CNT+56*CSTR}
    v_add_u32 v5, s8, v5
    s_mov_b64 exec, 1
    s_waitcnt vmcnt(0)
    ds_add_rtn_u32 v4, v232, v3
    s_waitcnt lgkmcnt(0)
    v_cmp_eq_u32 vcc, 3, v4
    s_cbranch_vccz LF_m2
    global_atomic_add v4, v2, v3, {WS} sc0 sc1
    s_waitcnt vmcnt(0)
    v_cmp_eq_u32 vcc, 39, v4
    s_cbranch_vccz LF_m2
    s_mov_b64 exec, 3
    global_store_dword v5, v3, {WS} sc1
LF_m2:
    s_mov_b64 exec, -1
    s_barrier
LF_C:
    """)
    if diag: T.n=4
    k(ids1)
    k(f"""
    v_lshrrev_b32 v2, 2, v1
    v_and_b32 v4, 3, v1
    v_lshrrev_b32 v5, 5, v1
    v_bfe_u32 v6, v1, 4, 1
    v_and_b32 v8, 15, v1
    v_lshrrev_b32 v9, 4, v1
    v_lshlrev_b32 v10, 6, v2
    v_and_b32 v10, 0xc0, v10
    v_lshl_add_u32 v10, v4, 3, v10
    v_lshl_add_u32 v10, v6, 5, v10
    v_mul_u32_u24 v11, 1536, v9
    v_add_u32 v11, v11, v10
    s_and_b32 s8, s3, 1
    s_lshr_b32 s9, s3, 1
    s_lshl_b32 s10, s8, 5
    v_xor_b32 v12, s10, v11
    v_lshl_add_u32 v13, v9, 11, v10
    s_lshl_b32 s10, s9, 9
    s_add_u32 s10, s10, {TR0}
    v_add_u32 v13, s10, v13
    v_xor_b32 v14, 32, v13
    s_lshl_b32 s10, s8, 6
    s_add_u32 s10, s10, {CSL}
    v_lshl_add_u32 v17, v9, 4, s10
    s_lshl_b32 s10, s9, 10
    s_add_u32 s10, s10, {STA}
    v_lshl_add_u32 v19, v8, 4, s10
    s_lshl_b32 s10, s7, 3
    s_lshl_b32 s11, s9, 2
    s_add_u32 s10, s10, s11
    s_mul_i32 s10, s10, {48*1024}
    s_mul_i32 s11, s6, 3072
    s_add_u32 s10, s10, s11
    s_lshl_b32 s11, s8, 9
    s_add_u32 s10, s10, s11
    s_add_u32 s10, s10, {WS_HID}
    v_mul_u32_u24 v18, {48*1024}, v6
    v_lshl_add_u32 v18, v5, 8, v18
    v_lshl_add_u32 v18, v8, 4, v18
    v_add_u32 v18, s10, v18
    v_add_u32 v20, {2*48*1024}, v18
    s_mul_i32 s10, s7, {CSTR}
    s_add_u32 s10, s10, {WS_CNT+16*CSTR}
    v_mov_b32 v21, s10
    s_lshl_b32 s35, s6, 2
    v_mov_b32 v7, {PRT}
    v_mov_b64 v[2:3], 0
    ds_write_b64 v7, v[2:3]
    s_load_dwordx2 s[38:39], s[0:1], 104
    """)
    ACC=160
    if dry:
        for i in range(3): k(f"v_mov_b32 v{22+i}, v{12+i}")
        k("s_mov_b32 s33, 0\ns_mov_b32 s34, 0\ns_mov_b32 s30, 100\ns_mov_b64 vcc, -1\ns_branch LF_loop\nLF_dried:\ns_mov_b64 vcc, 0")
    for r in range(ACC,ACC+96,2): k(f"v_mov_b64 {vr(r,2)}, 0")
    FA=[32,72]
    def reads(buf,va,vb):
        o=[]
        for j in range(4):
            for e in range(2): o.append(f"ds_read_b64_tr_b16 {vr(FA[buf]+24+4*j+2*e,2)}, v{vb+(j&1)} offset:{e*1024+(j>>1)*256}")
        for t in range(6):
            for e in range(2): o.append(f"ds_read_b64_tr_b16 {vr(FA[buf]+4*t+2*e,2)}, v{va} offset:{(t//3)*6144+e*768+(t%3)*256}")
        return o[8:10]+o[0:8]+o[10:]
    def mfs(buf): return [f"v_mfma_f32_16x16x32_bf16 {vr(ACC+16*t+4*j,4)}, {vr(FA[buf]+4*t,4)}, {vr(FA[buf]+24+4*j,4)}, {vr(ACC+16*t+4*j,4)}" for t in range(6) for j in range(4)]
    def adv(b=0):
        return [f"v_add_u32 v{22+5*b+i}, s{33 if i<1 else 34}, v{12+i}" for i in range(3)]+[f"s_add_u32 s33, s33, {WSL}",f"s_cmp_eq_u32 s33, {NW*WSL}","s_cselect_b32 s33, 0, s33",f"s_add_u32 s34, s34, {TSL}",f"s_cmp_eq_u32 s34, {NT*TSL}","s_cselect_b32 s34, 0, s34"]
    k(f"s_mov_b32 s33, {WSL}\ns_mov_b32 s34, {TSL}")
    for x in adv()[:3]: k(x)
    k("s_mov_b32 s30, 0\ns_barrier")
    T()
    r0=reads(0,12,13)
    for x in r0:
        if apre and ", v12 " in x: k(x)
    k("s_barrier")
    T()
    if "prof" in var: k("s_memtime s[66:67]\ns_waitcnt lgkmcnt(0)\nv_writelane_b32 v159, s66, 0")
    for x in r0:
        if not(apre and ", v12 " in x): k(x)
    k(f"LF_loop:")
    for b in range(2):
        k("s_waitcnt lgkmcnt(0)")
        if b2 and b==1: pass
        elif dry: k(f"s_cbranch_vccnz LF_sk{b}\ns_barrier\nLF_sk{b}:")
        else: k("s_barrier")
        rd=reads(1-b,22+5*b,23+5*b)
        a=adv(1-b); va=a[:3]; sa=a[3:]; lc=(["s_add_u32 s30, s30, 1","s_cmp_lt_u32 s30, 10"] if b else [])
        m=mfs(b); p=0
        for i,x in enumerate(m):
            k(x)
            e=min(len(rd),(len(rd)*(i+1)+span-1)//span)
            for y in rd[p:e]: k(y)
            p=e
            if 2<=i<14 and i%2==0: k(sa.pop(0))
            if i>=min(span,19):
                if va: k(va.pop(0))
                elif lc: k(lc.pop(0))
        assert not (sa or va or lc)
    if "prof" in var:
        k("s_cselect_b32 s68, 1, 0\ns_memtime s[66:67]\ns_waitcnt lgkmcnt(0)\ns_mov_b32 m0, s30\nv_writelane_b32 v159, s66, m0\ns_cmp_eq_u32 s68, 1")
    k(f"s_cbranch_scc1 LF_loop")
    if "prof" in var: k(f"s_lshl_b32 s78, s2, 9\ns_lshl_b32 s79, s3, 6\ns_add_u32 s78, s78, s79\ns_add_u32 s78, s78, {WS_STAMP+131072}\nv_lshl_add_u32 v158, v1, 2, s78\ns_mov_b64 exec, 0xffff\nglobal_store_dword v158, v159, {WS}\ns_mov_b64 exec, -1")
    if dry: k("s_waitcnt lgkmcnt(0)\ns_cbranch_vccnz LF_dried")
    T()
    k("s_barrier")
    if warm: k("s_mov_b32 s72, 0\nLF_epi:")
    ST=112; CS=128
    for j in range(4): k(f"ds_read_b128 {vr(ST+4*j,4)}, v19 offset:{256*j}")
    for t in range(6): k(f"ds_read_b128 {vr(CS+4*t,4)}, v17 offset:{(t//3)*384+(t%3)*128}")
    k("s_waitcnt lgkmcnt(0)")
    for i in range(3):
        E=32
        G=lambda j,p: ACC+16*i+4*j+2*p
        U=lambda j,p: ACC+48+16*i+4*j+2*p
        JP=[(j,p) for j in range(4) for p in range(2)]
        for j,p in JP:
            k(f"v_pk_fma_f32 {vr(G(j,p),2)}, {vr(CS+4*i+2*p,2)}, {vr(ST+4*j,2)}, {vr(G(j,p),2)} op_sel:[0,0,0] op_sel_hi:[1,0,1] neg_lo:[1,0,0] neg_hi:[1,0,0]")
        for j,p in JP: k(f"v_pk_mul_f32 {vr(E+4*j+2*p,2)}, {vr(G(j,p),2)}, {vr(ST+4*j,2)} op_sel:[0,1] op_sel_hi:[1,1]")
        ex=[f"v_exp_f32 v{E+r}, v{E+r}" for r in range(16)]
        uu=[f"v_pk_fma_f32 {vr(U(j,p),2)}, {vr(CS+12+4*i+2*p,2)}, {vr(ST+4*j,2)}, {vr(U(j,p),2)} op_sel:[0,0,0] op_sel_hi:[1,0,1] neg_lo:[1,0,0] neg_hi:[1,0,0]" for j,p in JP]
        for x in merge(ex,uu): k(x)
        for j,p in JP: k(f"v_pk_fma_f32 {vr(E+4*j+2*p,2)}, {vr(E+4*j+2*p,2)}, {vr(ST+4*j+2,2)}, {vr(ST+4*j+2,2)} op_sel:[0,0,0] op_sel_hi:[1,0,0]")
        rc=[f"v_rcp_f32 v{E+r}, v{E+r}" for r in range(16)]
        gu=[f"v_pk_mul_f32 {vr(G(j,p),2)}, {vr(G(j,p),2)}, {vr(U(j,p),2)}" for j,p in JP]
        for x in merge(rc,gu): k(x)
        for j,p in JP: k(f"v_pk_mul_f32 {vr(G(j,p),2)}, {vr(G(j,p),2)}, {vr(E+4*j+2*p,2)}")
        O=48+8*(i&1)
        for j,p in JP: k(f"v_cvt_pk_bf16_f32 v{O+2*j+p}, v{G(j,p)}, v{G(j,p)+1}")
        for jj in (0,2): k(f"v_permlane16_swap_b32 v{O+2*jj}, v{O+2*jj+2}\nv_permlane16_swap_b32 v{O+2*jj+1}, v{O+2*jj+3}")
        if warm: k(f"s_cmp_eq_u32 s72, 1\ns_cbranch_scc1 {'LF_es%d'%i if i<2 else 'LF_epiret'}")
        for jj in (0,2): k(f"global_store_dwordx4 v{18 if jj==0 else 20}, {vr(O+2*jj,4)}, {WS} offset:{1024*i} {hst}")
        if warm and i<2: k(f"LF_es{i}:")
    T()
    H2SIG=f"global_store_dword v12, v9, {WS} sc1" if h2d==2 else f"global_atomic_add v21, v9, {WS} sc1" if h2d else f"global_atomic_add v13, v21, v9, {WS} sc0 sc1\ns_waitcnt vmcnt(0)\nv_cmp_eq_u32 vcc, 15, v13\ns_cbranch_vccz LF_c3\nglobal_store_dword v12, v9, {WS} {gst}"
    k(ids2)
    k(f"""
    v_lshlrev_b32 v10, 4, v1
    s_and_b32 s8, s3, 1
    s_lshr_b32 s9, s3, 1
    s_lshl_b32 s21, s7, 2
    s_lshl_b32 s10, s9, 1
    s_add_u32 s21, s21, s10
    s_mul_i32 s21, s21, 48
    s_add_u32 s23, s21, s8
    s_mul_i32 s10, s8, 3
    s_add_u32 s21, s21, s10
    s_lshl_b32 s21, s21, 10
    s_add_u32 s21, s21, {WS_HID}
    s_add_u32 s22, s21, {48*1024}
    s_lshl_b32 s23, s23, 10
    s_add_u32 s23, s23, {WS_HID+1024}
    s_add_u32 s24, s23, {48*1024}
    s_mov_b32 s48, s42
    s_mov_b32 s49, s43
    s_mov_b32 s50, {WS_HID+2048*1536*2}
    s_mov_b32 s51, 0x20000
    s_mul_i32 s10, s3, 5120
    s_add_u32 s10, s10, {6*W3}
    v_add_u32 v14, s10, v10
    s_xor_b32 s10, s3, 1
    s_mul_i32 s10, s10, 5120
    s_add_u32 s10, s10, {6*W3}
    v_add_u32 v15, s10, v10
    s_mul_i32 s10, s8, 5120
    v_add_u32 v4, s10, v10
    v_add_u32 v5, {3*W3}, v4
    v_add_u32 v6, {6*W3}, v4
    v_lshlrev_b32 v22, 9, v9
    v_lshl_add_u32 v22, v8, 3, v22
    s_lshl_b32 s10, s3, 7
    s_add_u32 s10, s10, {RES}
    v_add_u32 v2, s10, v22
    s_lshl_b32 s10, s7, 6
    s_lshl_b32 s11, s3, 4
    s_add_u32 s10, s10, s11
    v_add_u32 v23, s10, v8
    v_mul_u32_u24 v23, 1280, v23
    v_lshl_add_u32 v23, v9, 3, v23
    s_mul_i32 s10, s6, 160
    v_add_u32 v3, s10, v23
    v_mov_b32 v9, 1
    s_lshr_b32 s10, s7, 1
    s_mul_i32 s10, s10, {CSTR}
    s_add_u32 s10, s10, {WS_CNT+32*CSTR}
    v_mov_b32 v11, s10
    v_add_u32 v8, {48*CSTR}, v11
    v_add_u32 v12, {16*CSTR}, v21
    v_add_u32 v22, {48*CSTR}, v21
    v_add_u32 v23, {64*CSTR}, v21
    v_mov_b32 v24, 0
    s_mov_b64 exec, 1
    s_waitcnt vmcnt(4)
    ds_add_rtn_u32 v13, v7, v9
    s_waitcnt lgkmcnt(0)
    v_cmp_eq_u32 vcc, 3, v13
    s_cbranch_vccz LF_c1
    global_atomic_add v24, v21, v9, {WS} sc0 sc1
LF_c1:
    s_waitcnt vmcnt(0)
    ds_add_rtn_u32 v13, v7, v9 offset:4
    v_cmp_eq_u32 vcc, 15, v24
    s_cbranch_vccz LF_c2
    global_store_dword v12, v9, {WS} sc1
LF_c2:
    s_waitcnt lgkmcnt(0)
    v_cmp_eq_u32 vcc, 3, v13
    s_cbranch_vccz LF_c3
    global_atomic_add v13, v22, v9, {WS} sc0 sc1
    s_waitcnt vmcnt(0)
    v_cmp_eq_u32 vcc, 15, v13
    s_cbranch_vccz LF_c3
    global_store_dword v23, v9, {WS} sc1
LF_c3:
    s_mov_b64 exec, -1
    s_cmp_lg_u32 s3, 0
    s_cbranch_scc1 LF_p3d
    """)
    poll(k,11,1,"LF_p3",13,sleep=sl2)
    k("v_lshrrev_b32 v12, 4, v1\nv_and_b32 v13, 1, v12\nv_mul_u32_u24 v13, 24, v13\nv_add_u32 v13, v13, v3")
    AC3=16; AF=[56,76]; BR=96; NBR=20
    def areads(i):
        st=i//2; slot=st%NW3; off=(slot%3)*W3+(i&1)*10240
        return [f"ds_read_b128 {vr(AF[i&1]+4*dt,4)}, v{4+slot//3} offset:{off+1024*dt}" for dt in range(5)]
    def bload(i):
        a=21 if i<8 else 23; st=6144 if i<8 else 3072
        return [f"buffer_load_dwordx4 {vr(BR+8*(i%NBR)+4*j,4)}, v10, s[48:51], s{a+j} offen sc1" for j in range(2)]+[f"s_add_u32 s{a}, s{a}, {st}",f"s_add_u32 s{a+1}, s{a+1}, {st}"]
    k("s_barrier")
    T()
    for i in range(8):
        for x in bload(i): k(x)
    for x in areads(0): k(x)
    ops=sum([["B%d"%i]*2 for i in range(8)],[]); issued=8
    for i in range(24):
        need=["B%d"%i]+(["GO"] if i==gchk else [])
        k(f"s_waitcnt vmcnt({wait(need)}) lgkmcnt(0)")
        if i==gchk:
            k("v_cmp_ne_u32 vcc, 1, v12\ns_cbranch_vccz LF_p6d")
            poll(k,8,1,"LF_p6",12,sleep=1)
        if i in (3,9,15): k("s_barrier")
        fill=areads(i+1) if i<23 else []
        if i==22: fill=fill+[f"ds_read_b64_tr_b16 {vr(240+2*dt,2)}, v2 offset:{dt*2048}" for dt in range(5)]
        if i==gld: fill=[f"global_load_dword v12, v8, {WS} sc1"]+fill; ops.append("GO")
        c=0
        while i>=gchk and issued<24 and issued<i+NBR and c<(2 if issued<i+nbpre else 1):
            fill=fill+bload(issued); ops+=["B%d"%issued]*2; issued+=1; c+=1
        m=[f"v_mfma_f32_16x16x32_bf16 {vr(AC3+20*j+4*dt,4)}, {vr(AF[i&1]+4*dt,4)}, {vr(BR+8*(i%NBR)+4*j,4)}, {vr(AC3+20*j+4*dt,4) if i else '0'}" for dt in range(5) for j in range(2)]
        p=0
        for n,x in enumerate(m):
            k(x)
            e=max(min(n+1,len(fill)),(len(fill)*(n+1))//len(m))
            for y in fill[p:e]: k(y)
            p=e
    T()
    k("LF_fin:\ns_cmp_eq_u32 s8, 0\ns_cbranch_scc1 LF_x0")
    for dt in range(5): k(f"ds_write_b128 v14, {vr(AC3+4*dt,4)} offset:{1024*dt}")
    for r in range(0,20,2): k(f"v_mov_b64 {vr(AC3+r,2)}, {vr(AC3+20+r,2)}")
    k("s_branch LF_x1\nLF_x0:")
    for dt in range(5): k(f"ds_write_b128 v14, {vr(AC3+20+4*dt,4)} offset:{1024*dt}")
    k("LF_x1:")
    for dt in range(5):
        b=AC3+4*dt; t=112+4*dt
        k(f"""
        v_lshlrev_b32 v{t}, 16, v{240+2*dt}
        v_and_b32 v{t+1}, 0xffff0000, v{240+2*dt}
        v_lshlrev_b32 v{t+2}, 16, v{241+2*dt}
        v_and_b32 v{t+3}, 0xffff0000, v{241+2*dt}
        v_pk_add_f32 {vr(b,2)}, {vr(b,2)}, {vr(t,2)}
        v_pk_add_f32 {vr(b+2,2)}, {vr(b+2,2)}, {vr(t+2,2)}
        """)
    k("s_waitcnt lgkmcnt(0)")
    if False: k("s_cmp_eq_u32 s72, 1\ns_cbranch_scc1 LF_fb")
    k("s_barrier\nLF_fb:")
    for dt in range(5): k(f"ds_read_b128 {vr(64+4*dt,4)}, v15 offset:{1024*dt}")
    for dt in range(5):
        b=AC3+4*dt; t=64+4*dt; o=96+2*dt
        k(f"""
        s_waitcnt lgkmcnt({4-dt})
        v_pk_add_f32 {vr(b,2)}, {vr(b,2)}, {vr(t,2)}
        v_pk_add_f32 {vr(b+2,2)}, {vr(b+2,2)}, {vr(t+2,2)}
        v_cvt_pk_bf16_f32 v{o}, v{b}, v{b+1}
        v_cvt_pk_bf16_f32 v{o+1}, v{b+2}, v{b+3}
        """)
        if dt in (1,3): k(f"v_permlane16_swap_b32 v{o-2}, v{o}\nv_permlane16_swap_b32 v{o-1}, v{o+1}")
    if False: k("s_cbranch_scc1 LF_finret")
    k(f"global_store_dwordx4 v13, v[96:99], s[38:39] {ost}\nglobal_store_dwordx4 v13, v[100:103], s[38:39] offset:64 {ost}\nglobal_store_dwordx2 v3, v[104:105], s[38:39] offset:128 {ost}")
    if wb: k("s_waitcnt vmcnt(0)\nbuffer_wbl2 sc1")
    if diag:
        k("s_waitcnt vmcnt(0)"); T(); T.flush(WS,0)
        if "dbgout" in var:
            k("s_or_b32 s78, s2, s3\ns_cmp_lg_u32 s78, 0\ns_cbranch_scc1 L1_end\ns_mov_b64 exec, 1\nv_mov_b32 v2, 0")
            for i in range(1,11): k(f"s_sub_u32 s78, s{80+2*i}, s80\nv_mov_b32 v3, s78\nglobal_store_dword v2, v3, s[40:41] offset:{4*i}")
    k("L1_end:\ns_endpgm")
    return k
def single(k, comment=""):
    g=k.grid; b=k.block
    s=comment+"; @launch grid=(%d,%d,%d) block=(%d,%d,%d) lds=%d\n"%(g[0],g[1],g[2],b[0],b[1],b[2],k.lds)
    return s+HEADER+k.text()+'.section .rodata,"a"\n.p2align 6\n'+k.desc()
if __name__=="__main__":
    from gate import *
    import build, sys
    k1.SAFE=True
    open("f_diag.s","w").write(emit([gate(),scrub(),gen(diag=True)],verbose=True))
    for n,a in enumerate(sys.argv[1:]):
        open("f_%s.s"%"bcdefgh"[n],"w").write(emit([gate(),scrub(),gen(diag=True,**eval("dict(%s)"%a))]))
    k1.SAFE=False
    open("v_fused.s","w").write(single(gen(),build.HDR))
    open("v_dbg.s","w").write(single(gen(diag=True,var="dbgout"),build.HDR))
```
